```python
import torch

def _softmax(x, axis=-1):
    return torch.softmax(x, dim=axis)
def _gelu(x):
    return torch.nn.functional.gelu(x, approximate="tanh")
def _silu(x):
    return torch.nn.functional.silu(x)
def _sigmoid(x):
    return torch.sigmoid(x)
def _layernorm(x, axis=-1, eps=1e-5):
    m = x.mean(dim=axis, keepdim=True)
    v = x.var(dim=axis, keepdim=True, unbiased=False)
    return (x - m) / torch.sqrt(v + eps)
def _scatter_add(tgt, idx, src, axis=0):
    return tgt.clone().index_add_(axis, idx, src)
def _segment_sum(src, seg, n):
    out = torch.zeros((n,) + src.shape[1:], dtype=src.dtype)
    return out.index_add_(0, seg, src)
def _pad(x, pw):
    flat = tuple(v for pair in reversed(pw) for v in pair)
    return torch.nn.functional.pad(x, flat)

kernel_name = 'parallel_sum__gqa_block_cached__mixer_channel_mlp__decode'

def setup_inputs():

    _w = (lambda a: (lambda t: t.to(torch.bfloat16) if t.is_floating_point() else t)(torch.as_tensor(a)))
    def _A_setup():
        B, Sq, D = 8, 1, 640
        Hq, Hkv, Sk, Dh = 32, 32, 4096, 128
        assert Hq % Hkv == 0, (Hq, Hkv)
        return {
            "x": _w((lambda *s: torch.randn(*s, dtype=torch.bfloat16) * 0.05)(B, Sq, D)),
            "k_cache": _w((lambda *s: torch.randn(*s, dtype=torch.bfloat16) * 3.2)(B, Hkv, Sk, Dh)),
            "v_cache": _w((lambda *s: torch.randn(*s, dtype=torch.bfloat16) * 0.4)(B, Hkv, Sk, Dh)),
            "wq": _w((lambda *s: torch.randn(*s, dtype=torch.bfloat16) * 3.2)(D, Hq * Dh) * (D ** -0.5)),
            "wo": _w((lambda *s: torch.randn(*s, dtype=torch.bfloat16) * 0.4)(Hq * Dh, D) * ((Hq * Dh) ** -0.5)),
        }
    _A_in = _A_setup()

    def _B_setup():
        B, S, D, F = 8, 1, 640, 1728
        return {
            "x": _w((lambda *s: torch.randn(*s, dtype=torch.bfloat16) * 0.05)(B, S, D)),
            "w1": _w((lambda *s: torch.randn(*s, dtype=torch.bfloat16) * 1.6)(D, F) * (D ** -0.5)),
            "b1": _w((lambda *s: torch.randn(*s, dtype=torch.bfloat16) * 1.6)(F)),
            "w2": _w((lambda *s: torch.randn(*s, dtype=torch.bfloat16) * 0.1)(F, D) * (F ** -0.5)),
            "b2": _w((lambda *s: torch.randn(*s, dtype=torch.bfloat16) * 0.1)(D)),
        }
    _B_in = _B_setup()

    return {
        "A_x": _A_in["x"],
        "A_k_cache": _A_in["k_cache"],
        "A_v_cache": _A_in["v_cache"],
        "A_wq": _A_in["wq"],
        "A_wo": _A_in["wo"],
        "B_x": _B_in["x"],
        "B_w1": _B_in["w1"],
        "B_b1": _B_in["b1"],
        "B_w2": _B_in["w2"],
        "B_b2": _B_in["b2"],
    }

def reference(A_x, A_k_cache, A_v_cache, A_wq, A_wo, B_x, B_w1, B_b1, B_w2, B_b2):
    def _A_ref(x, k_cache, v_cache, wq, wo):
        B, Sq, D = x.shape
        Hq, Dh = 32, 128
        Hkv = k_cache.shape[1]
        rep = Hq // Hkv
        q = (lambda x, *d: x.permute(*d))((x @ wq).reshape(B, Sq, Hq, Dh), 0, 2, 1, 3)
        k = (lambda x, n, axis: torch.repeat_interleave(x, n, dim=axis))(k_cache, rep, axis=1)
        v = (lambda x, n, axis: torch.repeat_interleave(x, n, dim=axis))(v_cache, rep, axis=1)
        scores = torch.einsum("bhqd,bhkd->bhqk", q, k) * (Dh ** -0.5)
        p = _softmax(scores, axis=-1)
        o = torch.einsum("bhqk,bhkd->bhqd", p, v)
        return (lambda x, *d: x.permute(*d))(o, 0, 2, 1, 3).reshape(B, Sq, Hq * Dh) @ wo

    def _B_ref(x, w1, b1, w2, b2):
        y = _layernorm(x, axis=-1)
        h = _gelu(torch.einsum("bsd,df->bsf", y, w1) + b1)
        return torch.einsum("bsf,fd->bsd", h, w2) + b2

    x = A_x
    xn = _layernorm(x, axis=-1)
    return x + _A_ref(xn, A_k_cache, A_v_cache, A_wq, A_wo) + _B_ref(xn, B_w1, B_b1, B_w2, B_b2)
```

```python
import re
TRANS = ("v_exp_f32", "v_log_f32", "v_rcp_f32", "v_rsq_f32", "v_sqrt_f32", "v_sin_f32", "v_cos_f32")
def _regs(tok):
    tok = tok.strip().lstrip("-").strip("|")
    m = re.fullmatch(r"([vsa])(\d+)", tok)
    if m: return [(m.group(1), int(m.group(2)))]
    m = re.fullmatch(r"([vsa])\[(\d+):(\d+)\]", tok)
    if m: return [(m.group(1), i) for i in range(int(m.group(2)), int(m.group(3)) + 1)]
    if tok == "vcc": return [("s", 106), ("s", 107)]
    if tok == "exec": return [("s", 126), ("s", 127)]
    if tok == "m0": return [("s", 124)]
    return []
class Asm:
    def __init__(self):
        self.lines = []
        self.hist = []
        self.count = 0
    def raw(self, text):
        self.lines.append(text)
    def comment(self, text):
        self.lines.append("  ; " + text)
    def label(self, name):
        self.lines.append(name + ":")
    def nop(self, n):
        while n > 0:
            k = min(n, 16)
            self.lines.append(f"  s_nop {k-1}")
            self._age(k)
            n -= k
    def _age(self, k):
        for h in self.hist: h["age"] += k
        self.hist = [h for h in self.hist if h["age"] < 8]
    def __call__(self, text):
        t = text.split(";")[0].strip()
        mn = t.split()[0]
        rest = t[len(mn):].strip()
        ops = [o.strip() for o in rest.split(",")] if rest else []
        if ops:
            last = ops[-1].split()
        rest2 = re.sub(r"quad_perm:\[[^\]]*\]", "quad_perm", rest)
        rest2 = re.sub(r"op_sel(_hi)?:\[[^\]]*\]", "opsel", rest2)
        ops = [o.strip() for o in rest2.split(",")] if rest2 else []
        opregs = []
        for i, o in enumerate(ops):
            first = o.split()[0] if o.split() else ""
            opregs.append(_regs(first))
        valu = mn.startswith("v_")
        dpp = ("row_" in t) or ("quad_perm" in t) or mn.endswith("_dpp")
        base = mn.replace("_dpp", "").replace("_e32", "").replace("_e64", "")
        trans = base in TRANS
        dot = base.startswith("v_dot")
        perml = base.startswith("v_permlane")
        rdl = base.startswith("v_readlane") or base.startswith("v_readfirstlane")
        vmem = mn.startswith("buffer_") or mn.startswith("global_") or mn.startswith("flat_")
        ds = mn.startswith("ds_")
        store = vmem and ("store" in mn or "atomic" in mn)
        dst, src = [], []
        if valu:
            if base.startswith("v_cmp"):
                dst = opregs[0]; src = sum(opregs[1:], [])
            elif perml:
                dst = opregs[0] + opregs[1]; src = opregs[0] + opregs[1]
            else:
                dst = opregs[0]; src = sum(opregs[1:], [])
                if base in ("v_fmac_f32", "v_dot2c_f32_bf16") : src = src + dst
                if base.startswith("v_add_co") or base.startswith("v_addc_co"):
                    dst = opregs[0] + opregs[1]; src = sum(opregs[2:], [])
                if base == "v_cndmask_b32" and len(ops) == 3:
                    src = src + [("s",106),("s",107)]
                if base == "v_cndmask_b32" and len(ops) == 4 and False:
                    pass
        elif vmem or ds:
            src = sum(opregs, [])
        else:
            src = sum(opregs[1:], []) if opregs else []
            dst = opregs[0] if opregs else []
        need = 0
        for h in self.hist:
            hd = set(h["dst"])
            if not hd and not h.get("stdata"): continue
            req = 0
            vsrc = [r for r in src if r[0] in "va"]
            ssrc = [r for r in src if r[0] == "s"]
            if h["valu"]:
                hv = hd
                if valu and dpp and any(r in hv for r in vsrc): req = max(req, 2)
                if valu and perml and any(r in hv for r in vsrc): req = max(req, 2)
                if valu and rdl and any(r in hv for r in vsrc): req = max(req, 1)
                if h["trans"] and valu and not trans and any(r in hv for r in vsrc): req = max(req, 1)
                if h["trans"] and (vmem or ds) and any(r in hv for r in vsrc): req = max(req, 1)
                if h["dot"]:
                    touched = any(r in hv for r in vsrc) or (valu and any(r in hv for r in dst))
                    if touched:
                        same = (base == h["base"])
                        if same:
                            ab = sum(opregs[1:3], [])
                            if any(r in hv for r in ab): req = max(req, 3)
                        else:
                            req = max(req, 3)
                hs = [r for r in hv if r[0] == "s"]
                if hs:
                    if valu and any(r in hs for r in ssrc): req = max(req, 2 if not rdl else 4)
                    if vmem and any(r in hs for r in ssrc): req = max(req, 5)
                    if (not valu) and (not vmem) and (not ds) and any(r in hs for r in ssrc): req = max(req, 4)
            if h.get("stdata") and valu and any(r in h["stdata"] for r in dst): req = max(req, 2)
            if req > h["age"]:
                need = max(need, req - h["age"])
        if need: self.nop(need)
        self.lines.append("  " + text)
        self._age(1)
        ent = dict(age=0, dst=dst if (valu) else [], valu=valu, trans=trans, dot=dot, base=base)
        if store and ("x3" in mn or "x4" in mn):
            ent["stdata"] = set(sum(opregs, []))
        if mn.startswith("s_nop"):
            k = int(t.split()[1]) & 15
            self._age(k)
        self.hist.append(ent)
        self.count += 1
    def fence(self):
        self.nop(5)
        self.hist = []
    def text(self):
        return "\n".join(self.lines) + "\n"
```

```python
import sys, math, struct
from asmlib import Asm

KN = "parallel_sum__gqa_block_cached__mixer_channel_mlp__decode_kernel"
HDR = open("parallel_sum__gqa_block_cached__mixer_channel_mlp__decode.s.ref").read().split("; Override launch")[0]

def f32(x):
    return "0x%08x" % struct.unpack("<I", struct.pack("<f", x))[0]

class Cfg:
    nt = "nt"
    wflag = ""
    stamps = False
    rot = True
    pre_k = 0
    early = 16
    w1_start = 1
    wo_start = 11
    exp = ''

class VQ:
    def __init__(self, A):
        self.q = []; self.A = A
    def issue(self, tag, text):
        self.A(text); self.q.append(tag)
        assert len(self.q) <= 63, len(self.q)
    def wait(self, tag):
        idx = [i for i, t in enumerate(self.q) if t == tag]
        if not idx: return
        i = idx[-1]
        n = len(self.q) - 1 - i
        self.A(f"s_waitcnt vmcnt({n})")
        self.q = self.q[i+1:]
    def drain(self):
        self.A("s_waitcnt vmcnt(0)"); self.q = []

def gen(cfg=Cfg):
    A = Asm(); e = A
    vq = VQ(A)
    vLane = 1; vL16 = 2; vR = 3; vC = 4
    vT0, vT1, vT2, vT3, vT4, vT5 = 5, 6, 7, 8, 9, 10
    vColAddr = 11
    Q = 12; ACC = 16; vM = 24; vL = 25; S = 26
    vU0, vU1, vTt = 30, 31, 32
    vMn, vAl, vAl2, vE, vPL, vPH = 33, 34, 35, 36, 37, 38
    vHL = 39; vHH = 63; vB1 = 62
    MLPS = 40
    XL0, XH0, XL1, XH1 = 40, 41, 42, 43
    YL0, YH0, YL1, YH1 = 44, 45, 46, 47
    XR = 26
    XU = 50
    vOwn0, vOwn1 = 60, 61
    ACCH = 50
    ACC2 = 50
    vW1off, vW2off, vWOoff = 58, 59, 60
    ACCQ = 16
    KA, VA, KB, VB = 64, 80, 96, 112
    W = 128; W1 = 208
    ACCO = 64
    sW = 3; sB = 4; sH = 5; sS = 6; sT = 7
    pX, pK, pV, pWQ, pWO, pBX, pW1, pB1 = 16, 18, 20, 22, 24, 26, 28, 30
    pW2, pB2, pOUT, pDBG = 32, 34, 36, 38
    pWS = 40
    SK, SV, SA, SBq, SC, SD, SE = 44, 48, 52, 56, 60, 64, 68
    sKoff = 72; sVoff = 73; sScale = 74; sL2E = 75; sTmp = 76; sTmp2 = 77; sWr = 78; sT2 = 79
    SAVE = 96
    L_QP = 0; L_HP = 4096; L_QB = 6144; L_HB = 6400; L_ML = 6528; L_OP = 6656; L_OUT = 10752
    L_XN = L_OUT + 20480
    LDS_BYTES = L_XN + 1536

    def srd(dst, ptr, off, size, size_sub=None):
        if off is None:
            e(f"s_mov_b32 s{dst}, s{ptr}")
            e(f"s_and_b32 s{dst+1}, s{ptr+1}, 0xffff")
        else:
            e(f"s_add_u32 s{dst}, s{ptr}, s{off}")
            e(f"s_addc_u32 s{dst+1}, s{ptr+1}, 0")
            e(f"s_and_b32 s{dst+1}, s{dst+1}, 0xffff")
        if size_sub is None: e(f"s_mov_b32 s{dst+2}, {size}")
        else: e(f"s_sub_u32 s{dst+2}, {size}, s{size_sub}")
        e(f"s_mov_b32 s{dst+3}, 0x20000")
    def stamp(i):
        if cfg.stamps: e(f"s_memrealtime s[{80+2*i}:{81+2*i}]")
    def bc(j): return f"row_newbcast:{j} row_mask:0xf bank_mask:0xf"

    e(f"s_cmp_ge_u32 s2, 256")
    e(f"s_cbranch_scc1 L_end")
    stamp(0)
    e(f"s_load_dwordx16 s[16:31], s[0:1], 0")
    e(f"s_load_dwordx8 s[32:39], s[0:1], 64")
    e(f"s_load_dwordx2 s[40:41], s[0:1], 96")
    e(f"v_and_b32 v{vLane}, 63, v0")
    e(f"v_lshrrev_b32 v{vT0}, 6, v0")
    e(f"v_readfirstlane_b32 s{sW}, v{vT0}")
    e(f"s_lshr_b32 s{sB}, s2, 5")
    e(f"s_and_b32 s{sH}, s2, 31")
    e(f"s_and_b32 s{sS}, s{sH}, 7")
    e(f"s_lshl_b32 s{sS}, s{sS}, 2")
    e(f"s_lshr_b32 s{sT}, s{sH}, 3")
    e(f"s_add_u32 s{sS}, s{sS}, s{sT}")
    e(f"v_lshlrev_b32 v{vL16}, 4, v{vLane}")
    e(f"v_lshrrev_b32 v{vR}, 4, v{vLane}")
    e(f"v_and_b32 v{vC}, 15, v{vLane}")
    e(f"s_mov_b32 s{sScale}, {f32(128**-0.5)}")
    e(f"s_mov_b32 s{sL2E}, {f32(1.4426950408889634)}")
    if cfg.rot:
        e(f"s_add_u32 s{sWr}, s{sW}, s{sB}")
        e(f"s_and_b32 s{sWr}, s{sWr}, 7")
    else:
        e(f"s_mov_b32 s{sWr}, s{sW}")
    e(f"s_mul_i32 s{sTmp}, s{sWr}, 80")
    e(f"v_add_u32 v{vT0}, s{sTmp}, v{vR}")
    e(f"v_lshlrev_b32 v{vT5}, 13, v{vT0}")
    e(f"v_lshl_add_u32 v{vT5}, v{vC}, 4, v{vT5}")
    e(f"v_lshlrev_b32 v{vT3}, 2, v{vLane}")
    e(f"s_lshl_b32 s{sKoff}, s{sW}, 12")
    e(f"s_mov_b32 s{sVoff}, s{sKoff}")
    e(f"s_waitcnt lgkmcnt(0)")
    e(f"s_lshl_b32 s{sT}, s{sH}, 8")
    srd(SC, pWQ, sT, 640*8192, size_sub=sT)
    e(f"s_lshl_b32 s{sT}, s2, 20")
    srd(SK, pK, sT, 1 << 20)
    srd(SV, pV, sT, 1 << 20)
    e(f"s_cmp_lg_u32 s{sW}, 0")
    e(f"s_cbranch_scc1 L_nox")
    e(f"s_mul_i32 s{sT}, s{sB}, 1280")
    srd(SA, pX, sT, 1280)
    e(f"buffer_load_dwordx4 v[{XR}:{XR+3}], v{vL16}, s[{SA}:{SA+3}], 0 offen")
    e(f"buffer_load_dword v{XR+4}, v{vT3}, s[{SA}:{SA+3}], 0 offen offset:1024")
    A.label("L_nox"); A.hist = []
    kstate = {"k": 0, "v": 0}
    def tile_loads(i):
        Kb, Vb = (KA, VA) if i % 2 == 0 else (KB, VB)
        res = []
        for j in range(4):
            def fk(j=j, Kb=Kb, i=i):
                vq.issue(("K", i), f"buffer_load_dwordx4 v[{Kb+4*j}:{Kb+4*j+3}], v{vL16}, s[{SK}:{SK+3}], s{sKoff} offen offset:{j*1024} {cfg.nt}")
                if j == 3: e(f"s_add_u32 s{sKoff}, s{sKoff}, 32768")
            res.append(fk)
        for j in range(4):
            def fv(j=j, Vb=Vb, i=i):
                vq.issue(("V", i), f"buffer_load_dwordx4 v[{Vb+4*j}:{Vb+4*j+3}], v{vL16}, s[{SV}:{SV+3}], s{sVoff} offen offset:{j*1024} {cfg.nt}")
                if j == 3: e(f"s_add_u32 s{sVoff}, s{sVoff}, 32768")
            res.append(fv)
        return res
    early = tile_loads(0) + tile_loads(1)
    for _ in range(cfg.pre_k): early.pop(0)()
    for j in range(20):
        e(f"s_mov_b32 s{sT}, {j*32768}")
        vq.issue(("WQ", j), f"buffer_load_dwordx4 v[{W+4*j}:{W+4*j+3}], v{vT5}, s[{SC}:{SC+3}], s{sT} offen {cfg.wflag}")
    def wave_sum(v, t1):
        e(f"v_add_f32_dpp v{v}, v{v}, v{v} quad_perm:[1,0,3,2] row_mask:0xf bank_mask:0xf")
        e(f"v_add_f32_dpp v{v}, v{v}, v{v} quad_perm:[2,3,0,1] row_mask:0xf bank_mask:0xf")
        e(f"v_add_f32_dpp v{v}, v{v}, v{v} row_half_mirror row_mask:0xf bank_mask:0xf")
        e(f"v_add_f32_dpp v{v}, v{v}, v{v} row_mirror row_mask:0xf bank_mask:0xf")
        e(f"v_mov_b32 v{t1}, v{v}")
        e(f"v_permlane16_swap_b32 v{v}, v{t1}")
        e(f"v_add_f32 v{v}, v{v}, v{t1}")
        e(f"v_mov_b32 v{t1}, v{v}")
        e(f"v_permlane32_swap_b32 v{v}, v{t1}")
        e(f"v_add_f32 v{v}, v{v}, v{t1}")
    def unpack_xr():
        for i in range(5):
            e(f"v_lshlrev_b32 v{XU+2*i}, 16, v{XR+i}")
            e(f"v_and_b32 v{XU+2*i+1}, 0xffff0000, v{XR+i}")
    def layernorm(norm_regs):
        s_, t1, mean, mb = vT0, vT1, vT2, vT3
        e(f"v_add_f32 v{s_}, v{XU}, v{XU+1}")
        e(f"v_add_f32 v{t1}, v{XU+2}, v{XU+3}")
        e(f"v_add_f32 v{mean}, v{XU+4}, v{XU+5}")
        e(f"v_add_f32 v{mb}, v{XU+6}, v{XU+7}")
        e(f"v_add_f32 v{s_}, v{s_}, v{t1}")
        e(f"v_add_f32 v{t1}, v{XU+8}, v{XU+9}")
        e(f"v_add_f32 v{mean}, v{mean}, v{mb}")
        e(f"v_add_f32 v{s_}, v{s_}, v{t1}")
        e(f"v_add_f32 v{s_}, v{s_}, v{mean}")
        wave_sum(s_, t1)
        e(f"v_mul_f32 v{mean}, {f32(1.0/640)}, v{s_}")
        e(f"v_cvt_pk_bf16_f32 v{mb}, 0, v{mean}")
        e(f"v_sub_f32 v{t1}, v{XU}, v{mean}")
        e(f"v_mul_f32 v{s_}, v{t1}, v{t1}")
        for i in range(1, 10):
            e(f"v_sub_f32 v{t1}, v{XU+i}, v{mean}")
            e(f"v_fmac_f32 v{s_}, v{t1}, v{t1}")
        wave_sum(s_, t1)
        e(f"v_mul_f32 v{s_}, {f32(1.0/640)}, v{s_}")
        e(f"v_cvt_pk_bf16_f32 v{s_}, 0, v{s_}")
        e(f"v_add_f32 v{s_}, {f32(1e-5)}, v{s_}")
        e(f"v_cvt_pk_bf16_f32 v{s_}, 0, v{s_}")
        e(f"v_sqrt_f32 v{s_}, v{s_}")
        e(f"v_cvt_pk_bf16_f32 v{s_}, 0, v{s_}")
        e(f"v_rcp_f32 v{s_}, v{s_}")
        for r in norm_regs: e(f"v_sub_f32 v{r}, v{r}, v{mb}")
        for r in norm_regs: e(f"v_cvt_pk_bf16_f32 v{r}, 0, v{r}")
        for r in norm_regs: e(f"v_mul_f32 v{r}, v{r}, v{s_}")
    e(f"s_cmp_lg_u32 s{sW}, 0")
    e(f"s_cbranch_scc1 L_noln")
    e(f"s_waitcnt vmcnt({20 + cfg.pre_k})")
    unpack_xr()
    layernorm([XU+i for i in range(10)])
    for i in range(5):
        e(f"v_cvt_pk_bf16_f32 v{XR+i}, v{XU+2*i}, v{XU+2*i+1}")
    e(f"v_lshlrev_b32 v{vT3}, 2, v{vLane}")
    e(f"ds_write_b128 v{vL16}, v[{XR}:{XR+3}] offset:{L_XN}")
    e(f"ds_write_b32 v{vT3}, v{XR+4} offset:{L_XN+1024}")
    e(f"s_waitcnt lgkmcnt(0)")
    A.label("L_noln"); A.hist = []
    stamp(1)
    e(f"s_barrier")
    e(f"s_mul_i32 s{sTmp}, s{sWr}, 80")
    e(f"v_lshl_add_u32 v{vT1}, v{vC}, 2, v{vR}")
    e(f"v_add_u32 v{vT2}, s{sTmp}, v{vT1}")
    e(f"v_lshlrev_b32 v{vT2}, 1, v{vT2}")
    e(f"ds_read_u16 v{XL0}, v{vT2} offset:{L_XN}")
    e(f"ds_read_u16 v{XL1}, v{vT2} offset:{L_XN+128}")
    for i in range(8):
        e(f"v_mov_b32 v{ACCQ+i}, 0")
    e(f"s_waitcnt lgkmcnt(0)")
    e(f"v_lshlrev_b32 v{XH0}, 16, v{XL0}")
    e(f"v_lshlrev_b32 v{XH1}, 16, v{XL1}")
    for j in range(20):
        vq.wait(("WQ", j))
        xl, xh, jj = (XL0, XH0, j) if j < 16 else (XL1, XH1, j - 16)
        for d in range(4):
            e(f"v_dot2c_f32_bf16_dpp v{ACCQ+2*d}, v{xl}, v{W+4*j+d} {bc(jj)}")
            e(f"v_dot2c_f32_bf16_dpp v{ACCQ+2*d+1}, v{xh}, v{W+4*j+d} {bc(jj)}")
        nleft = cfg.early - cfg.pre_k
        want = min(nleft, (j + 1) * nleft // 20 + 0)
        while early and (16 - len(early)) - cfg.pre_k < want: early.pop(0)()
    def reduce8(a, out0, out1):
        for p in range(4): e(f"v_permlane32_swap_b32 v{a+2*p}, v{a+2*p+1}")
        for p in range(4): e(f"v_add_f32 v{a+2*p}, v{a+2*p}, v{a+2*p+1}")
        e(f"v_permlane16_swap_b32 v{a}, v{a+2}")
        e(f"v_permlane16_swap_b32 v{a+4}, v{a+6}")
        e(f"v_add_f32 v{out0}, v{a}, v{a+2}")
        e(f"v_add_f32 v{out1}, v{a+4}, v{a+6}")
    def perm_reg(dst, t):
        e(f"v_and_b32 v{dst}, 1, v{vR}")
        e(f"v_lshlrev_b32 v{dst}, 1, v{dst}")
        e(f"v_lshrrev_b32 v{t}, 1, v{vR}")
        e(f"v_or_b32 v{dst}, v{dst}, v{t}")
    perm_reg(vT4, vT1)
    e(f"v_lshl_add_u32 v{vT0}, v{vC}, 3, v{vT4}")
    e(f"v_lshlrev_b32 v{vColAddr}, 2, v{vT0}")
    reduce8(ACCQ, vT2, vT3)
    e(f"s_lshl_b32 s{sT}, s{sW}, 9")
    e(f"v_add_u32 v{vT0}, s{sT}, v{vColAddr}")
    e(f"ds_write2_b32 v{vT0}, v{vT2}, v{vT3} offset0:{L_QP//4} offset1:{L_QP//4+4}")
    e(f"s_waitcnt lgkmcnt(0)")
    e(f"s_barrier")
    e(f"s_cmp_ge_u32 s{sW}, 2")
    e(f"s_cbranch_scc1 L_s2done")
    e(f"v_lshlrev_b32 v{vT0}, 2, v0")
    for w in range(8):
        e(f"ds_read_b32 v{XU+w}, v{vT0} offset:{L_QP + w*512}")
    e(f"s_waitcnt lgkmcnt(0)")
    e(f"v_add_f32 v{XU}, v{XU}, v{XU+1}")
    e(f"v_add_f32 v{XU+2}, v{XU+2}, v{XU+3}")
    e(f"v_add_f32 v{XU+4}, v{XU+4}, v{XU+5}")
    e(f"v_add_f32 v{XU+6}, v{XU+6}, v{XU+7}")
    e(f"v_add_f32 v{XU}, v{XU}, v{XU+2}")
    e(f"v_add_f32 v{XU+4}, v{XU+4}, v{XU+6}")
    e(f"v_add_f32 v{XU}, v{XU}, v{XU+4}")
    e(f"v_cvt_pk_bf16_f32 v{XU}, v{XU}, 0")
    e(f"v_lshlrev_b32 v{vT0}, 1, v0")
    e(f"ds_write_b16 v{vT0}, v{XU} offset:{L_QB}")
    e(f"s_waitcnt lgkmcnt(0)")
    A.label("L_s2done"); A.hist = []
    while early: early.pop(0)()
    e(f"s_barrier")
    e(f"v_lshlrev_b32 v{vT0}, 4, v{vC}")
    e(f"ds_read_b128 v[{Q}:{Q+3}], v{vT0} offset:{L_QB}")
    for i in range(8): e(f"v_mov_b32 v{ACC+i}, 0")
    e(f"v_mov_b32 v{vM}, 0xff800000")
    e(f"v_mov_b32 v{vL}, 0")
    e(f"s_waitcnt lgkmcnt(0)")
    stamp(2)

    def tile(i, extras_mid=None, extras_end=None):
        Kb, Vb = (KA, VA) if i % 2 == 0 else (KB, VB)
        nxt = tile_loads(i + 2) if i + 2 < 32 else []
        vq.wait(("K", i))
        for d in range(4):
            for j in range(4):
                src2 = "0" if d == 0 else f"v{S+j}"
                e(f"v_dot2_f32_bf16 v{S+j}, v{Kb+4*j+d}, v{Q+d}, {src2}")
        for f in nxt[:4]: f()
        if extras_mid: extras_mid()
        m = "row_mask:0xf"
        e(f"v_add_f32_dpp v{vU0}, v{S}, v{S} row_mirror {m} bank_mask:0x3")
        e(f"v_add_f32_dpp v{vU1}, v{S+1}, v{S+1} row_mirror {m} bank_mask:0x3")
        e(f"v_add_f32_dpp v{vU0}, v{S+2}, v{S+2} row_mirror {m} bank_mask:0xc")
        e(f"v_add_f32_dpp v{vU1}, v{S+3}, v{S+3} row_mirror {m} bank_mask:0xc")
        e(f"v_add_f32_dpp v{vTt}, v{vU0}, v{vU0} row_half_mirror {m} bank_mask:0x5")
        e(f"v_add_f32_dpp v{vTt}, v{vU1}, v{vU1} row_half_mirror {m} bank_mask:0xa")
        e(f"v_add_f32_dpp v{vTt}, v{vTt}, v{vTt} quad_perm:[1,0,3,2] {m} bank_mask:0xf")
        e(f"v_add_f32_dpp v{vTt}, v{vTt}, v{vTt} quad_perm:[2,3,0,1] {m} bank_mask:0xf")
        e(f"v_cvt_pk_bf16_f32 v{vTt}, 0, v{vTt}")
        e(f"v_mul_f32 v{vTt}, s{sScale}, v{vTt}")
        e(f"v_cvt_pk_bf16_f32 v{vTt}, 0, v{vTt}")
        e(f"v_max_f32_dpp v{vMn}, v{vTt}, v{vTt} row_half_mirror {m} bank_mask:0xf")
        e(f"v_max_f32_dpp v{vMn}, v{vMn}, v{vMn} row_mirror {m} bank_mask:0xf")
        e(f"v_max_f32 v{vMn}, v{vMn}, v{vM}")
        e(f"v_sub_f32 v{vAl}, v{vM}, v{vMn}")
        e(f"v_sub_f32 v{vE}, v{vTt}, v{vMn}")
        e(f"v_mul_f32 v{vAl}, s{sL2E}, v{vAl}")
        e(f"v_mul_f32 v{vE}, s{sL2E}, v{vE}")
        e(f"v_exp_f32 v{vAl}, v{vAl}")
        e(f"v_exp_f32 v{vE}, v{vE}")
        e(f"v_mov_b32 v{vM}, v{vMn}")
        e(f"v_fma_f32 v{vL}, v{vL}, v{vAl}, v{vE}")
        e(f"v_cvt_pk_bf16_f32 v{vPL}, v{vE}, 0")
        e(f"v_cvt_pk_bf16_f32 v{vPH}, 0, v{vE}")
        for p in range(4):
            e(f"v_pk_mul_f32 v[{ACC+2*p}:{ACC+2*p+1}], v[{ACC+2*p}:{ACC+2*p+1}], v[{vAl}:{vAl+1}] op_sel_hi:[1,0]")
        vq.wait(("V", i))
        for j in range(4):
            for d in range(4):
                e(f"v_dot2c_f32_bf16_dpp v{ACC+2*d}, v{vPL}, v{Vb+4*j+d} {bc(4*j)}")
                e(f"v_dot2c_f32_bf16_dpp v{ACC+2*d+1}, v{vPH}, v{Vb+4*j+d} {bc(4*j)}")
        for f in nxt[4:]: f()
        if extras_end: extras_end()

    def ln2_and_setup():
        e(f"v_lshlrev_b32 v{vT3}, 2, v{vLane}")
        e(f"ds_read_b128 v[{XR}:{XR+3}], v{vL16} offset:{L_XN}")
        e(f"ds_read_b32 v{XR+4}, v{vT3} offset:{L_XN+1024}")
        e(f"s_waitcnt lgkmcnt(0)")
        unpack_xr()
        e(f"v_mov_b32 v{vOwn0}, v{XH0}")
        e(f"v_mov_b32 v{vOwn1}, v{XH1}")
        layernorm([vOwn0, vOwn1])
        e(f"v_cvt_pk_bf16_f32 v{YH0}, 0, v{vOwn0}")
        e(f"v_cvt_pk_bf16_f32 v{YH1}, 0, v{vOwn1}")
        e(f"v_lshrrev_b32 v{YL0}, 16, v{YH0}")
        e(f"v_lshrrev_b32 v{YL1}, 16, v{YH1}")
        for i in range(4): e(f"v_mov_b32 v{ACCH+i}, 0")
        e(f"s_mul_i32 s{sTmp2}, s{sS}, {0 if cfg.exp == 'hot' else 108}")
        srd(SD, pW1, sTmp2, 640*3456, size_sub=sTmp2)
        srd(SBq, pB1, sTmp2, 3456, size_sub=sTmp2)
        e(f"s_mul_i32 s{sT}, s{sS}, {0 if cfg.exp == 'hot' else 54*1280}")
        srd(SE, pW2, sT, 1728*1280, size_sub=sT)
        e(f"s_mul_i32 s{sT}, s{sH}, {0 if cfg.exp == 'hot' else 128*1280}")
        srd(SC, pWO, sT, 4096*1280, size_sub=sT)
        e(f"s_mul_i32 s{sTmp}, s{sWr}, 80")
        e(f"v_add_u32 v{vT0}, s{sTmp}, v{vR}")
        e(f"s_mov_b32 s{sT}, 3456")
        e(f"v_mul_lo_u32 v{vW1off}, v{vT0}, s{sT}")
        e(f"v_lshl_add_u32 v{vW1off}, v{vC}, 3, v{vW1off}")
        e(f"s_mul_i32 s{sTmp}, s{sW}, 7")
        e(f"v_add_u32 v{vT0}, s{sTmp}, v{vR}")
        e(f"s_mov_b32 s{sT}, 1280")
        e(f"v_mul_lo_u32 v{vW2off}, v{vT0}, s{sT}")
        e(f"v_lshl_add_u32 v{vW2off}, v{vC}, 4, v{vW2off}")
        e(f"s_lshl_b32 s{sTmp}, s{sW}, 4")
        e(f"v_add_u32 v{vT0}, s{sTmp}, v{vR}")
        e(f"v_mul_lo_u32 v{vWOoff}, v{vT0}, s{sT}")
        e(f"v_lshl_add_u32 v{vWOoff}, v{vC}, 4, v{vWOoff}")
        e(f"v_lshlrev_b32 v{vT4}, 1, v{vLane}")
        vq.issue("B1", f"buffer_load_ushort v{vB1}, v{vT4}, s[{SBq}:{SBq+3}], 0 offen")
    def w1_load(j):
        if cfg.exp == 'skip': return
        e(f"s_mov_b32 s{sT}, {j*13824}")
        vq.issue(("W1", j), f"buffer_load_dwordx2 v[{W1+2*j}:{W1+2*j+1}], v{vW1off}, s[{SD}:{SD+3}], s{sT} offen {cfg.wflag}")
    def w1_fma(j):
        vq.wait(("W1", j))
        yl, yh, jj = (YL0, YH0, j) if j < 16 else (YL1, YH1, j - 16)
        for d in range(2):
            e(f"v_dot2c_f32_bf16_dpp v{ACCH+2*d}, v{yl}, v{W1+2*j+d} {bc(jj)}")
            e(f"v_dot2c_f32_bf16_dpp v{ACCH+2*d+1}, v{yh}, v{W1+2*j+d} {bc(jj)}")
    def h_reduce():
        e(f"v_permlane32_swap_b32 v{ACCH}, v{ACCH+1}")
        e(f"v_permlane32_swap_b32 v{ACCH+2}, v{ACCH+3}")
        e(f"v_add_f32 v{ACCH}, v{ACCH}, v{ACCH+1}")
        e(f"v_add_f32 v{ACCH+2}, v{ACCH+2}, v{ACCH+3}")
        e(f"v_permlane16_swap_b32 v{ACCH}, v{ACCH+2}")
        e(f"v_add_f32 v{ACCH}, v{ACCH}, v{ACCH+2}")
        perm_reg(vT4, vT1)
        e(f"v_lshl_add_u32 v{vT0}, v{vC}, 2, v{vT4}")
        e(f"v_lshlrev_b32 v{vT0}, 2, v{vT0}")
        e(f"s_lshl_b32 s{sT}, s{sW}, 8")
        e(f"v_add_u32 v{vT0}, s{sT}, v{vT0}")
        e(f"ds_write_b32 v{vT0}, v{ACCH} offset:{L_HP}")
        vq.wait("B1")
        e(f"s_waitcnt lgkmcnt(0)")
        e(f"s_barrier")
        e(f"s_cmp_lg_u32 s{sW}, 2")
        e(f"s_cbranch_scc1 L_noh")
        T = 50
        e(f"v_lshlrev_b32 v{vT0}, 2, v{vLane}")
        for w in range(8):
            e(f"ds_read_b32 v{T+w}, v{vT0} offset:{L_HP + w*256}")
        e(f"s_waitcnt lgkmcnt(0)")
        for w in range(1, 8): e(f"v_add_f32 v{T}, v{T}, v{T+w}")
        x_ = T
        e(f"v_cvt_pk_bf16_f32 v{x_}, 0, v{x_}")
        e(f"v_lshlrev_b32 v{vB1}, 16, v{vB1}")
        e(f"v_add_f32 v{x_}, v{x_}, v{vB1}")
        e(f"v_cvt_pk_bf16_f32 v{x_}, 0, v{x_}")
        e(f"v_mul_f32 v{vT1}, v{x_}, v{x_}")
        e(f"v_mul_f32 v{vT1}, v{vT1}, v{x_}")
        e(f"v_mov_b32 v{vT2}, {f32(0.044715)}")
        e(f"v_fma_f32 v{vT1}, v{vT1}, v{vT2}, v{x_}")
        e(f"v_mul_f32 v{vT1}, {f32(-2.0*math.sqrt(2.0/math.pi)*1.4426950408889634)}, v{vT1}")
        e(f"v_exp_f32 v{vT1}, v{vT1}")
        e(f"v_add_f32 v{vT1}, 1.0, v{vT1}")
        e(f"v_rcp_f32 v{vT1}, v{vT1}")
        e(f"v_mul_f32 v{x_}, v{x_}, v{vT1}")
        e(f"v_cvt_pk_bf16_f32 v{x_}, v{x_}, 0")
        e(f"v_cmp_gt_u32 vcc, 54, v{vLane}")
        e(f"v_cndmask_b32 v{x_}, 0, v{x_}, vcc")
        e(f"v_lshlrev_b32 v{vT0}, 1, v{vLane}")
        e(f"ds_write_b16 v{vT0}, v{x_} offset:{L_HB}")
        e(f"s_waitcnt lgkmcnt(0)")
        A.label("L_noh"); A.hist = []
    def h_read():
        e(f"s_barrier")
        e(f"s_mul_i32 s{sTmp}, s{sW}, 7")
        e(f"v_lshl_add_u32 v{vT1}, v{vC}, 2, v{vR}")
        e(f"v_add_u32 v{vT2}, s{sTmp}, v{vT1}")
        e(f"v_and_b32 v{vT2}, 63, v{vT2}")
        e(f"v_lshlrev_b32 v{vT2}, 1, v{vT2}")
        e(f"ds_read_u16 v{vHL}, v{vT2} offset:{L_HB}")
        e(f"v_cmp_gt_u32 vcc, 7, v{vT1}")
        e(f"s_waitcnt lgkmcnt(0)")
        e(f"v_cndmask_b32 v{vHL}, 0, v{vHL}, vcc")
        e(f"v_lshlrev_b32 v{vHH}, 16, v{vHL}")
    def w2_load(blk):
        if cfg.exp == 'skip': return
        for g in range(2):
            r = W1 + (blk*2 + g)*4
            e(f"s_mov_b32 s{sT}, {g*5120}")
            vq.issue(("W2", blk), f"buffer_load_dwordx4 v[{r}:{r+3}], v{vW2off}, s[{SE}:{SE+3}], s{sT} offen offset:{blk*256} {cfg.wflag}")
    def w2_fma(blk):
        for i in range(8): e(f"v_mov_b32 v{ACC2+i}, 0")
        vq.wait(("W2", blk))
        for g in range(2):
            r = W1 + (blk*2 + g)*4
            for d in range(4):
                e(f"v_dot2c_f32_bf16_dpp v{ACC2+2*d}, v{vHL}, v{r+d} {bc(g)}")
                e(f"v_dot2c_f32_bf16_dpp v{ACC2+2*d+1}, v{vHH}, v{r+d} {bc(g)}")
        reduce8(ACC2, MLPS + 2*blk, MLPS + 2*blk + 1)
    def wo_load(n):
        if cfg.exp == 'skip': return
        g, blk = divmod(n, 5)
        r = W + n*4
        e(f"s_mov_b32 s{sT}, {g*5120}")
        vq.issue(("WO", n), f"buffer_load_dwordx4 v[{r}:{r+3}], v{vWOoff}, s[{SC}:{SC+3}], s{sT} offen offset:{blk*256} {cfg.wflag}")

    mid = {i: [] for i in range(32)}; end = {i: [] for i in range(32)}
    end[0].append(ln2_and_setup)
    t0 = cfg.w1_start
    for k in range(10):
        mid[t0 + k].append(lambda k=k: (w1_load(2*k), w1_load(2*k+1)))
        end[t0 + k + 2].append(lambda k=k: (w1_fma(2*k), w1_fma(2*k+1)))
    th = t0 + 12
    end[th].append(h_reduce)
    end[th+1].append(h_read)
    for blk in range(5):
        mid[th - 1 + blk + 2].append(lambda blk=blk: w2_load(blk))
        end[th + 3 + blk].append(lambda blk=blk: w2_fma(blk))
    for n in range(20):
        mid[cfg.wo_start + n].append(lambda n=n: wo_load(n))
    for i in range(32):
        tile(i, (lambda i=i: [f() for f in mid[i]]), (lambda i=i: [f() for f in end[i]]))
        if i == 3: stamp(3)
    stamp(4)
    m = "row_mask:0xf bank_mask:0xf"
    e(f"v_add_f32_dpp v{vL}, v{vL}, v{vL} row_half_mirror {m}")
    e(f"v_mov_b32 v{vT0}, v{vM}")
    e(f"v_mov_b32 v{vT1}, v{vM}")
    e(f"v_add_f32_dpp v{vL}, v{vL}, v{vL} row_mirror {m}")
    e(f"v_permlane16_swap_b32 v{vT0}, v{vT1}")
    e(f"v_max_f32 v{vT0}, v{vT0}, v{vT1}")
    e(f"v_mov_b32 v{vT1}, v{vT0}")
    e(f"v_permlane32_swap_b32 v{vT0}, v{vT1}")
    e(f"v_max_f32 v{vMn}, v{vT0}, v{vT1}")
    e(f"v_sub_f32 v{vAl}, v{vM}, v{vMn}")
    e(f"v_mul_f32 v{vAl}, s{sL2E}, v{vAl}")
    e(f"v_exp_f32 v{vAl}, v{vAl}")
    e(f"v_mul_f32 v{vL}, v{vL}, v{vAl}")
    for p in range(4):
        e(f"v_pk_mul_f32 v[{ACC+2*p}:{ACC+2*p+1}], v[{ACC+2*p}:{ACC+2*p+1}], v[{vAl}:{vAl+1}] op_sel_hi:[1,0]")
    e(f"v_mov_b32 v{vT1}, v{vL}")
    e(f"v_permlane16_swap_b32 v{vL}, v{vT1}")
    e(f"v_add_f32 v{vL}, v{vL}, v{vT1}")
    e(f"v_mov_b32 v{vT1}, v{vL}")
    e(f"v_permlane32_swap_b32 v{vL}, v{vT1}")
    e(f"v_add_f32 v{vAl2}, v{vL}, v{vT1}")
    reduce8(ACC, vT2, vT3)
    e(f"s_lshl_b32 s{sT}, s{sW}, 9")
    e(f"v_add_u32 v{vT0}, s{sT}, v{vColAddr}")
    e(f"v_add_u32 v{vT0}, {L_OP}, v{vT0}")
    e(f"ds_write2_b32 v{vT0}, v{vT2}, v{vT3} offset0:0 offset1:4")
    e(f"v_mov_b32 v{vAl}, v{vMn}")
    e(f"s_lshl_b32 s{sT}, s{sW}, 3")
    e(f"v_mov_b32 v{vT0}, s{sT}")
    e(f"ds_write_b64 v{vT0}, v[{vAl}:{vAl+1}] offset:{L_ML}")
    for i in range(40): e(f"v_mov_b32 v{ACCO+i}, 0")
    e(f"s_lshl_b32 s{sT}, s{sW}, 4")
    e(f"v_lshl_add_u32 v{vT1}, v{vC}, 2, v{vR}")
    e(f"v_add_u32 v{vT1}, s{sT}, v{vT1}")
    e(f"v_and_b32 v{vT1}, 127, v{vT1}")
    e(f"v_lshlrev_b32 v{vT1}, 2, v{vT1}")
    e(f"v_mov_b32 v{vT0}, 0")
    vq.drain()
    e(f"s_waitcnt lgkmcnt(0)")
    e(f"s_barrier")
    ML = 104; OP = 120
    for i in range(4):
        e(f"ds_read_b128 v[{ML+4*i}:{ML+4*i+3}], v{vT0} offset:{L_ML + 16*i}")
    for w in range(8):
        e(f"ds_read_b32 v{OP+w}, v{vT1} offset:{L_OP + w*512}")
    e(f"s_waitcnt lgkmcnt(8)")
    e(f"v_max3_f32 v{vMn}, v{ML}, v{ML+2}, v{ML+4}")
    e(f"v_max3_f32 v{vT2}, v{ML+6}, v{ML+8}, v{ML+10}")
    e(f"v_max3_f32 v{vMn}, v{vMn}, v{ML+12}, v{ML+14}")
    e(f"v_max_f32 v{vMn}, v{vMn}, v{vT2}")
    for w in range(8): e(f"v_sub_f32 v{ML+2*w}, v{ML+2*w}, v{vMn}")
    for w in range(8): e(f"v_mul_f32 v{ML+2*w}, s{sL2E}, v{ML+2*w}")
    for w in range(8): e(f"v_exp_f32 v{ML+2*w}, v{ML+2*w}")
    e(f"s_waitcnt lgkmcnt(0)")
    e(f"v_mul_f32 v{vL}, v{ML}, v{ML+1}")
    e(f"v_mul_f32 v{vE}, v{ML}, v{OP}")
    for w in range(1, 8):
        e(f"v_fmac_f32 v{vL}, v{ML+2*w}, v{ML+2*w+1}")
        e(f"v_fmac_f32 v{vE}, v{ML+2*w}, v{OP+w}")
    e(f"v_rcp_f32 v{vL}, v{vL}")
    e(f"v_mul_f32 v{vE}, v{vE}, v{vL}")
    e(f"v_cvt_pk_bf16_f32 v{vPL}, v{vE}, 0")
    e(f"v_cvt_pk_bf16_f32 v{vPH}, 0, v{vE}")
    RES = 104
    for blk in range(5):
        for g in range(4):
            r = W + (g*5 + blk)*4
            for d in range(4):
                e(f"v_dot2c_f32_bf16_dpp v{ACCO+8*blk+2*d}, v{vPL}, v{r+d} {bc(g)}")
                e(f"v_dot2c_f32_bf16_dpp v{ACCO+8*blk+2*d+1}, v{vPH}, v{r+d} {bc(g)}")
        if blk > 0:
            reduce8(ACCO + 8*(blk-1), RES + 2*(blk-1), RES + 2*(blk-1) + 1)
    reduce8(ACCO + 32, RES + 8, RES + 9)
    for i in range(10): e(f"v_add_f32 v{RES+i}, v{RES+i}, v{MLPS+i}")
    e(f"s_mul_i32 s{sT}, s{sW}, 2560")
    e(f"v_add_u32 v{vT0}, s{sT}, v{vColAddr}")
    e(f"v_add_u32 v{vT0}, {L_OUT}, v{vT0}")
    for blk in range(5):
        e(f"ds_write_b32 v{vT0}, v{RES+2*blk} offset:{blk*512}")
        e(f"ds_write_b32 v{vT0}, v{RES+2*blk+1} offset:{blk*512+16}")
    e(f"s_waitcnt lgkmcnt(0)")
    e(f"s_barrier")
    stamp(5)
    e(f"s_cmp_ge_u32 s{sW}, 3")
    e(f"s_cbranch_scc1 L_fin")
    e(f"v_cmp_gt_u32 vcc, 160, v0")
    e(f"s_and_saveexec_b64 s[{SAVE}:{SAVE+1}], vcc")
    e(f"v_lshlrev_b32 v{vT0}, 4, v0")
    P = 64
    for w in range(8):
        e(f"ds_read_b128 v[{P+4*w}:{P+4*w+3}], v{vT0} offset:{L_OUT + w*2560}")
    e(f"s_mul_i32 s{sT}, s2, 2560")
    srd(SA, pWS, sT, 2560)
    e(f"s_waitcnt lgkmcnt(0)")
    for step in (1, 2, 4):
        for w in range(0, 8, 2*step):
            for k in range(4):
                e(f"v_add_f32 v{P+4*w+k}, v{P+4*w+k}, v{P+4*(w+step)+k}")
    e(f"buffer_store_dwordx4 v[{P}:{P+3}], v{vT0}, s[{SA}:{SA+3}], 0 offen sc0 sc1")
    e(f"s_mul_i32 s{sT}, s{sB}, 3")
    e(f"s_add_u32 s{sT}, s{sT}, s{sW}")
    e(f"s_lshl_b32 s{sT}, s{sT}, 2")
    e(f"s_mov_b64 s[{SAVE+2}:{SAVE+3}], exec")
    e(f"s_waitcnt vmcnt(0)")
    e(f"s_mov_b64 exec, 1")
    e(f"v_mov_b32 v{vT1}, s{sT}")
    e(f"v_mov_b32 v{vT2}, 1")
    e(f"global_atomic_add v{vT3}, v{vT1}, v{vT2}, s[{pDBG}:{pDBG+1}] sc0 sc1")
    e(f"s_waitcnt vmcnt(0)")
    e(f"v_readfirstlane_b32 s{sT}, v{vT3}")
    e(f"s_mov_b64 exec, s[{SAVE+2}:{SAVE+3}]")
    e(f"s_cmp_lg_u32 s{sT}, 31")
    e(f"s_cbranch_scc1 L_fin")
    e(f"s_mul_i32 s{sT}, s{sB}, {32*2560}")
    srd(SA, pWS, sT, 32*2560)
    for hh in range(32):
        r = 96 + 4*hh
        e(f"s_mov_b32 s{sT}, {hh*2560}")
        e(f"buffer_load_dwordx4 v[{r}:{r+3}], v{vT0}, s[{SA}:{SA+3}], s{sT} offen sc0 sc1")
    e(f"s_mul_i32 s{sT}, s{sB}, 1280")
    srd(SBq, pX, sT, 1280)
    srd(SC, pB2, None, 1280)
    srd(SD, pOUT, sT, 1280)
    e(f"v_lshlrev_b32 v{vT1}, 3, v0")
    e(f"buffer_load_dwordx2 v[{P}:{P+1}], v{vT1}, s[{SBq}:{SBq+3}], 0 offen")
    e(f"buffer_load_dwordx2 v[{P+2}:{P+3}], v{vT1}, s[{SC}:{SC+3}], 0 offen")
    for hh in range(1, 32):
        e(f"s_waitcnt vmcnt({2 + 31 - hh})")
        for k in range(4):
            e(f"v_add_f32 v{96+k}, v{96+k}, v{96+4*hh+k}")
    e(f"s_waitcnt vmcnt(0)")
    for k in range(4):
        src = P + k//2; src2 = P + 2 + k//2
        if k % 2 == 0:
            e(f"v_lshlrev_b32 v{vT2}, 16, v{src}")
            e(f"v_lshlrev_b32 v{vT3}, 16, v{src2}")
        else:
            e(f"v_and_b32 v{vT2}, 0xffff0000, v{src}")
            e(f"v_and_b32 v{vT3}, 0xffff0000, v{src2}")
        e(f"v_add_f32 v{96+k}, v{96+k}, v{vT3}")
        e(f"v_add_f32 v{96+k}, v{96+k}, v{vT2}")
    e(f"v_cvt_pk_bf16_f32 v{P+4}, v96, v97")
    e(f"v_cvt_pk_bf16_f32 v{P+5}, v98, v99")
    e(f"buffer_store_dwordx2 v[{P+4}:{P+5}], v{vT1}, s[{SD}:{SD+3}], 0 offen")
    A.label("L_fin"); A.hist = []
    if cfg.stamps:
        e("s_mov_b64 exec, -1")
        stamp(6)
        e("s_waitcnt lgkmcnt(0)")
        e(f"s_lshl_b32 s{sT}, s2, 3")
        e(f"s_add_u32 s{sT}, s{sT}, s{sW}")
        e(f"s_lshl_b32 s{sT}, s{sT}, 6")
        e(f"s_add_u32 s{sT}, s{sT}, {1<<20}")
        for i in range(14): e(f"v_mov_b32 v{64+i}, s{80+i}")
        e(f"s_getreg_b32 s{sTmp}, hwreg(HW_REG_XCC_ID)")
        e(f"v_mov_b32 v78, s{sTmp}")
        e(f"v_mov_b32 v79, 0")
        e(f"v_mov_b32 v{vT0}, s{sT}")
        e("s_mov_b64 exec, 1")
        for i in range(4):
            e(f"global_store_dwordx4 v{vT0}, v[{64+4*i}:{67+4*i}], s[{pWS}:{pWS+1}] offset:{16*i}")
        e("s_waitcnt vmcnt(0)")
    A.label("L_end")
    body = A.text()
    hdr = HDR + f"; @launch grid=(256,1,1) block=(512,1,1) lds={LDS_BYTES}\n"
    pre = f""".amdgcn_target "amdgcn-amd-amdhsa--gfx950"
.text
.globl {KN}
.p2align 8
.type {KN},@function
{KN}:
"""
    post = f"""  s_endpgm
.section .rodata,"a"
.p2align 6
.amdhsa_kernel {KN}
  .amdhsa_next_free_vgpr 256
  .amdhsa_next_free_sgpr 102
  .amdhsa_accum_offset 256
  .amdhsa_group_segment_fixed_size 0
  .amdhsa_kernarg_size 104
  .amdhsa_user_sgpr_count 2
  .amdhsa_user_sgpr_kernarg_segment_ptr 1
  .amdhsa_system_sgpr_workgroup_id_x 1
  .amdhsa_float_denorm_mode_32 3
.end_amdhsa_kernel
"""
    return hdr + pre + body + post

if __name__ == "__main__":
    class C(Cfg): pass
    for a in sys.argv[2:]:
        k, v = a.split("=")
        setattr(C, k, eval(v))
    open(sys.argv[1], "w").write(gen(C))
```

```python
import sys, math, struct
from asmlib import Asm

KN = "parallel_sum__gqa_block_cached__mixer_channel_mlp__decode_kernel"
HDR = open("parallel_sum__gqa_block_cached__mixer_channel_mlp__decode.s.ref").read().split("; Override launch")[0]

def f32(x):
    return "0x%08x" % struct.unpack("<I", struct.pack("<f", x))[0]

class Cfg:
    nt = "nt"
    wflag = ""
    stamps = False
    rot = True
    pre_k = 0
    early = 16
    w1_start = 1
    wo_start = 11
    mode = 'call'
    e1 = 4
    e2 = 4
    wo_sched = [1,1,1,1,1,0,0,1,2,2,2,2,2,2,2]
    fine = False
    exp = ''

class VQ:
    def __init__(self, A):
        self.q = []; self.A = A
    def issue(self, tag, text):
        self.A(text); self.q.append(tag)
        assert len(self.q) <= 63, len(self.q)
    def wait(self, tag):
        idx = [i for i, t in enumerate(self.q) if t == tag]
        if not idx: return
        i = idx[-1]
        n = len(self.q) - 1 - i
        self.A(f"s_waitcnt vmcnt({n})")
        self.q = self.q[i+1:]
    def drain(self):
        self.A("s_waitcnt vmcnt(0)"); self.q = []

def gen(cfg=Cfg):
    A = Asm(); e = A
    vq = VQ(A)
    vLane = 1; vL16 = 2; vR = 3; vC = 4
    vT0, vT1, vT2, vT3, vT4, vT5 = 5, 6, 7, 8, 9, 10
    vColAddr = 11
    Q = 12; ACC = 16; vM = 24; vL = 25; S = 26
    vU0, vU1, vTt = 30, 31, 32
    vMn, vAl, vAl2, vE, vPL, vPH = 33, 34, 35, 36, 37, 38
    vHL = 39; vHH = 63; vB1 = 62
    MLPS = 40
    XL0, XH0, XL1, XH1 = 40, 41, 42, 43
    YL0, YH0, YL1, YH1 = 44, 45, 46, 47
    XR = 26
    XU = 50
    vOwn0, vOwn1 = 60, 61
    ACCH = 50
    ACC2 = 50
    vW1off, vW2off, vWOoff = 58, 59, 60
    ACCQ = 16
    KA, VA, KB, VB = 64, 80, 96, 112
    W = 128; W1 = 208
    ACCO = 64
    sW = 3; sB = 4; sH = 5; sS = 6; sT = 7
    pX, pK, pV, pWQ, pWO, pBX, pW1, pB1 = 16, 18, 20, 22, 24, 26, 28, 30
    pW2, pB2, pOUT, pDBG = 32, 34, 36, 38
    pWS = 40
    SK, SV, SA, SBq, SC, SD, SE = 44, 48, 52, 56, 60, 64, 68
    sKoff = 72; sVoff = 73; sScale = 74; sL2E = 75; sTmp = 76; sTmp2 = 77; sWr = 78; sT2 = 79
    SAVE = 96
    L_QP = 0; L_HP = 4096; L_QB = 6144; L_HB = 6400; L_ML = 6528; L_OP = 6656; L_OUT = 10752
    L_XN = L_OUT + 20480
    LDS_BYTES = L_XN + 1536

    def srd(dst, ptr, off, size, size_sub=None):
        if off is None:
            e(f"s_mov_b32 s{dst}, s{ptr}")
            e(f"s_and_b32 s{dst+1}, s{ptr+1}, 0xffff")
        else:
            e(f"s_add_u32 s{dst}, s{ptr}, s{off}")
            e(f"s_addc_u32 s{dst+1}, s{ptr+1}, 0")
            e(f"s_and_b32 s{dst+1}, s{dst+1}, 0xffff")
        if size_sub is None: e(f"s_mov_b32 s{dst+2}, {size}")
        else: e(f"s_sub_u32 s{dst+2}, {size}, s{size_sub}")
        e(f"s_mov_b32 s{dst+3}, 0x20000")
    def stamp(i):
        if cfg.stamps: e(f"s_memrealtime s[{80+2*i}:{81+2*i}]")
    def bc(j): return f"row_newbcast:{j} row_mask:0xf bank_mask:0xf"

    e(f"s_cmp_ge_u32 s2, 256")
    e(f"s_cbranch_scc1 L_end")
    stamp(0)
    e(f"s_load_dwordx16 s[16:31], s[0:1], 0")
    e(f"s_load_dwordx8 s[32:39], s[0:1], 64")
    e(f"s_load_dwordx2 s[40:41], s[0:1], 96")
    e(f"v_and_b32 v{vLane}, 63, v0")
    e(f"v_lshrrev_b32 v{vT0}, 6, v0")
    e(f"v_readfirstlane_b32 s{sW}, v{vT0}")
    e(f"s_lshr_b32 s{sB}, s2, 5")
    e(f"s_and_b32 s{sH}, s2, 31")
    e(f"s_and_b32 s{sS}, s{sH}, 7")
    e(f"s_lshl_b32 s{sS}, s{sS}, 2")
    e(f"s_lshr_b32 s{sT}, s{sH}, 3")
    e(f"s_add_u32 s{sS}, s{sS}, s{sT}")
    e(f"v_lshlrev_b32 v{vL16}, 4, v{vLane}")
    e(f"v_lshrrev_b32 v{vR}, 4, v{vLane}")
    e(f"v_and_b32 v{vC}, 15, v{vLane}")
    e(f"s_mov_b32 s{sScale}, {f32(128**-0.5)}")
    e(f"s_mov_b32 s{sL2E}, {f32(1.4426950408889634)}")
    if cfg.rot:
        e(f"s_add_u32 s{sWr}, s{sW}, s{sB}")
        e(f"s_and_b32 s{sWr}, s{sWr}, 7")
    else:
        e(f"s_mov_b32 s{sWr}, s{sW}")
    e(f"s_mul_i32 s{sTmp}, s{sWr}, 80")
    e(f"v_add_u32 v{vT0}, s{sTmp}, v{vR}")
    e(f"v_lshlrev_b32 v{vT5}, 13, v{vT0}")
    e(f"v_lshl_add_u32 v{vT5}, v{vC}, 4, v{vT5}")
    e(f"v_lshlrev_b32 v{vT3}, 2, v{vLane}")
    e(f"s_lshl_b32 s{sKoff}, s{sW}, 12")
    e(f"s_mov_b32 s{sVoff}, s{sKoff}")
    e(f"s_waitcnt lgkmcnt(0)")
    e(f"s_lshl_b32 s{sT}, s{sH}, 8")
    srd(SC, pWQ, sT, 640*8192, size_sub=sT)
    e(f"s_lshl_b32 s{sT}, s2, 20")
    srd(SK, pK, sT, 1 << 20)
    srd(SV, pV, sT, 1 << 20)
    e(f"s_cmp_lg_u32 s{sW}, 0")
    e(f"s_cbranch_scc1 L_nox")
    e(f"s_mul_i32 s{sT}, s{sB}, 1280")
    srd(SA, pX, sT, 1280)
    e(f"buffer_load_dwordx4 v[{XR}:{XR+3}], v{vL16}, s[{SA}:{SA+3}], 0 offen")
    e(f"buffer_load_dword v{XR+4}, v{vT3}, s[{SA}:{SA+3}], 0 offen offset:1024")
    A.label("L_nox"); A.hist = []
    kstate = {"k": 0, "v": 0}
    def tile_loads(i):
        Kb, Vb = (KA, VA) if i % 2 == 0 else (KB, VB)
        res = []
        for j in range(4):
            def fk(j=j, Kb=Kb, i=i):
                vq.issue(("K", i), f"buffer_load_dwordx4 v[{Kb+4*j}:{Kb+4*j+3}], v{vL16}, s[{SK}:{SK+3}], s{sKoff} offen offset:{j*1024} {cfg.nt}")
                if j == 3: e(f"s_add_u32 s{sKoff}, s{sKoff}, 32768")
            res.append(fk)
        for j in range(4):
            def fv(j=j, Vb=Vb, i=i):
                vq.issue(("V", i), f"buffer_load_dwordx4 v[{Vb+4*j}:{Vb+4*j+3}], v{vL16}, s[{SV}:{SV+3}], s{sVoff} offen offset:{j*1024} {cfg.nt}")
                if j == 3: e(f"s_add_u32 s{sVoff}, s{sVoff}, 32768")
            res.append(fv)
        return res
    early = tile_loads(0) + tile_loads(1)
    for _ in range(cfg.pre_k): early.pop(0)()
    for j in range(20):
        e(f"s_mov_b32 s{sT}, {j*32768}")
        vq.issue(("WQ", j), f"buffer_load_dwordx4 v[{W+4*j}:{W+4*j+3}], v{vT5}, s[{SC}:{SC+3}], s{sT} offen {cfg.wflag}")
    def wave_sum(v, t1):
        e(f"v_add_f32_dpp v{v}, v{v}, v{v} quad_perm:[1,0,3,2] row_mask:0xf bank_mask:0xf")
        e(f"v_add_f32_dpp v{v}, v{v}, v{v} quad_perm:[2,3,0,1] row_mask:0xf bank_mask:0xf")
        e(f"v_add_f32_dpp v{v}, v{v}, v{v} row_half_mirror row_mask:0xf bank_mask:0xf")
        e(f"v_add_f32_dpp v{v}, v{v}, v{v} row_mirror row_mask:0xf bank_mask:0xf")
        e(f"v_mov_b32 v{t1}, v{v}")
        e(f"v_permlane16_swap_b32 v{v}, v{t1}")
        e(f"v_add_f32 v{v}, v{v}, v{t1}")
        e(f"v_mov_b32 v{t1}, v{v}")
        e(f"v_permlane32_swap_b32 v{v}, v{t1}")
        e(f"v_add_f32 v{v}, v{v}, v{t1}")
    def unpack_xr():
        for i in range(5):
            e(f"v_lshlrev_b32 v{XU+2*i}, 16, v{XR+i}")
            e(f"v_and_b32 v{XU+2*i+1}, 0xffff0000, v{XR+i}")
    def layernorm(norm_regs):
        s_, t1, mean, mb = vT0, vT1, vT2, vT3
        e(f"v_add_f32 v{s_}, v{XU}, v{XU+1}")
        e(f"v_add_f32 v{t1}, v{XU+2}, v{XU+3}")
        e(f"v_add_f32 v{mean}, v{XU+4}, v{XU+5}")
        e(f"v_add_f32 v{mb}, v{XU+6}, v{XU+7}")
        e(f"v_add_f32 v{s_}, v{s_}, v{t1}")
        e(f"v_add_f32 v{t1}, v{XU+8}, v{XU+9}")
        e(f"v_add_f32 v{mean}, v{mean}, v{mb}")
        e(f"v_add_f32 v{s_}, v{s_}, v{t1}")
        e(f"v_add_f32 v{s_}, v{s_}, v{mean}")
        wave_sum(s_, t1)
        e(f"v_mul_f32 v{mean}, {f32(1.0/640)}, v{s_}")
        e(f"v_cvt_pk_bf16_f32 v{mb}, 0, v{mean}")
        e(f"v_sub_f32 v{t1}, v{XU}, v{mean}")
        e(f"v_mul_f32 v{s_}, v{t1}, v{t1}")
        for i in range(1, 10):
            e(f"v_sub_f32 v{t1}, v{XU+i}, v{mean}")
            e(f"v_fmac_f32 v{s_}, v{t1}, v{t1}")
        wave_sum(s_, t1)
        e(f"v_mul_f32 v{s_}, {f32(1.0/640)}, v{s_}")
        e(f"v_cvt_pk_bf16_f32 v{s_}, 0, v{s_}")
        e(f"v_add_f32 v{s_}, {f32(1e-5)}, v{s_}")
        e(f"v_cvt_pk_bf16_f32 v{s_}, 0, v{s_}")
        e(f"v_sqrt_f32 v{s_}, v{s_}")
        e(f"v_cvt_pk_bf16_f32 v{s_}, 0, v{s_}")
        e(f"v_rcp_f32 v{s_}, v{s_}")
        for r in norm_regs: e(f"v_sub_f32 v{r}, v{r}, v{mb}")
        for r in norm_regs: e(f"v_cvt_pk_bf16_f32 v{r}, 0, v{r}")
        for r in norm_regs: e(f"v_mul_f32 v{r}, v{r}, v{s_}")
    e(f"s_cmp_lg_u32 s{sW}, 0")
    e(f"s_cbranch_scc1 L_noln")
    e(f"s_waitcnt vmcnt({20 + cfg.pre_k})")
    unpack_xr()
    layernorm([XU+i for i in range(10)])
    for i in range(5):
        e(f"v_cvt_pk_bf16_f32 v{XR+i}, v{XU+2*i}, v{XU+2*i+1}")
    e(f"v_lshlrev_b32 v{vT3}, 2, v{vLane}")
    e(f"ds_write_b128 v{vL16}, v[{XR}:{XR+3}] offset:{L_XN}")
    e(f"ds_write_b32 v{vT3}, v{XR+4} offset:{L_XN+1024}")
    e(f"s_waitcnt lgkmcnt(0)")
    A.label("L_noln"); A.hist = []
    stamp(1)
    e(f"s_barrier")
    e(f"s_mul_i32 s{sTmp}, s{sWr}, 80")
    e(f"v_lshl_add_u32 v{vT1}, v{vC}, 2, v{vR}")
    e(f"v_add_u32 v{vT2}, s{sTmp}, v{vT1}")
    e(f"v_lshlrev_b32 v{vT2}, 1, v{vT2}")
    e(f"ds_read_u16 v{XL0}, v{vT2} offset:{L_XN}")
    e(f"ds_read_u16 v{XL1}, v{vT2} offset:{L_XN+128}")
    for i in range(8):
        e(f"v_mov_b32 v{ACCQ+i}, 0")
    e(f"s_waitcnt lgkmcnt(0)")
    e(f"v_lshlrev_b32 v{XH0}, 16, v{XL0}")
    e(f"v_lshlrev_b32 v{XH1}, 16, v{XL1}")
    if cfg.fine: stamp(2)
    for _ in range(cfg.e1): early.pop(0)()
    for j in range(20):
        vq.wait(("WQ", j))
        xl, xh, jj = (XL0, XH0, j) if j < 16 else (XL1, XH1, j - 16)
        for d in range(4):
            e(f"v_dot2c_f32_bf16_dpp v{ACCQ+2*d}, v{xl}, v{W+4*j+d} {bc(jj)}")
            e(f"v_dot2c_f32_bf16_dpp v{ACCQ+2*d+1}, v{xh}, v{W+4*j+d} {bc(jj)}")
    if cfg.fine: stamp(3)
    def reduce8(a, out0, out1):
        for p in range(4): e(f"v_permlane32_swap_b32 v{a+2*p}, v{a+2*p+1}")
        for p in range(4): e(f"v_add_f32 v{a+2*p}, v{a+2*p}, v{a+2*p+1}")
        e(f"v_permlane16_swap_b32 v{a}, v{a+2}")
        e(f"v_permlane16_swap_b32 v{a+4}, v{a+6}")
        e(f"v_add_f32 v{out0}, v{a}, v{a+2}")
        e(f"v_add_f32 v{out1}, v{a+4}, v{a+6}")
    def perm_reg(dst, t):
        e(f"v_and_b32 v{dst}, 1, v{vR}")
        e(f"v_lshlrev_b32 v{dst}, 1, v{dst}")
        e(f"v_lshrrev_b32 v{t}, 1, v{vR}")
        e(f"v_or_b32 v{dst}, v{dst}, v{t}")
    perm_reg(vT4, vT1)
    e(f"v_lshl_add_u32 v{vT0}, v{vC}, 3, v{vT4}")
    e(f"v_lshlrev_b32 v{vColAddr}, 2, v{vT0}")
    reduce8(ACCQ, vT2, vT3)
    e(f"s_lshl_b32 s{sT}, s{sW}, 9")
    e(f"v_add_u32 v{vT0}, s{sT}, v{vColAddr}")
    e(f"ds_write2_b32 v{vT0}, v{vT2}, v{vT3} offset0:{L_QP//4} offset1:{L_QP//4+4}")
    for _ in range(cfg.e2): early.pop(0)()
    e(f"s_waitcnt lgkmcnt(0)")
    e(f"s_barrier")
    if cfg.fine: stamp(4)
    e(f"s_cmp_ge_u32 s{sW}, 2")
    e(f"s_cbranch_scc1 L_s2done")
    e(f"v_lshlrev_b32 v{vT0}, 2, v0")
    for w in range(8):
        e(f"ds_read_b32 v{XU+w}, v{vT0} offset:{L_QP + w*512}")
    e(f"s_waitcnt lgkmcnt(0)")
    e(f"v_add_f32 v{XU}, v{XU}, v{XU+1}")
    e(f"v_add_f32 v{XU+2}, v{XU+2}, v{XU+3}")
    e(f"v_add_f32 v{XU+4}, v{XU+4}, v{XU+5}")
    e(f"v_add_f32 v{XU+6}, v{XU+6}, v{XU+7}")
    e(f"v_add_f32 v{XU}, v{XU}, v{XU+2}")
    e(f"v_add_f32 v{XU+4}, v{XU+4}, v{XU+6}")
    e(f"v_add_f32 v{XU}, v{XU}, v{XU+4}")
    e(f"v_cvt_pk_bf16_f32 v{XU}, v{XU}, 0")
    e(f"v_lshlrev_b32 v{vT0}, 1, v0")
    e(f"ds_write_b16 v{vT0}, v{XU} offset:{L_QB}")
    e(f"s_waitcnt lgkmcnt(0)")
    A.label("L_s2done"); A.hist = []
    e(f"s_barrier")
    e(f"v_lshlrev_b32 v{vT0}, 4, v{vC}")
    e(f"ds_read_b128 v[{Q}:{Q+3}], v{vT0} offset:{L_QB}")
    if cfg.fine: stamp(5)
    while early: early.pop(0)()
    for i in range(8): e(f"v_mov_b32 v{ACC+i}, 0")
    e(f"v_mov_b32 v{vM}, 0xff800000")
    e(f"v_mov_b32 v{vL}, 0")
    e(f"s_waitcnt lgkmcnt(0)")
    if not cfg.fine: stamp(2)

    sLast = 100
    def sub_issue(Kb, SRD, soff, site, skipwait):
        e(f"s_cmp_eq_u32 s{sLast}, 0")
        e(f"s_cbranch_scc0 L_skip{site}")
        for j in range(4):
            e(f"buffer_load_dwordx4 v[{Kb+4*j}:{Kb+4*j+3}], v{vL16}, s[{SRD}:{SRD+3}], s{soff} offen offset:{j*1024} {cfg.nt}")
        e(f"s_add_u32 s{soff}, s{soff}, 32768")
        if skipwait is not None:
            e(f"s_branch L_cont{site}")
            A.label(f"L_skip{site}")
            e(f"s_waitcnt vmcnt({skipwait})")
            A.label(f"L_cont{site}")
        else:
            A.label(f"L_skip{site}")
    def tile(i, extras_mid=None, extras_end=None, sub=False):
        Kb, Vb = (KA, VA) if i % 2 == 0 else (KB, VB)
        nxt = tile_loads(i + 2) if (i + 2 < 32 and not sub) else []
        if sub: e("s_waitcnt vmcnt(12)")
        else: vq.wait(("K", i))
        for d in range(4):
            for j in range(4):
                src2 = "0" if d == 0 else f"v{S+j}"
                e(f"v_dot2_f32_bf16 v{S+j}, v{Kb+4*j+d}, v{Q+d}, {src2}")
        for f in nxt[:4]: f()
        if sub: sub_issue(Kb, SK, sKoff, f"k{i}", 8 if i == 0 else 0)
        if extras_mid: extras_mid()
        m = "row_mask:0xf"
        e(f"v_add_f32_dpp v{vU0}, v{S}, v{S} row_mirror {m} bank_mask:0x3")
        e(f"v_add_f32_dpp v{vU1}, v{S+1}, v{S+1} row_mirror {m} bank_mask:0x3")
        e(f"v_add_f32_dpp v{vU0}, v{S+2}, v{S+2} row_mirror {m} bank_mask:0xc")
        e(f"v_add_f32_dpp v{vU1}, v{S+3}, v{S+3} row_mirror {m} bank_mask:0xc")
        e(f"v_add_f32_dpp v{vTt}, v{vU0}, v{vU0} row_half_mirror {m} bank_mask:0x5")
        e(f"v_add_f32_dpp v{vTt}, v{vU1}, v{vU1} row_half_mirror {m} bank_mask:0xa")
        e(f"v_add_f32_dpp v{vTt}, v{vTt}, v{vTt} quad_perm:[1,0,3,2] {m} bank_mask:0xf")
        e(f"v_add_f32_dpp v{vTt}, v{vTt}, v{vTt} quad_perm:[2,3,0,1] {m} bank_mask:0xf")
        e(f"v_cvt_pk_bf16_f32 v{vTt}, 0, v{vTt}")
        e(f"v_mul_f32 v{vTt}, s{sScale}, v{vTt}")
        e(f"v_cvt_pk_bf16_f32 v{vTt}, 0, v{vTt}")
        e(f"v_max_f32_dpp v{vMn}, v{vTt}, v{vTt} row_half_mirror {m} bank_mask:0xf")
        e(f"v_max_f32_dpp v{vMn}, v{vMn}, v{vMn} row_mirror {m} bank_mask:0xf")
        e(f"v_max_f32 v{vMn}, v{vMn}, v{vM}")
        e(f"v_sub_f32 v{vAl}, v{vM}, v{vMn}")
        e(f"v_sub_f32 v{vE}, v{vTt}, v{vMn}")
        e(f"v_mul_f32 v{vAl}, s{sL2E}, v{vAl}")
        e(f"v_mul_f32 v{vE}, s{sL2E}, v{vE}")
        e(f"v_exp_f32 v{vAl}, v{vAl}")
        e(f"v_exp_f32 v{vE}, v{vE}")
        e(f"v_mov_b32 v{vM}, v{vMn}")
        e(f"v_fma_f32 v{vL}, v{vL}, v{vAl}, v{vE}")
        e(f"v_cvt_pk_bf16_f32 v{vPL}, v{vE}, 0")
        e(f"v_cvt_pk_bf16_f32 v{vPH}, 0, v{vE}")
        for p in range(4):
            e(f"v_pk_mul_f32 v[{ACC+2*p}:{ACC+2*p+1}], v[{ACC+2*p}:{ACC+2*p+1}], v[{vAl}:{vAl+1}] op_sel_hi:[1,0]")
        if sub: e("s_waitcnt vmcnt(12)")
        else: vq.wait(("V", i))
        for j in range(4):
            for d in range(4):
                e(f"v_dot2c_f32_bf16_dpp v{ACC+2*d}, v{vPL}, v{Vb+4*j+d} {bc(4*j)}")
                e(f"v_dot2c_f32_bf16_dpp v{ACC+2*d+1}, v{vPH}, v{Vb+4*j+d} {bc(4*j)}")
        for f in nxt[4:]: f()
        if sub: sub_issue(Vb, SV, sVoff, f"v{i}", 4 if i == 0 else None)
        if extras_end: extras_end()

    def ln2_and_setup():
        e(f"v_lshlrev_b32 v{vT3}, 2, v{vLane}")
        e(f"ds_read_b128 v[{XR}:{XR+3}], v{vL16} offset:{L_XN}")
        e(f"ds_read_b32 v{XR+4}, v{vT3} offset:{L_XN+1024}")
        e(f"s_waitcnt lgkmcnt(0)")
        unpack_xr()
        e(f"v_mov_b32 v{vOwn0}, v{XH0}")
        e(f"v_mov_b32 v{vOwn1}, v{XH1}")
        layernorm([vOwn0, vOwn1])
        e(f"v_cvt_pk_bf16_f32 v{YH0}, 0, v{vOwn0}")
        e(f"v_cvt_pk_bf16_f32 v{YH1}, 0, v{vOwn1}")
        e(f"v_lshrrev_b32 v{YL0}, 16, v{YH0}")
        e(f"v_lshrrev_b32 v{YL1}, 16, v{YH1}")
        for i in range(4): e(f"v_mov_b32 v{ACCH+i}, 0")
        e(f"s_mul_i32 s{sTmp2}, s{sS}, {0 if cfg.exp == 'hot' else 108}")
        srd(SD, pW1, sTmp2, 640*3456, size_sub=sTmp2)
        srd(SBq, pB1, sTmp2, 3456, size_sub=sTmp2)
        e(f"s_mul_i32 s{sT}, s{sS}, {0 if cfg.exp == 'hot' else 54*1280}")
        srd(SE, pW2, sT, 1728*1280, size_sub=sT)
        e(f"s_mul_i32 s{sT}, s{sH}, {0 if cfg.exp == 'hot' else 128*1280}")
        srd(SC, pWO, sT, 4096*1280, size_sub=sT)
        e(f"s_mul_i32 s{sTmp}, s{sWr}, 80")
        e(f"v_add_u32 v{vT0}, s{sTmp}, v{vR}")
        e(f"s_mov_b32 s{sT}, 3456")
        e(f"v_mul_lo_u32 v{vW1off}, v{vT0}, s{sT}")
        e(f"v_lshl_add_u32 v{vW1off}, v{vC}, 3, v{vW1off}")
        e(f"s_mul_i32 s{sTmp}, s{sW}, 7")
        e(f"v_add_u32 v{vT0}, s{sTmp}, v{vR}")
        e(f"s_mov_b32 s{sT}, 1280")
        e(f"v_mul_lo_u32 v{vW2off}, v{vT0}, s{sT}")
        e(f"v_lshl_add_u32 v{vW2off}, v{vC}, 4, v{vW2off}")
        e(f"s_lshl_b32 s{sTmp}, s{sW}, 4")
        e(f"v_add_u32 v{vT0}, s{sTmp}, v{vR}")
        e(f"v_mul_lo_u32 v{vWOoff}, v{vT0}, s{sT}")
        e(f"v_lshl_add_u32 v{vWOoff}, v{vC}, 4, v{vWOoff}")
        e(f"v_lshlrev_b32 v{vT4}, 1, v{vLane}")
        vq.issue("B1", f"buffer_load_ushort v{vB1}, v{vT4}, s[{SBq}:{SBq+3}], 0 offen")
    def w1_load(j):
        if cfg.exp == 'skip': return
        e(f"s_mov_b32 s{sT}, {j*13824}")
        vq.issue(("W1", j), f"buffer_load_dwordx2 v[{W1+2*j}:{W1+2*j+1}], v{vW1off}, s[{SD}:{SD+3}], s{sT} offen {cfg.wflag}")
    def w1_fma(j):
        vq.wait(("W1", j))
        yl, yh, jj = (YL0, YH0, j) if j < 16 else (YL1, YH1, j - 16)
        for d in range(2):
            e(f"v_dot2c_f32_bf16_dpp v{ACCH+2*d}, v{yl}, v{W1+2*j+d} {bc(jj)}")
            e(f"v_dot2c_f32_bf16_dpp v{ACCH+2*d+1}, v{yh}, v{W1+2*j+d} {bc(jj)}")
    def h_reduce():
        e(f"v_permlane32_swap_b32 v{ACCH}, v{ACCH+1}")
        e(f"v_permlane32_swap_b32 v{ACCH+2}, v{ACCH+3}")
        e(f"v_add_f32 v{ACCH}, v{ACCH}, v{ACCH+1}")
        e(f"v_add_f32 v{ACCH+2}, v{ACCH+2}, v{ACCH+3}")
        e(f"v_permlane16_swap_b32 v{ACCH}, v{ACCH+2}")
        e(f"v_add_f32 v{ACCH}, v{ACCH}, v{ACCH+2}")
        perm_reg(vT4, vT1)
        e(f"v_lshl_add_u32 v{vT0}, v{vC}, 2, v{vT4}")
        e(f"v_lshlrev_b32 v{vT0}, 2, v{vT0}")
        e(f"s_lshl_b32 s{sT}, s{sW}, 8")
        e(f"v_add_u32 v{vT0}, s{sT}, v{vT0}")
        e(f"ds_write_b32 v{vT0}, v{ACCH} offset:{L_HP}")
        vq.wait("B1")
        e(f"s_waitcnt lgkmcnt(0)")
        e(f"s_barrier")
        e(f"s_cmp_lg_u32 s{sW}, 2")
        e(f"s_cbranch_scc1 L_noh")
        T = 50
        e(f"v_lshlrev_b32 v{vT0}, 2, v{vLane}")
        for w in range(8):
            e(f"ds_read_b32 v{T+w}, v{vT0} offset:{L_HP + w*256}")
        e(f"s_waitcnt lgkmcnt(0)")
        for w in range(1, 8): e(f"v_add_f32 v{T}, v{T}, v{T+w}")
        x_ = T
        e(f"v_cvt_pk_bf16_f32 v{x_}, 0, v{x_}")
        e(f"v_lshlrev_b32 v{vB1}, 16, v{vB1}")
        e(f"v_add_f32 v{x_}, v{x_}, v{vB1}")
        e(f"v_cvt_pk_bf16_f32 v{x_}, 0, v{x_}")
        e(f"v_mul_f32 v{vT1}, v{x_}, v{x_}")
        e(f"v_mul_f32 v{vT1}, v{vT1}, v{x_}")
        e(f"v_mov_b32 v{vT2}, {f32(0.044715)}")
        e(f"v_fma_f32 v{vT1}, v{vT1}, v{vT2}, v{x_}")
        e(f"v_mul_f32 v{vT1}, {f32(-2.0*math.sqrt(2.0/math.pi)*1.4426950408889634)}, v{vT1}")
        e(f"v_exp_f32 v{vT1}, v{vT1}")
        e(f"v_add_f32 v{vT1}, 1.0, v{vT1}")
        e(f"v_rcp_f32 v{vT1}, v{vT1}")
        e(f"v_mul_f32 v{x_}, v{x_}, v{vT1}")
        e(f"v_cvt_pk_bf16_f32 v{x_}, v{x_}, 0")
        e(f"v_cmp_gt_u32 vcc, 54, v{vLane}")
        e(f"v_cndmask_b32 v{x_}, 0, v{x_}, vcc")
        e(f"v_lshlrev_b32 v{vT0}, 1, v{vLane}")
        e(f"ds_write_b16 v{vT0}, v{x_} offset:{L_HB}")
        e(f"s_waitcnt lgkmcnt(0)")
        A.label("L_noh"); A.hist = []
    def h_read():
        e(f"s_barrier")
        e(f"s_mul_i32 s{sTmp}, s{sW}, 7")
        e(f"v_lshl_add_u32 v{vT1}, v{vC}, 2, v{vR}")
        e(f"v_add_u32 v{vT2}, s{sTmp}, v{vT1}")
        e(f"v_and_b32 v{vT2}, 63, v{vT2}")
        e(f"v_lshlrev_b32 v{vT2}, 1, v{vT2}")
        e(f"ds_read_u16 v{vHL}, v{vT2} offset:{L_HB}")
        e(f"v_cmp_gt_u32 vcc, 7, v{vT1}")
        e(f"s_waitcnt lgkmcnt(0)")
        e(f"v_cndmask_b32 v{vHL}, 0, v{vHL}, vcc")
        e(f"v_lshlrev_b32 v{vHH}, 16, v{vHL}")
    def w2_load(blk):
        if cfg.exp == 'skip': return
        for g in range(2):
            r = W1 + (blk*2 + g)*4
            e(f"s_mov_b32 s{sT}, {g*5120}")
            vq.issue(("W2", blk), f"buffer_load_dwordx4 v[{r}:{r+3}], v{vW2off}, s[{SE}:{SE+3}], s{sT} offen offset:{blk*256} {cfg.wflag}")
    def w2_fma(blk):
        for i in range(8): e(f"v_mov_b32 v{ACC2+i}, 0")
        vq.wait(("W2", blk))
        for g in range(2):
            r = W1 + (blk*2 + g)*4
            for d in range(4):
                e(f"v_dot2c_f32_bf16_dpp v{ACC2+2*d}, v{vHL}, v{r+d} {bc(g)}")
                e(f"v_dot2c_f32_bf16_dpp v{ACC2+2*d+1}, v{vHH}, v{r+d} {bc(g)}")
        reduce8(ACC2, MLPS + 2*blk, MLPS + 2*blk + 1)
    def wo_load(n):
        if cfg.exp == 'skip': return
        g, blk = divmod(n, 5)
        r = W + n*4
        e(f"s_mov_b32 s{sT}, {g*5120}")
        vq.issue(("WO", n), f"buffer_load_dwordx4 v[{r}:{r+3}], v{vWOoff}, s[{SC}:{SC+3}], s{sT} offen offset:{blk*256} {cfg.wflag}")

    if cfg.mode == 'inline':
        mid = {i: [] for i in range(32)}; end = {i: [] for i in range(32)}
        end[0].append(ln2_and_setup)
        t0 = cfg.w1_start
        for k in range(10):
            mid[t0 + k].append(lambda k=k: (w1_load(2*k), w1_load(2*k+1)))
            end[t0 + k + 2].append(lambda k=k: (w1_fma(2*k), w1_fma(2*k+1)))
        th = t0 + 12
        end[th].append(h_reduce)
        end[th+1].append(h_read)
        for blk in range(5):
            mid[th - 1 + blk + 2].append(lambda blk=blk: w2_load(blk))
            end[th + 3 + blk].append(lambda blk=blk: w2_fma(blk))
        for n in range(20):
            mid[cfg.wo_start + n].append(lambda n=n: wo_load(n))
        for i in range(32):
            tile(i, (lambda i=i: [f() for f in mid[i]]), (lambda i=i: [f() for f in end[i]]))
            if i == 3 and not cfg.fine: stamp(3)
    else:
        gaps = {g: [] for g in range(15)}
        gaps[0].append(ln2_and_setup)
        for k in range(5):
            gaps[k+1].append(lambda k=k: [w1_fma(4*k+i) for i in range(4)])
            gaps[k].append(lambda k=k: [w1_load(4*k+i) for i in range(4)])
        gaps[5].append(h_reduce)
        gaps[5].append(lambda: (w2_load(0), w2_load(1)))
        gaps[6].append(h_read)
        gaps[6].append(lambda: (w2_fma(0), w2_fma(1), w2_load(2), w2_load(3)))
        gaps[7].append(lambda: (w2_fma(2), w2_fma(3), w2_load(4)))
        gaps[8].append(lambda: w2_fma(4))
        n = 0
        for g in range(15):
            for _ in range(cfg.wo_sched[g]):
                gaps[g].append(lambda n=n: wo_load(n)); n += 1
        assert n == 20
        e(f"s_mov_b32 s{sLast}, 0")
        for g in range(16):
            if g == 15: e(f"s_mov_b32 s{sLast}, 1")
            A.fence()
            e(f"s_call_b64 s[94:95], L_tile2")
            A.hist = []
            vq.q = []
            tl = [("T",)]*16
            if g < 15:
                vq.q = list(tl)
                for f in gaps[g]: f()
            if g == 1 and not cfg.fine: stamp(3)
    stamp(6 if cfg.fine else 4)
    m = "row_mask:0xf bank_mask:0xf"
    e(f"v_add_f32_dpp v{vL}, v{vL}, v{vL} row_half_mirror {m}")
    e(f"v_mov_b32 v{vT0}, v{vM}")
    e(f"v_mov_b32 v{vT1}, v{vM}")
    e(f"v_add_f32_dpp v{vL}, v{vL}, v{vL} row_mirror {m}")
    e(f"v_permlane16_swap_b32 v{vT0}, v{vT1}")
    e(f"v_max_f32 v{vT0}, v{vT0}, v{vT1}")
    e(f"v_mov_b32 v{vT1}, v{vT0}")
    e(f"v_permlane32_swap_b32 v{vT0}, v{vT1}")
    e(f"v_max_f32 v{vMn}, v{vT0}, v{vT1}")
    e(f"v_sub_f32 v{vAl}, v{vM}, v{vMn}")
    e(f"v_mul_f32 v{vAl}, s{sL2E}, v{vAl}")
    e(f"v_exp_f32 v{vAl}, v{vAl}")
    e(f"v_mul_f32 v{vL}, v{vL}, v{vAl}")
    for p in range(4):
        e(f"v_pk_mul_f32 v[{ACC+2*p}:{ACC+2*p+1}], v[{ACC+2*p}:{ACC+2*p+1}], v[{vAl}:{vAl+1}] op_sel_hi:[1,0]")
    e(f"v_mov_b32 v{vT1}, v{vL}")
    e(f"v_permlane16_swap_b32 v{vL}, v{vT1}")
    e(f"v_add_f32 v{vL}, v{vL}, v{vT1}")
    e(f"v_mov_b32 v{vT1}, v{vL}")
    e(f"v_permlane32_swap_b32 v{vL}, v{vT1}")
    e(f"v_add_f32 v{vAl2}, v{vL}, v{vT1}")
    reduce8(ACC, vT2, vT3)
    e(f"s_lshl_b32 s{sT}, s{sW}, 9")
    e(f"v_add_u32 v{vT0}, s{sT}, v{vColAddr}")
    e(f"v_add_u32 v{vT0}, {L_OP}, v{vT0}")
    e(f"ds_write2_b32 v{vT0}, v{vT2}, v{vT3} offset0:0 offset1:4")
    e(f"v_mov_b32 v{vAl}, v{vMn}")
    e(f"s_lshl_b32 s{sT}, s{sW}, 3")
    e(f"v_mov_b32 v{vT0}, s{sT}")
    e(f"ds_write_b64 v{vT0}, v[{vAl}:{vAl+1}] offset:{L_ML}")
    for i in range(40): e(f"v_mov_b32 v{ACCO+i}, 0")
    e(f"s_lshl_b32 s{sT}, s{sW}, 4")
    e(f"v_lshl_add_u32 v{vT1}, v{vC}, 2, v{vR}")
    e(f"v_add_u32 v{vT1}, s{sT}, v{vT1}")
    e(f"v_and_b32 v{vT1}, 127, v{vT1}")
    e(f"v_lshlrev_b32 v{vT1}, 2, v{vT1}")
    e(f"v_mov_b32 v{vT0}, 0")
    vq.drain()
    e(f"s_waitcnt lgkmcnt(0)")
    e(f"s_barrier")
    ML = 104; OP = 120
    for i in range(4):
        e(f"ds_read_b128 v[{ML+4*i}:{ML+4*i+3}], v{vT0} offset:{L_ML + 16*i}")
    for w in range(8):
        e(f"ds_read_b32 v{OP+w}, v{vT1} offset:{L_OP + w*512}")
    e(f"s_waitcnt lgkmcnt(8)")
    e(f"v_max3_f32 v{vMn}, v{ML}, v{ML+2}, v{ML+4}")
    e(f"v_max3_f32 v{vT2}, v{ML+6}, v{ML+8}, v{ML+10}")
    e(f"v_max3_f32 v{vMn}, v{vMn}, v{ML+12}, v{ML+14}")
    e(f"v_max_f32 v{vMn}, v{vMn}, v{vT2}")
    for w in range(8): e(f"v_sub_f32 v{ML+2*w}, v{ML+2*w}, v{vMn}")
    for w in range(8): e(f"v_mul_f32 v{ML+2*w}, s{sL2E}, v{ML+2*w}")
    for w in range(8): e(f"v_exp_f32 v{ML+2*w}, v{ML+2*w}")
    e(f"s_waitcnt lgkmcnt(0)")
    e(f"v_mul_f32 v{vL}, v{ML}, v{ML+1}")
    e(f"v_mul_f32 v{vE}, v{ML}, v{OP}")
    for w in range(1, 8):
        e(f"v_fmac_f32 v{vL}, v{ML+2*w}, v{ML+2*w+1}")
        e(f"v_fmac_f32 v{vE}, v{ML+2*w}, v{OP+w}")
    e(f"v_rcp_f32 v{vL}, v{vL}")
    e(f"v_mul_f32 v{vE}, v{vE}, v{vL}")
    e(f"v_cvt_pk_bf16_f32 v{vPL}, v{vE}, 0")
    e(f"v_cvt_pk_bf16_f32 v{vPH}, 0, v{vE}")
    RES = 104
    for blk in range(5):
        for g in range(4):
            r = W + (g*5 + blk)*4
            for d in range(4):
                e(f"v_dot2c_f32_bf16_dpp v{ACCO+8*blk+2*d}, v{vPL}, v{r+d} {bc(g)}")
                e(f"v_dot2c_f32_bf16_dpp v{ACCO+8*blk+2*d+1}, v{vPH}, v{r+d} {bc(g)}")
        if blk > 0:
            reduce8(ACCO + 8*(blk-1), RES + 2*(blk-1), RES + 2*(blk-1) + 1)
    reduce8(ACCO + 32, RES + 8, RES + 9)
    for i in range(10): e(f"v_add_f32 v{RES+i}, v{RES+i}, v{MLPS+i}")
    e(f"s_mul_i32 s{sT}, s{sW}, 2560")
    e(f"v_add_u32 v{vT0}, s{sT}, v{vColAddr}")
    e(f"v_add_u32 v{vT0}, {L_OUT}, v{vT0}")
    for blk in range(5):
        e(f"ds_write_b32 v{vT0}, v{RES+2*blk} offset:{blk*512}")
        e(f"ds_write_b32 v{vT0}, v{RES+2*blk+1} offset:{blk*512+16}")
    e(f"s_waitcnt lgkmcnt(0)")
    e(f"s_barrier")
    if not cfg.fine: stamp(5)
    e(f"s_cmp_ge_u32 s{sW}, 3")
    e(f"s_cbranch_scc1 L_fin")
    e(f"v_cmp_gt_u32 vcc, 160, v0")
    e(f"s_and_saveexec_b64 s[{SAVE}:{SAVE+1}], vcc")
    e(f"v_lshlrev_b32 v{vT0}, 4, v0")
    P = 64
    for w in range(8):
        e(f"ds_read_b128 v[{P+4*w}:{P+4*w+3}], v{vT0} offset:{L_OUT + w*2560}")
    e(f"s_mul_i32 s{sT}, s2, 2560")
    srd(SA, pWS, sT, 2560)
    e(f"s_waitcnt lgkmcnt(0)")
    for step in (1, 2, 4):
        for w in range(0, 8, 2*step):
            for k in range(4):
                e(f"v_add_f32 v{P+4*w+k}, v{P+4*w+k}, v{P+4*(w+step)+k}")
    e(f"buffer_store_dwordx4 v[{P}:{P+3}], v{vT0}, s[{SA}:{SA+3}], 0 offen sc0 sc1")
    e(f"s_mul_i32 s{sT}, s{sB}, 3")
    e(f"s_add_u32 s{sT}, s{sT}, s{sW}")
    e(f"s_lshl_b32 s{sT}, s{sT}, 2")
    e(f"s_mov_b64 s[{SAVE+2}:{SAVE+3}], exec")
    e(f"s_waitcnt vmcnt(0)")
    e(f"s_mov_b64 exec, 1")
    e(f"v_mov_b32 v{vT1}, s{sT}")
    e(f"v_mov_b32 v{vT2}, 1")
    e(f"global_atomic_add v{vT3}, v{vT1}, v{vT2}, s[{pDBG}:{pDBG+1}] sc0 sc1")
    e(f"s_waitcnt vmcnt(0)")
    e(f"v_readfirstlane_b32 s{sT}, v{vT3}")
    e(f"s_mov_b64 exec, s[{SAVE+2}:{SAVE+3}]")
    e(f"s_cmp_lg_u32 s{sT}, 31")
    e(f"s_cbranch_scc1 L_fin")
    e(f"s_mul_i32 s{sT}, s{sB}, {32*2560}")
    srd(SA, pWS, sT, 32*2560)
    for hh in range(32):
        r = 96 + 4*hh
        e(f"s_mov_b32 s{sT}, {hh*2560}")
        e(f"buffer_load_dwordx4 v[{r}:{r+3}], v{vT0}, s[{SA}:{SA+3}], s{sT} offen sc0 sc1")
    e(f"s_mul_i32 s{sT}, s{sB}, 1280")
    srd(SBq, pX, sT, 1280)
    srd(SC, pB2, None, 1280)
    srd(SD, pOUT, sT, 1280)
    e(f"v_lshlrev_b32 v{vT1}, 3, v0")
    e(f"buffer_load_dwordx2 v[{P}:{P+1}], v{vT1}, s[{SBq}:{SBq+3}], 0 offen")
    e(f"buffer_load_dwordx2 v[{P+2}:{P+3}], v{vT1}, s[{SC}:{SC+3}], 0 offen")
    for hh in range(1, 32):
        e(f"s_waitcnt vmcnt({2 + 31 - hh})")
        for k in range(4):
            e(f"v_add_f32 v{96+k}, v{96+k}, v{96+4*hh+k}")
    e(f"s_waitcnt vmcnt(0)")
    for k in range(4):
        src = P + k//2; src2 = P + 2 + k//2
        if k % 2 == 0:
            e(f"v_lshlrev_b32 v{vT2}, 16, v{src}")
            e(f"v_lshlrev_b32 v{vT3}, 16, v{src2}")
        else:
            e(f"v_and_b32 v{vT2}, 0xffff0000, v{src}")
            e(f"v_and_b32 v{vT3}, 0xffff0000, v{src2}")
        e(f"v_add_f32 v{96+k}, v{96+k}, v{vT3}")
        e(f"v_add_f32 v{96+k}, v{96+k}, v{vT2}")
    e(f"v_cvt_pk_bf16_f32 v{P+4}, v96, v97")
    e(f"v_cvt_pk_bf16_f32 v{P+5}, v98, v99")
    e(f"buffer_store_dwordx2 v[{P+4}:{P+5}], v{vT1}, s[{SD}:{SD+3}], 0 offen")
    A.label("L_fin"); A.hist = []
    if cfg.stamps:
        e("s_mov_b64 exec, -1")
        if not cfg.fine: stamp(6)
        e("s_waitcnt lgkmcnt(0)")
        e(f"s_lshl_b32 s{sT}, s2, 3")
        e(f"s_add_u32 s{sT}, s{sT}, s{sW}")
        e(f"s_lshl_b32 s{sT}, s{sT}, 6")
        e(f"s_add_u32 s{sT}, s{sT}, {1<<20}")
        for i in range(14): e(f"v_mov_b32 v{64+i}, s{80+i}")
        e(f"s_getreg_b32 s{sTmp}, hwreg(HW_REG_XCC_ID)")
        e(f"v_mov_b32 v78, s{sTmp}")
        e(f"v_mov_b32 v79, 0")
        e(f"v_mov_b32 v{vT0}, s{sT}")
        e("s_mov_b64 exec, 1")
        for i in range(4):
            e(f"global_store_dwordx4 v{vT0}, v[{64+4*i}:{67+4*i}], s[{pWS}:{pWS+1}] offset:{16*i}")
        e("s_waitcnt vmcnt(0)")
    A.label("L_end")
    e("s_endpgm")
    if cfg.mode == 'call':
        A.hist = []
        A.label("L_tile2")
        tile(0, sub=True)
        tile(1, sub=True)
        A.fence()
        e("s_setpc_b64 s[94:95]")
    body = A.text()
    hdr = HDR + f"; @launch grid=(256,1,1) block=(512,1,1) lds={LDS_BYTES}\n"
    pre = f""".amdgcn_target "amdgcn-amd-amdhsa--gfx950"
.text
.globl {KN}
.p2align 8
.type {KN},@function
{KN}:
"""
    post = f""".section .rodata,"a"
.p2align 6
.amdhsa_kernel {KN}
  .amdhsa_next_free_vgpr 256
  .amdhsa_next_free_sgpr 102
  .amdhsa_accum_offset 256
  .amdhsa_group_segment_fixed_size 0
  .amdhsa_kernarg_size 104
  .amdhsa_user_sgpr_count 2
  .amdhsa_user_sgpr_kernarg_segment_ptr 1
  .amdhsa_system_sgpr_workgroup_id_x 1
  .amdhsa_float_denorm_mode_32 3
.end_amdhsa_kernel
"""
    return hdr + pre + body + post

if __name__ == "__main__":
    class C(Cfg): pass
    for a in sys.argv[2:]:
        k, v = a.split("=")
        setattr(C, k, eval(v))
    open(sys.argv[1], "w").write(gen(C))
```

```python
import sys, math, struct
from asmlib import Asm

KN = "parallel_sum__gqa_block_cached__mixer_channel_mlp__decode_kernel"
HDR = open("parallel_sum__gqa_block_cached__mixer_channel_mlp__decode.s.ref").read().split("; Override launch")[0]

def f32(x):
    return "0x%08x" % struct.unpack("<I", struct.pack("<f", x))[0]

class Cfg:
    kflag = "nt"
    vflag = "nt"
    wflag = ""
    stamps = False
    fine = False
    rot = True
    e1 = 4
    e2 = 4
    wo_sched = [1,1,1,1,1,0,0, 1, 2,2,2,2,2,2,2]
    exp = ''

class VQ:
    def __init__(self, A):
        self.q = []; self.A = A
    def issue(self, tag, text):
        self.A(text); self.q.append(tag)
        assert len(self.q) <= 63, len(self.q)
    def wait(self, tag):
        idx = [i for i, t in enumerate(self.q) if t == tag]
        if not idx: return
        i = idx[-1]
        n = len(self.q) - 1 - i
        self.A(f"s_waitcnt vmcnt({n})")
        self.q = self.q[i+1:]
    def drain(self):
        self.A("s_waitcnt vmcnt(0)"); self.q = []

def gen(cfg=Cfg):
    A = Asm(); e = A
    vq = VQ(A)
    vLane = 1; vL16 = 2; vR = 3; vC = 4
    vT0, vT1, vT2, vT3, vT4, vT5 = 5, 6, 7, 8, 9, 10
    vColAddr = 11
    Q = 12; ACC = 16; vM = 24; vSc = 25; S = 26
    vU0, vU1, vTt = 30, 31, 32
    vRL = 33; E4 = 34
    vPL, vPH = 38, 39
    vHL = 61; vHH = 63; vB1 = 62
    MLPS = 40
    XL0, XH0, XL1, XH1 = 40, 41, 42, 43
    YL0, YH0, YL1, YH1 = 44, 45, 46, 47
    XR = 26
    XU = 50
    vOwn0, vOwn1 = 60, 61
    ACCH = 50; ACC2 = 50
    vW1off, vW2off, vWOoff = 58, 59, 60
    ACCQ = 16
    RING = 64
    W = 128; W1 = 208
    ACCO = 64
    sW = 3; sB = 4; sH = 5; sS = 6; sT = 7
    pX, pK, pV, pWQ, pWO, pBX, pW1, pB1 = 16, 18, 20, 22, 24, 26, 28, 30
    pW2, pB2, pOUT, pDBG = 32, 34, 36, 38
    pWS = 40
    SK, SV, SA, SBq, SC, SD, SE = 44, 48, 52, 56, 60, 64, 68
    sOff = 72; sScale = 74; sL2E = 75; sTmp = 76; sTmp2 = 77; sWr = 78
    SAVE = 96
    sLast = 100
    L_QP = 0; L_HP = 4096; L_QB = 6144; L_HB = 6400; L_ML = 6528; L_OP = 6656; L_OUT = 10752
    L_XN = L_OUT + 20480
    L_SC = L_XN + 1536
    LDS_BYTES = L_SC + 16384

    def srd(dst, ptr, off, size, size_sub=None):
        if off is None:
            e(f"s_mov_b32 s{dst}, s{ptr}")
            e(f"s_and_b32 s{dst+1}, s{ptr+1}, 0xffff")
        else:
            e(f"s_add_u32 s{dst}, s{ptr}, s{off}")
            e(f"s_addc_u32 s{dst+1}, s{ptr+1}, 0")
            e(f"s_and_b32 s{dst+1}, s{dst+1}, 0xffff")
        if size_sub is None: e(f"s_mov_b32 s{dst+2}, {size}")
        else: e(f"s_sub_u32 s{dst+2}, {size}, s{size_sub}")
        e(f"s_mov_b32 s{dst+3}, 0x20000")
    def stamp(i):
        if cfg.stamps: e(f"s_memrealtime s[{80+2*i}:{81+2*i}]")
    def bc(j): return f"row_newbcast:{j} row_mask:0xf bank_mask:0xf"

    e(f"s_cmp_ge_u32 s2, 256")
    e(f"s_cbranch_scc1 L_end")
    stamp(0)
    e(f"s_load_dwordx16 s[16:31], s[0:1], 0")
    e(f"s_load_dwordx8 s[32:39], s[0:1], 64")
    e(f"s_load_dwordx2 s[40:41], s[0:1], 96")
    e(f"v_and_b32 v{vLane}, 63, v0")
    e(f"v_lshrrev_b32 v{vT0}, 6, v0")
    e(f"v_readfirstlane_b32 s{sW}, v{vT0}")
    e(f"s_lshr_b32 s{sB}, s2, 5")
    e(f"s_and_b32 s{sH}, s2, 31")
    e(f"s_and_b32 s{sS}, s{sH}, 7")
    e(f"s_lshl_b32 s{sS}, s{sS}, 2")
    e(f"s_lshr_b32 s{sT}, s{sH}, 3")
    e(f"s_add_u32 s{sS}, s{sS}, s{sT}")
    e(f"v_lshlrev_b32 v{vL16}, 4, v{vLane}")
    e(f"v_lshrrev_b32 v{vR}, 4, v{vLane}")
    e(f"v_and_b32 v{vC}, 15, v{vLane}")
    e(f"s_mov_b32 s{sScale}, {f32(128**-0.5)}")
    e(f"s_mov_b32 s{sL2E}, {f32(1.4426950408889634)}")
    if cfg.rot:
        e(f"s_add_u32 s{sWr}, s{sW}, s{sB}")
        e(f"s_and_b32 s{sWr}, s{sWr}, 7")
    else:
        e(f"s_mov_b32 s{sWr}, s{sW}")
    e(f"s_mul_i32 s{sTmp}, s{sWr}, 80")
    e(f"v_add_u32 v{vT0}, s{sTmp}, v{vR}")
    e(f"v_lshlrev_b32 v{vT5}, 13, v{vT0}")
    e(f"v_lshl_add_u32 v{vT5}, v{vC}, 4, v{vT5}")
    e(f"v_lshlrev_b32 v{vT3}, 2, v{vLane}")
    e(f"s_lshl_b32 s{sOff}, s{sW}, 12")
    e(f"s_waitcnt lgkmcnt(0)")
    e(f"s_lshl_b32 s{sT}, s{sH}, 8")
    srd(SC, pWQ, sT, 640*8192, size_sub=sT)
    e(f"s_lshl_b32 s{sT}, s2, 20")
    srd(SK, pK, sT, 1 << 20)
    e(f"s_cmp_lg_u32 s{sW}, 0")
    e(f"s_cbranch_scc1 L_nox")
    e(f"s_mul_i32 s{sTmp}, s{sB}, 1280")
    srd(SA, pX, sTmp, 1280)
    e(f"buffer_load_dwordx4 v[{XR}:{XR+3}], v{vL16}, s[{SA}:{SA+3}], 0 offen")
    e(f"buffer_load_dword v{XR+4}, v{vT3}, s[{SA}:{SA+3}], 0 offen offset:1024")
    A.label("L_nox"); A.hist = []
    srd(SV, pV, sT, 1 << 20)
    early = []
    for t in range(4):
        for j in range(4):
            def fk(t=t, j=j):
                r = RING + 16*t + 4*j
                vq.issue(("K", t), f"buffer_load_dwordx4 v[{r}:{r+3}], v{vL16}, s[{SK}:{SK+3}], s{sOff} offen offset:{j*1024} {cfg.kflag}")
                if j == 3: e(f"s_add_u32 s{sOff}, s{sOff}, 32768")
            early.append(fk)
    for j in range(20):
        e(f"s_mov_b32 s{sTmp}, {j*32768}")
        vq.issue(("WQ", j), f"buffer_load_dwordx4 v[{W+4*j}:{W+4*j+3}], v{vT5}, s[{SC}:{SC+3}], s{sTmp} offen {cfg.wflag}")
    def wave_red(v, t1, op):
        e(f"{op}_dpp v{v}, v{v}, v{v} quad_perm:[1,0,3,2] row_mask:0xf bank_mask:0xf")
        e(f"{op}_dpp v{v}, v{v}, v{v} quad_perm:[2,3,0,1] row_mask:0xf bank_mask:0xf")
        e(f"{op}_dpp v{v}, v{v}, v{v} row_half_mirror row_mask:0xf bank_mask:0xf")
        e(f"{op}_dpp v{v}, v{v}, v{v} row_mirror row_mask:0xf bank_mask:0xf")
        e(f"v_mov_b32 v{t1}, v{v}")
        e(f"v_permlane16_swap_b32 v{v}, v{t1}")
        e(f"{op} v{v}, v{v}, v{t1}")
        e(f"v_mov_b32 v{t1}, v{v}")
        e(f"v_permlane32_swap_b32 v{v}, v{t1}")
        e(f"{op} v{v}, v{v}, v{t1}")
    def wave_sum(v, t1): wave_red(v, t1, "v_add_f32")
    def unpack_xr():
        for i in range(5):
            e(f"v_lshlrev_b32 v{XU+2*i}, 16, v{XR+i}")
            e(f"v_and_b32 v{XU+2*i+1}, 0xffff0000, v{XR+i}")
    def layernorm(norm_regs):
        s_, t1, mean, mb = vT0, vT1, vT2, vT3
        e(f"v_add_f32 v{s_}, v{XU}, v{XU+1}")
        e(f"v_add_f32 v{t1}, v{XU+2}, v{XU+3}")
        e(f"v_add_f32 v{mean}, v{XU+4}, v{XU+5}")
        e(f"v_add_f32 v{mb}, v{XU+6}, v{XU+7}")
        e(f"v_add_f32 v{s_}, v{s_}, v{t1}")
        e(f"v_add_f32 v{t1}, v{XU+8}, v{XU+9}")
        e(f"v_add_f32 v{mean}, v{mean}, v{mb}")
        e(f"v_add_f32 v{s_}, v{s_}, v{t1}")
        e(f"v_add_f32 v{s_}, v{s_}, v{mean}")
        wave_sum(s_, t1)
        e(f"v_mul_f32 v{mean}, {f32(1.0/640)}, v{s_}")
        e(f"v_cvt_pk_bf16_f32 v{mb}, 0, v{mean}")
        e(f"v_sub_f32 v{t1}, v{XU}, v{mean}")
        e(f"v_mul_f32 v{s_}, v{t1}, v{t1}")
        for i in range(1, 10):
            e(f"v_sub_f32 v{t1}, v{XU+i}, v{mean}")
            e(f"v_fmac_f32 v{s_}, v{t1}, v{t1}")
        wave_sum(s_, t1)
        e(f"v_mul_f32 v{s_}, {f32(1.0/640)}, v{s_}")
        e(f"v_cvt_pk_bf16_f32 v{s_}, 0, v{s_}")
        e(f"v_add_f32 v{s_}, {f32(1e-5)}, v{s_}")
        e(f"v_cvt_pk_bf16_f32 v{s_}, 0, v{s_}")
        e(f"v_sqrt_f32 v{s_}, v{s_}")
        e(f"v_cvt_pk_bf16_f32 v{s_}, 0, v{s_}")
        e(f"v_rcp_f32 v{s_}, v{s_}")
        for r in norm_regs: e(f"v_sub_f32 v{r}, v{r}, v{mb}")
        for r in norm_regs: e(f"v_cvt_pk_bf16_f32 v{r}, 0, v{r}")
        for r in norm_regs: e(f"v_mul_f32 v{r}, v{r}, v{s_}")
    e(f"s_cmp_lg_u32 s{sW}, 0")
    e(f"s_cbranch_scc1 L_noln")
    e(f"s_waitcnt vmcnt(20)")
    unpack_xr()
    layernorm([XU+i for i in range(10)])
    for i in range(5):
        e(f"v_cvt_pk_bf16_f32 v{XR+i}, v{XU+2*i}, v{XU+2*i+1}")
    e(f"v_lshlrev_b32 v{vT3}, 2, v{vLane}")
    e(f"ds_write_b128 v{vL16}, v[{XR}:{XR+3}] offset:{L_XN}")
    e(f"ds_write_b32 v{vT3}, v{XR+4} offset:{L_XN+1024}")
    e(f"s_waitcnt lgkmcnt(0)")
    A.label("L_noln"); A.hist = []
    stamp(1)
    e(f"s_barrier")
    e(f"s_mul_i32 s{sTmp}, s{sWr}, 80")
    e(f"v_lshl_add_u32 v{vT1}, v{vC}, 2, v{vR}")
    e(f"v_add_u32 v{vT2}, s{sTmp}, v{vT1}")
    e(f"v_lshlrev_b32 v{vT2}, 1, v{vT2}")
    e(f"ds_read_u16 v{XL0}, v{vT2} offset:{L_XN}")
    e(f"ds_read_u16 v{XL1}, v{vT2} offset:{L_XN+128}")
    for _ in range(cfg.e1): early.pop(0)()
    for i in range(8): e(f"v_mov_b32 v{ACCQ+i}, 0")
    e(f"s_waitcnt lgkmcnt(0)")
    e(f"v_lshlrev_b32 v{XH0}, 16, v{XL0}")
    e(f"v_lshlrev_b32 v{XH1}, 16, v{XL1}")
    for j in range(20):
        vq.wait(("WQ", j))
        xl, xh, jj = (XL0, XH0, j) if j < 16 else (XL1, XH1, j - 16)
        for d in range(4):
            e(f"v_dot2c_f32_bf16_dpp v{ACCQ+2*d}, v{xl}, v{W+4*j+d} {bc(jj)}")
            e(f"v_dot2c_f32_bf16_dpp v{ACCQ+2*d+1}, v{xh}, v{W+4*j+d} {bc(jj)}")
    def reduce8(a, out0, out1):
        for p in range(4): e(f"v_permlane32_swap_b32 v{a+2*p}, v{a+2*p+1}")
        for p in range(4): e(f"v_add_f32 v{a+2*p}, v{a+2*p}, v{a+2*p+1}")
        e(f"v_permlane16_swap_b32 v{a}, v{a+2}")
        e(f"v_permlane16_swap_b32 v{a+4}, v{a+6}")
        e(f"v_add_f32 v{out0}, v{a}, v{a+2}")
        e(f"v_add_f32 v{out1}, v{a+4}, v{a+6}")
    def perm_reg(dst, t):
        e(f"v_and_b32 v{dst}, 1, v{vR}")
        e(f"v_lshlrev_b32 v{dst}, 1, v{dst}")
        e(f"v_lshrrev_b32 v{t}, 1, v{vR}")
        e(f"v_or_b32 v{dst}, v{dst}, v{t}")
    perm_reg(vT4, vT1)
    e(f"v_lshl_add_u32 v{vT0}, v{vC}, 3, v{vT4}")
    e(f"v_lshlrev_b32 v{vColAddr}, 2, v{vT0}")
    reduce8(ACCQ, vT2, vT3)
    e(f"s_lshl_b32 s{sT}, s{sW}, 9")
    e(f"v_add_u32 v{vT0}, s{sT}, v{vColAddr}")
    e(f"ds_write2_b32 v{vT0}, v{vT2}, v{vT3} offset0:{L_QP//4} offset1:{L_QP//4+4}")
    for _ in range(cfg.e2): early.pop(0)()
    e(f"s_waitcnt lgkmcnt(0)")
    e(f"s_barrier")
    e(f"s_cmp_ge_u32 s{sW}, 2")
    e(f"s_cbranch_scc1 L_s2done")
    e(f"v_lshlrev_b32 v{vT0}, 2, v0")
    for w in range(8):
        e(f"ds_read_b32 v{XU+w}, v{vT0} offset:{L_QP + w*512}")
    e(f"s_waitcnt lgkmcnt(0)")
    e(f"v_add_f32 v{XU}, v{XU}, v{XU+1}")
    e(f"v_add_f32 v{XU+2}, v{XU+2}, v{XU+3}")
    e(f"v_add_f32 v{XU+4}, v{XU+4}, v{XU+5}")
    e(f"v_add_f32 v{XU+6}, v{XU+6}, v{XU+7}")
    e(f"v_add_f32 v{XU}, v{XU}, v{XU+2}")
    e(f"v_add_f32 v{XU+4}, v{XU+4}, v{XU+6}")
    e(f"v_add_f32 v{XU}, v{XU}, v{XU+4}")
    e(f"v_cvt_pk_bf16_f32 v{XU}, v{XU}, 0")
    e(f"v_lshlrev_b32 v{vT0}, 1, v0")
    e(f"ds_write_b16 v{vT0}, v{XU} offset:{L_QB}")
    e(f"s_waitcnt lgkmcnt(0)")
    A.label("L_s2done"); A.hist = []
    e(f"s_barrier")
    e(f"v_lshlrev_b32 v{vT0}, 4, v{vC}")
    e(f"ds_read_b128 v[{Q}:{Q+3}], v{vT0} offset:{L_QB}")
    while early: early.pop(0)()
    e(f"v_lshrrev_b32 v{vT0}, 2, v{vC}")
    e(f"v_lshl_add_u32 v{vT0}, v{vR}, 2, v{vT0}")
    e(f"s_lshl_b32 s{sT}, s{sW}, 7")
    e(f"v_add_u32 v{vT0}, s{sT}, v{vT0}")
    e(f"v_lshlrev_b32 v{vSc}, 4, v{vT0}")
    e(f"v_add_u32 v{vSc}, {L_SC}, v{vSc}")
    for i in range(8): e(f"v_mov_b32 v{ACC+i}, 0")
    e(f"v_mov_b32 v{vM}, 0xff800000")
    e(f"s_waitcnt lgkmcnt(0)")
    stamp(2)

    def ln2_and_setup():
        e(f"v_lshlrev_b32 v{vT3}, 2, v{vLane}")
        e(f"ds_read_b128 v[{XR}:{XR+3}], v{vL16} offset:{L_XN}")
        e(f"ds_read_b32 v{XR+4}, v{vT3} offset:{L_XN+1024}")
        e(f"s_waitcnt lgkmcnt(0)")
        unpack_xr()
        e(f"v_mov_b32 v{vOwn0}, v{XH0}")
        e(f"v_mov_b32 v{vOwn1}, v{XH1}")
        layernorm([vOwn0, vOwn1])
        e(f"v_cvt_pk_bf16_f32 v{YH0}, 0, v{vOwn0}")
        e(f"v_cvt_pk_bf16_f32 v{YH1}, 0, v{vOwn1}")
        e(f"v_lshrrev_b32 v{YL0}, 16, v{YH0}")
        e(f"v_lshrrev_b32 v{YL1}, 16, v{YH1}")
        for i in range(4): e(f"v_mov_b32 v{ACCH+i}, 0")
        e(f"s_mul_i32 s{sTmp2}, s{sS}, 108")
        srd(SD, pW1, sTmp2, 640*3456, size_sub=sTmp2)
        srd(SBq, pB1, sTmp2, 3456, size_sub=sTmp2)
        e(f"s_mul_i32 s{sT}, s{sS}, {54*1280}")
        srd(SE, pW2, sT, 1728*1280, size_sub=sT)
        e(f"s_mul_i32 s{sT}, s{sH}, {128*1280}")
        srd(SC, pWO, sT, 4096*1280, size_sub=sT)
        e(f"s_mul_i32 s{sTmp}, s{sWr}, 80")
        e(f"v_add_u32 v{vT0}, s{sTmp}, v{vR}")
        e(f"s_mov_b32 s{sT}, 3456")
        e(f"v_mul_lo_u32 v{vW1off}, v{vT0}, s{sT}")
        e(f"v_lshl_add_u32 v{vW1off}, v{vC}, 3, v{vW1off}")
        e(f"s_mul_i32 s{sTmp}, s{sW}, 7")
        e(f"v_add_u32 v{vT0}, s{sTmp}, v{vR}")
        e(f"s_mov_b32 s{sT}, 1280")
        e(f"v_mul_lo_u32 v{vW2off}, v{vT0}, s{sT}")
        e(f"v_lshl_add_u32 v{vW2off}, v{vC}, 4, v{vW2off}")
        e(f"s_lshl_b32 s{sTmp}, s{sW}, 4")
        e(f"v_add_u32 v{vT0}, s{sTmp}, v{vR}")
        e(f"v_mul_lo_u32 v{vWOoff}, v{vT0}, s{sT}")
        e(f"v_lshl_add_u32 v{vWOoff}, v{vC}, 4, v{vWOoff}")
        e(f"v_lshlrev_b32 v{vT4}, 1, v{vLane}")
        vq.issue("B1", f"buffer_load_ushort v{vB1}, v{vT4}, s[{SBq}:{SBq+3}], 0 offen")
    def w1_load(j):
        if cfg.exp == 'skip': return
        e(f"s_mov_b32 s{sT}, {j*13824}")
        vq.issue(("W1", j), f"buffer_load_dwordx2 v[{W1+2*j}:{W1+2*j+1}], v{vW1off}, s[{SD}:{SD+3}], s{sT} offen {cfg.wflag}")
    def w1_fma(j):
        vq.wait(("W1", j))
        yl, yh, jj = (YL0, YH0, j) if j < 16 else (YL1, YH1, j - 16)
        for d in range(2):
            e(f"v_dot2c_f32_bf16_dpp v{ACCH+2*d}, v{yl}, v{W1+2*j+d} {bc(jj)}")
            e(f"v_dot2c_f32_bf16_dpp v{ACCH+2*d+1}, v{yh}, v{W1+2*j+d} {bc(jj)}")
    def h_reduce():
        e(f"v_permlane32_swap_b32 v{ACCH}, v{ACCH+1}")
        e(f"v_permlane32_swap_b32 v{ACCH+2}, v{ACCH+3}")
        e(f"v_add_f32 v{ACCH}, v{ACCH}, v{ACCH+1}")
        e(f"v_add_f32 v{ACCH+2}, v{ACCH+2}, v{ACCH+3}")
        e(f"v_permlane16_swap_b32 v{ACCH}, v{ACCH+2}")
        e(f"v_add_f32 v{ACCH}, v{ACCH}, v{ACCH+2}")
        perm_reg(vT4, vT1)
        e(f"v_lshl_add_u32 v{vT0}, v{vC}, 2, v{vT4}")
        e(f"v_lshlrev_b32 v{vT0}, 2, v{vT0}")
        e(f"s_lshl_b32 s{sT}, s{sW}, 8")
        e(f"v_add_u32 v{vT0}, s{sT}, v{vT0}")
        e(f"ds_write_b32 v{vT0}, v{ACCH} offset:{L_HP}")
        vq.wait("B1")
        e(f"s_waitcnt lgkmcnt(0)")
        e(f"s_barrier")
        e(f"s_cmp_lg_u32 s{sW}, 2")
        e(f"s_cbranch_scc1 L_noh")
        T = 50
        e(f"v_lshlrev_b32 v{vT0}, 2, v{vLane}")
        for w in range(8):
            e(f"ds_read_b32 v{T+w}, v{vT0} offset:{L_HP + w*256}")
        e(f"s_waitcnt lgkmcnt(0)")
        for w in range(1, 8): e(f"v_add_f32 v{T}, v{T}, v{T+w}")
        x_ = T
        e(f"v_cvt_pk_bf16_f32 v{x_}, 0, v{x_}")
        e(f"v_lshlrev_b32 v{vB1}, 16, v{vB1}")
        e(f"v_add_f32 v{x_}, v{x_}, v{vB1}")
        e(f"v_cvt_pk_bf16_f32 v{x_}, 0, v{x_}")
        e(f"v_mul_f32 v{vT1}, v{x_}, v{x_}")
        e(f"v_mul_f32 v{vT1}, v{vT1}, v{x_}")
        e(f"v_mov_b32 v{vT2}, {f32(0.044715)}")
        e(f"v_fma_f32 v{vT1}, v{vT1}, v{vT2}, v{x_}")
        e(f"v_mul_f32 v{vT1}, {f32(-2.0*math.sqrt(2.0/math.pi)*1.4426950408889634)}, v{vT1}")
        e(f"v_exp_f32 v{vT1}, v{vT1}")
        e(f"v_add_f32 v{vT1}, 1.0, v{vT1}")
        e(f"v_rcp_f32 v{vT1}, v{vT1}")
        e(f"v_mul_f32 v{x_}, v{x_}, v{vT1}")
        e(f"v_cvt_pk_bf16_f32 v{x_}, v{x_}, 0")
        e(f"v_cmp_gt_u32 vcc, 54, v{vLane}")
        e(f"v_cndmask_b32 v{x_}, 0, v{x_}, vcc")
        e(f"v_lshlrev_b32 v{vT0}, 1, v{vLane}")
        e(f"ds_write_b16 v{vT0}, v{x_} offset:{L_HB}")
        e(f"s_waitcnt lgkmcnt(0)")
        A.label("L_noh"); A.hist = []
    def h_read():
        e(f"s_barrier")
        e(f"s_mul_i32 s{sTmp}, s{sW}, 7")
        e(f"v_lshl_add_u32 v{vT1}, v{vC}, 2, v{vR}")
        e(f"v_add_u32 v{vT2}, s{sTmp}, v{vT1}")
        e(f"v_and_b32 v{vT2}, 63, v{vT2}")
        e(f"v_lshlrev_b32 v{vT2}, 1, v{vT2}")
        e(f"ds_read_u16 v{vHL}, v{vT2} offset:{L_HB}")
        e(f"v_cmp_gt_u32 vcc, 7, v{vT1}")
        e(f"s_waitcnt lgkmcnt(0)")
        e(f"v_cndmask_b32 v{vHL}, 0, v{vHL}, vcc")
        e(f"v_lshlrev_b32 v{vHH}, 16, v{vHL}")
    def w2_load(blk):
        if cfg.exp == 'skip': return
        for g in range(2):
            r = W1 + (blk*2 + g)*4
            e(f"s_mov_b32 s{sT}, {g*5120}")
            vq.issue(("W2", blk), f"buffer_load_dwordx4 v[{r}:{r+3}], v{vW2off}, s[{SE}:{SE+3}], s{sT} offen offset:{blk*256} {cfg.wflag}")
    def w2_fma(blk):
        for i in range(8): e(f"v_mov_b32 v{ACC2+i}, 0")
        vq.wait(("W2", blk))
        for g in range(2):
            r = W1 + (blk*2 + g)*4
            for d in range(4):
                e(f"v_dot2c_f32_bf16_dpp v{ACC2+2*d}, v{vHL}, v{r+d} {bc(g)}")
                e(f"v_dot2c_f32_bf16_dpp v{ACC2+2*d+1}, v{vHH}, v{r+d} {bc(g)}")
        reduce8(ACC2, MLPS + 2*blk, MLPS + 2*blk + 1)
    def wo_load(n):
        if cfg.exp == 'skip': return
        g, blk = divmod(n, 5)
        r = W + n*4
        e(f"s_mov_b32 s{sT}, {g*5120}")
        vq.issue(("WO", n), f"buffer_load_dwordx4 v[{r}:{r+3}], v{vWOoff}, s[{SC}:{SC+3}], s{sT} offen offset:{blk*256} {cfg.wflag}")
    def midphase():
        wave_red(vM, vT1, "v_max_f32")
        e(f"s_lshl_b32 s{sT}, s{sW}, 2")
        e(f"v_mov_b32 v{vT0}, s{sT}")
        e(f"ds_write_b32 v{vT0}, v{vM} offset:{L_ML}")
        e(f"s_waitcnt lgkmcnt(0)")
        e(f"s_barrier")
        T = 50
        M8 = 26
        e(f"v_mov_b32 v{vT0}, 0")
        e(f"ds_read_b128 v[{M8}:{M8+3}], v{vT0} offset:{L_ML}")
        e(f"ds_read_b128 v[{M8+4}:{M8+7}], v{vT0} offset:{L_ML+16}")
        e(f"v_lshlrev_b32 v{vT2}, 5, v0")
        e(f"ds_read_b128 v[{T}:{T+3}], v{vT2} offset:{L_SC}")
        e(f"ds_read_b128 v[{T+4}:{T+7}], v{vT2} offset:{L_SC+16}")
        e(f"s_waitcnt lgkmcnt(2)")
        e(f"v_max3_f32 v{vM}, v{M8}, v{M8+1}, v{M8+2}")
        e(f"v_max3_f32 v{vT1}, v{M8+3}, v{M8+4}, v{M8+5}")
        e(f"v_max3_f32 v{vM}, v{vM}, v{M8+6}, v{M8+7}")
        e(f"v_max_f32 v{vM}, v{vM}, v{vT1}")
        e(f"s_waitcnt lgkmcnt(0)")
        for k in range(8): e(f"v_sub_f32 v{T+k}, v{T+k}, v{vM}")
        for k in range(8): e(f"v_mul_f32 v{T+k}, s{sL2E}, v{T+k}")
        for k in range(8): e(f"v_exp_f32 v{T+k}, v{T+k}")
        e(f"ds_write_b128 v{vT2}, v[{T}:{T+3}] offset:{L_SC}")
        e(f"ds_write_b128 v{vT2}, v[{T+4}:{T+7}] offset:{L_SC+16}")
        e(f"v_add_f32 v{vT0}, v{T}, v{T+1}")
        e(f"v_add_f32 v{vT1}, v{T+2}, v{T+3}")
        e(f"v_add_f32 v{vT3}, v{T+4}, v{T+5}")
        e(f"v_add_f32 v{vT4}, v{T+6}, v{T+7}")
        e(f"v_add_f32 v{vT0}, v{vT0}, v{vT1}")
        e(f"v_add_f32 v{vT3}, v{vT3}, v{vT4}")
        e(f"v_add_f32 v{vT0}, v{vT0}, v{vT3}")
        wave_sum(vT0, vT1)
        e(f"s_lshl_b32 s{sT}, s{sW}, 2")
        e(f"v_mov_b32 v{vT1}, s{sT}")
        e(f"ds_write_b32 v{vT1}, v{vT0} offset:{L_ML+32}")
        e(f"s_waitcnt lgkmcnt(0)")
        e(f"s_barrier")
        e(f"v_mov_b32 v{vT0}, 0")
        e(f"ds_read_b128 v[{M8}:{M8+3}], v{vT0} offset:{L_ML+32}")
        e(f"ds_read_b128 v[{M8+4}:{M8+7}], v{vT0} offset:{L_ML+48}")
        e(f"v_subrev_u32 v{vSc}, {8*256}, v{vSc}")
        e(f"s_waitcnt lgkmcnt(0)")
        for k in (0, 2, 4, 6): e(f"v_add_f32 v{M8+k}, v{M8+k}, v{M8+k+1}")
        e(f"v_add_f32 v{M8}, v{M8}, v{M8+2}")
        e(f"v_add_f32 v{M8+4}, v{M8+4}, v{M8+6}")
        e(f"v_add_f32 v{M8}, v{M8}, v{M8+4}")
        e(f"v_rcp_f32 v{vRL}, v{M8}")

    gapsK = {g: [] for g in range(7)}
    gapsV = {g: [] for g in range(7)}
    gapsK[0].append(ln2_and_setup)
    for k in range(5):
        gapsK[k+1].append(lambda k=k: [w1_fma(4*k+i) for i in range(4)])
        gapsK[k].append(lambda k=k: [w1_load(4*k+i) for i in range(4)])
    gapsK[5].append(h_reduce)
    gapsK[5].append(lambda: (w2_load(0), w2_load(1)))
    gapsK[6].append(h_read)
    gapsK[6].append(lambda: (w2_fma(0), w2_fma(1), w2_load(2), w2_load(3)))
    mid_after = [lambda: (w2_fma(2), w2_fma(3), w2_load(4))]
    gapsV[0].append(lambda: w2_fma(4))
    n = 0
    for g in range(15):
        lst = gapsK[g] if g < 7 else (mid_after if g == 7 else gapsV[g-8])
        for _ in range(cfg.wo_sched[g]):
            lst.append(lambda n=n: wo_load(n)); n += 1
    assert n == 20
    T16 = [("T",)]*16
    for g in range(8):
        if g == 7:
            for i in range(4): e(f"s_mov_b32 s{SK+i}, s{SV+i}")
            e(f"s_lshl_b32 s{sOff}, s{sW}, 12")
        A.fence()
        e(f"s_call_b64 s[94:95], {'L_k4v' if (g == 7 and cfg.kflag != cfg.vflag) else 'L_k4'}")
        A.hist = []
        vq.q = list(T16)
        if g < 7:
            for f in gapsK[g]: f()
    stamp(3)
    midphase()
    for f in mid_after: f()
    e(f"s_mov_b32 s{sLast}, 0")
    for g in range(8):
        if g == 7: e(f"s_mov_b32 s{sLast}, 1")
        A.fence()
        e(f"s_call_b64 s[94:95], L_v4")
        A.hist = []
        vq.q = list(T16)
        if g < 7:
            for f in gapsV[g]: f()
    stamp(4)
    reduce8(ACC, vT2, vT3)
    e(f"s_lshl_b32 s{sT}, s{sW}, 9")
    e(f"v_add_u32 v{vT0}, s{sT}, v{vColAddr}")
    e(f"v_add_u32 v{vT0}, {L_OP}, v{vT0}")
    e(f"ds_write2_b32 v{vT0}, v{vT2}, v{vT3} offset0:0 offset1:4")
    for i in range(40): e(f"v_mov_b32 v{ACCO+i}, 0")
    e(f"s_lshl_b32 s{sT}, s{sW}, 4")
    e(f"v_lshl_add_u32 v{vT1}, v{vC}, 2, v{vR}")
    e(f"v_add_u32 v{vT1}, s{sT}, v{vT1}")
    e(f"v_and_b32 v{vT1}, 127, v{vT1}")
    e(f"v_lshlrev_b32 v{vT1}, 2, v{vT1}")
    vq.drain()
    e(f"s_waitcnt lgkmcnt(0)")
    e(f"s_barrier")
    OP = 120
    for w in range(8):
        e(f"ds_read_b32 v{OP+w}, v{vT1} offset:{L_OP + w*512}")
    e(f"s_waitcnt lgkmcnt(0)")
    for k in (0, 2, 4, 6): e(f"v_add_f32 v{OP+k}, v{OP+k}, v{OP+k+1}")
    e(f"v_add_f32 v{OP}, v{OP}, v{OP+2}")
    e(f"v_add_f32 v{OP+4}, v{OP+4}, v{OP+6}")
    e(f"v_add_f32 v{OP}, v{OP}, v{OP+4}")
    e(f"v_cvt_pk_bf16_f32 v{vPL}, v{OP}, 0")
    e(f"v_cvt_pk_bf16_f32 v{vPH}, 0, v{OP}")
    RES = 104
    for blk in range(5):
        for g in range(4):
            r = W + (g*5 + blk)*4
            for d in range(4):
                e(f"v_dot2c_f32_bf16_dpp v{ACCO+8*blk+2*d}, v{vPL}, v{r+d} {bc(g)}")
                e(f"v_dot2c_f32_bf16_dpp v{ACCO+8*blk+2*d+1}, v{vPH}, v{r+d} {bc(g)}")
        if blk > 0:
            reduce8(ACCO + 8*(blk-1), RES + 2*(blk-1), RES + 2*(blk-1) + 1)
    reduce8(ACCO + 32, RES + 8, RES + 9)
    for i in range(10): e(f"v_add_f32 v{RES+i}, v{RES+i}, v{MLPS+i}")
    e(f"s_mul_i32 s{sT}, s{sW}, 2560")
    e(f"v_add_u32 v{vT0}, s{sT}, v{vColAddr}")
    e(f"v_add_u32 v{vT0}, {L_OUT}, v{vT0}")
    for blk in range(5):
        e(f"ds_write_b32 v{vT0}, v{RES+2*blk} offset:{blk*512}")
        e(f"ds_write_b32 v{vT0}, v{RES+2*blk+1} offset:{blk*512+16}")
    e(f"s_waitcnt lgkmcnt(0)")
    e(f"s_barrier")
    stamp(5)
    e(f"s_cmp_ge_u32 s{sW}, 3")
    e(f"s_cbranch_scc1 L_fin")
    e(f"v_cmp_gt_u32 vcc, 160, v0")
    e(f"s_and_saveexec_b64 s[{SAVE}:{SAVE+1}], vcc")
    e(f"v_lshlrev_b32 v{vT0}, 4, v0")
    P = 64
    for w in range(8):
        e(f"ds_read_b128 v[{P+4*w}:{P+4*w+3}], v{vT0} offset:{L_OUT + w*2560}")
    e(f"s_mul_i32 s{sT}, s2, 2560")
    srd(SA, pWS, sT, 2560)
    e(f"s_waitcnt lgkmcnt(0)")
    for step in (1, 2, 4):
        for w in range(0, 8, 2*step):
            for k in range(4):
                e(f"v_add_f32 v{P+4*w+k}, v{P+4*w+k}, v{P+4*(w+step)+k}")
    e(f"buffer_store_dwordx4 v[{P}:{P+3}], v{vT0}, s[{SA}:{SA+3}], 0 offen sc0 sc1")
    e(f"s_mul_i32 s{sT}, s{sB}, 3")
    e(f"s_add_u32 s{sT}, s{sT}, s{sW}")
    e(f"s_lshl_b32 s{sT}, s{sT}, 2")
    e(f"s_mov_b64 s[{SAVE+2}:{SAVE+3}], exec")
    e(f"s_waitcnt vmcnt(0)")
    e(f"s_mov_b64 exec, 1")
    e(f"v_mov_b32 v{vT1}, s{sT}")
    e(f"v_mov_b32 v{vT2}, 1")
    e(f"global_atomic_add v{vT3}, v{vT1}, v{vT2}, s[{pDBG}:{pDBG+1}] sc0 sc1")
    e(f"s_waitcnt vmcnt(0)")
    e(f"v_readfirstlane_b32 s{sT}, v{vT3}")
    e(f"s_mov_b64 exec, s[{SAVE+2}:{SAVE+3}]")
    e(f"s_cmp_lg_u32 s{sT}, 31")
    e(f"s_cbranch_scc1 L_fin")
    e(f"s_mul_i32 s{sT}, s{sB}, {32*2560}")
    srd(SA, pWS, sT, 32*2560)
    for hh in range(32):
        r = 96 + 4*hh
        e(f"s_mov_b32 s{sT}, {hh*2560}")
        e(f"buffer_load_dwordx4 v[{r}:{r+3}], v{vT0}, s[{SA}:{SA+3}], s{sT} offen sc0 sc1")
    e(f"s_mul_i32 s{sT}, s{sB}, 1280")
    srd(SBq, pX, sT, 1280)
    srd(SC, pB2, None, 1280)
    srd(SD, pOUT, sT, 1280)
    e(f"v_lshlrev_b32 v{vT1}, 3, v0")
    e(f"buffer_load_dwordx2 v[{P}:{P+1}], v{vT1}, s[{SBq}:{SBq+3}], 0 offen")
    e(f"buffer_load_dwordx2 v[{P+2}:{P+3}], v{vT1}, s[{SC}:{SC+3}], 0 offen")
    for hh in range(1, 32):
        e(f"s_waitcnt vmcnt({2 + 31 - hh})")
        for k in range(4):
            e(f"v_add_f32 v{96+k}, v{96+k}, v{96+4*hh+k}")
    e(f"s_waitcnt vmcnt(0)")
    for k in range(4):
        src = P + k//2; src2 = P + 2 + k//2
        if k % 2 == 0:
            e(f"v_lshlrev_b32 v{vT2}, 16, v{src}")
            e(f"v_lshlrev_b32 v{vT3}, 16, v{src2}")
        else:
            e(f"v_and_b32 v{vT2}, 0xffff0000, v{src}")
            e(f"v_and_b32 v{vT3}, 0xffff0000, v{src2}")
        e(f"v_add_f32 v{96+k}, v{96+k}, v{vT3}")
        e(f"v_add_f32 v{96+k}, v{96+k}, v{vT2}")
    e(f"v_cvt_pk_bf16_f32 v{P+4}, v96, v97")
    e(f"v_cvt_pk_bf16_f32 v{P+5}, v98, v99")
    e(f"buffer_store_dwordx2 v[{P+4}:{P+5}], v{vT1}, s[{SD}:{SD+3}], 0 offen")
    A.label("L_fin"); A.hist = []
    if cfg.stamps:
        e("s_mov_b64 exec, -1")
        stamp(6)
        e("s_waitcnt lgkmcnt(0)")
        e(f"s_lshl_b32 s{sT}, s2, 3")
        e(f"s_add_u32 s{sT}, s{sT}, s{sW}")
        e(f"s_lshl_b32 s{sT}, s{sT}, 6")
        e(f"s_add_u32 s{sT}, s{sT}, {1<<20}")
        for i in range(14): e(f"v_mov_b32 v{64+i}, s{80+i}")
        e(f"s_getreg_b32 s{sTmp}, hwreg(HW_REG_XCC_ID)")
        e(f"v_mov_b32 v78, s{sTmp}")
        e(f"v_mov_b32 v79, 0")
        e(f"v_mov_b32 v{vT0}, s{sT}")
        e("s_mov_b64 exec, 1")
        for i in range(4):
            e(f"global_store_dwordx4 v{vT0}, v[{64+4*i}:{67+4*i}], s[{pWS}:{pWS+1}] offset:{16*i}")
        e("s_waitcnt vmcnt(0)")
    A.label("L_end")
    e("s_endpgm")
    m = "row_mask:0xf"
    def k4(label, flag):
        A.hist = []
        A.label(label)
        for t in range(4):
            Kb = RING + 16*t
            e("s_waitcnt vmcnt(12)")
            for d in range(4):
                for j in range(4):
                    src2 = "0" if d == 0 else f"v{S+j}"
                    e(f"v_dot2_f32_bf16 v{S+j}, v{Kb+4*j+d}, v{Q+d}, {src2}")
            for j in range(4):
                e(f"buffer_load_dwordx4 v[{Kb+4*j}:{Kb+4*j+3}], v{vL16}, s[{SK}:{SK+3}], s{sOff} offen offset:{j*1024} {flag}")
            e(f"s_add_u32 s{sOff}, s{sOff}, 32768")
            e(f"v_add_f32_dpp v{vU0}, v{S}, v{S} row_mirror {m} bank_mask:0x3")
            e(f"v_add_f32_dpp v{vU1}, v{S+1}, v{S+1} row_mirror {m} bank_mask:0x3")
            e(f"v_add_f32_dpp v{vU0}, v{S+2}, v{S+2} row_mirror {m} bank_mask:0xc")
            e(f"v_add_f32_dpp v{vU1}, v{S+3}, v{S+3} row_mirror {m} bank_mask:0xc")
            e(f"v_add_f32_dpp v{vTt}, v{vU0}, v{vU0} row_half_mirror {m} bank_mask:0x5")
            e(f"v_add_f32_dpp v{vTt}, v{vU1}, v{vU1} row_half_mirror {m} bank_mask:0xa")
            e(f"v_add_f32_dpp v{vTt}, v{vTt}, v{vTt} quad_perm:[1,0,3,2] {m} bank_mask:0xf")
            e(f"v_add_f32_dpp v{vTt}, v{vTt}, v{vTt} quad_perm:[2,3,0,1] {m} bank_mask:0xf")
            e(f"v_cvt_pk_bf16_f32 v{vTt}, 0, v{vTt}")
            e(f"v_mul_f32 v{vTt}, s{sScale}, v{vTt}")
            e(f"v_cvt_pk_bf16_f32 v{vTt}, 0, v{vTt}")
            e(f"ds_write_b32 v{vSc}, v{vTt} offset:{4*t}")
            e(f"v_max_f32 v{vM}, v{vM}, v{vTt}")
        e(f"v_add_u32 v{vSc}, 256, v{vSc}")
        e(f"s_waitcnt lgkmcnt(0)")
        A.fence()
        e("s_setpc_b64 s[94:95]")
    k4("L_k4", cfg.kflag)
    if cfg.kflag != cfg.vflag: k4("L_k4v", cfg.vflag)
    A.hist = []
    A.label("L_v4")
    e(f"ds_read_b128 v[{E4}:{E4+3}], v{vSc}")
    e(f"v_add_u32 v{vSc}, 256, v{vSc}")
    for t in range(4):
        Vb = RING + 16*t
        if t == 0: e("s_waitcnt lgkmcnt(0)")
        e(f"v_mul_f32 v{E4+t}, v{E4+t}, v{vRL}")
        e(f"v_cvt_pk_bf16_f32 v{vPL}, v{E4+t}, 0")
        e(f"v_cvt_pk_bf16_f32 v{vPH}, 0, v{E4+t}")
        e("s_waitcnt vmcnt(12)")
        for j in range(4):
            for d in range(4):
                e(f"v_dot2c_f32_bf16_dpp v{ACC+2*d}, v{vPL}, v{Vb+4*j+d} {bc(4*j)}")
                e(f"v_dot2c_f32_bf16_dpp v{ACC+2*d+1}, v{vPH}, v{Vb+4*j+d} {bc(4*j)}")
        e(f"s_cmp_eq_u32 s{sLast}, 0")
        e(f"s_cbranch_scc0 L_skip{t}")
        for j in range(4):
            e(f"buffer_load_dwordx4 v[{Vb+4*j}:{Vb+4*j+3}], v{vL16}, s[{SK}:{SK+3}], s{sOff} offen offset:{j*1024} {cfg.vflag}")
        e(f"s_add_u32 s{sOff}, s{sOff}, 32768")
        if t < 3:
            e(f"s_branch L_cont{t}")
            A.label(f"L_skip{t}")
            e(f"s_waitcnt vmcnt({8 - 4*t})")
            A.label(f"L_cont{t}")
        else:
            A.label(f"L_skip{t}")
    A.fence()
    e("s_setpc_b64 s[94:95]")
    body = A.text()
    hdr = HDR + f"; @launch grid=(256,1,1) block=(512,1,1) lds={LDS_BYTES}\n"
    pre = f""".amdgcn_target "amdgcn-amd-amdhsa--gfx950"
.text
.globl {KN}
.p2align 8
.type {KN},@function
{KN}:
"""
    post = f""".section .rodata,"a"
.p2align 6
.amdhsa_kernel {KN}
  .amdhsa_next_free_vgpr 256
  .amdhsa_next_free_sgpr 102
  .amdhsa_accum_offset 256
  .amdhsa_group_segment_fixed_size 0
  .amdhsa_kernarg_size 104
  .amdhsa_user_sgpr_count 2
  .amdhsa_user_sgpr_kernarg_segment_ptr 1
  .amdhsa_system_sgpr_workgroup_id_x 1
  .amdhsa_float_denorm_mode_32 3
.end_amdhsa_kernel
"""
    return hdr + pre + body + post

if __name__ == "__main__":
    class C(Cfg): pass
    for a in sys.argv[2:]:
        k, v = a.split("=")
        setattr(C, k, eval(v))
    open(sys.argv[1], "w").write(gen(C))
```

```python
import sys, math, struct
from asmlib import Asm

KN = "parallel_sum__gqa_block_cached__mixer_channel_mlp__decode_kernel"
HDR = open("parallel_sum__gqa_block_cached__mixer_channel_mlp__decode.s.ref").read().split("; Override launch")[0]

def f32(x):
    return "0x%08x" % struct.unpack("<I", struct.pack("<f", x))[0]

class Cfg:
    kflag = "nt"
    vflag = "nt"
    wflag = ""
    stamps = False
    fine = False
    rot = True
    e1 = 4
    e2 = 4
    wo_sched = [1,1,1,1,1,0,0, 1, 2,2,2,2,2,2,2]
    exp = ''
    dbgstamps = False

class VQ:
    def __init__(self, A):
        self.q = []; self.A = A
    def issue(self, tag, text):
        self.A(text); self.q.append(tag)
        assert len(self.q) <= 63, len(self.q)
    def wait(self, tag):
        idx = [i for i, t in enumerate(self.q) if t == tag]
        if not idx: return
        i = idx[-1]
        n = len(self.q) - 1 - i
        self.A(f"s_waitcnt vmcnt({n})")
        self.q = self.q[i+1:]
    def drain(self):
        self.A("s_waitcnt vmcnt(0)"); self.q = []

def gen(cfg=Cfg):
    A = Asm(); e = A
    vq = VQ(A)
    vLane = 1; vL16 = 2; vR = 3; vC = 4
    vT0, vT1, vT2, vT3, vT4, vT5 = 5, 6, 7, 8, 9, 10
    vColAddr = 11
    Q = 12; ACC = 16; vM = 24; vSc = 25; S = 26
    vU0, vU1, vTt = 30, 31, 32
    vRL = 33; E4 = 34
    vPL, vPH = 38, 39
    vHL = 61; vHH = 63; vB1 = 62
    MLPS = 40
    XL0, XH0, XL1, XH1 = 40, 41, 42, 43
    YL0, YH0, YL1, YH1 = 44, 45, 46, 47
    XR = 26
    XU = 50
    vOwn0, vOwn1 = 60, 61
    ACCH = 50; ACC2 = 50
    vW1off, vW2off, vWOoff = 58, 59, 60
    ACCQ = 16
    RING = 64
    W = 128; W1 = 208
    ACCO = 64
    sW = 3; sB = 4; sH = 5; sS = 6; sT = 7
    pX, pK, pV, pWQ, pWO, pBX, pW1, pB1 = 16, 18, 20, 22, 24, 26, 28, 30
    pW2, pB2, pOUT, pDBG = 32, 34, 36, 38
    pWS = 40
    SK, SV, SA, SBq, SC, SD, SE = 44, 48, 52, 56, 60, 64, 68
    sOff = 72; sScale = 74; sL2E = 75; sTmp = 76; sTmp2 = 77; sWr = 78
    SAVE = 96
    sLast = 100
    L_QP = 0; L_HP = 4096; L_QB = 6144; L_HB = 6400; L_ML = 6528; L_OP = 6656; L_OUT = 10752
    L_XN = L_OUT + 20480
    L_SC = L_XN + 1536
    LDS_BYTES = L_SC + 16384

    def srd(dst, ptr, off, size, size_sub=None):
        if off is None:
            e(f"s_mov_b32 s{dst}, s{ptr}")
            e(f"s_and_b32 s{dst+1}, s{ptr+1}, 0xffff")
        else:
            e(f"s_add_u32 s{dst}, s{ptr}, s{off}")
            e(f"s_addc_u32 s{dst+1}, s{ptr+1}, 0")
            e(f"s_and_b32 s{dst+1}, s{dst+1}, 0xffff")
        if size_sub is None: e(f"s_mov_b32 s{dst+2}, {size}")
        else: e(f"s_sub_u32 s{dst+2}, {size}, s{size_sub}")
        e(f"s_mov_b32 s{dst+3}, 0x20000")
    def stamp(i):
        if cfg.stamps: e(f"s_memrealtime s[{80+2*i}:{81+2*i}]")
    def bc(j): return f"row_newbcast:{j} row_mask:0xf bank_mask:0xf"

    e(f"s_cmp_ge_u32 s2, 256")
    e(f"s_cbranch_scc1 L_end")
    stamp(0)
    e(f"s_load_dwordx16 s[16:31], s[0:1], 0")
    e(f"s_load_dwordx8 s[32:39], s[0:1], 64")
    e(f"s_load_dwordx2 s[40:41], s[0:1], 96")
    e(f"v_and_b32 v{vLane}, 63, v0")
    e(f"v_lshrrev_b32 v{vT0}, 6, v0")
    e(f"v_readfirstlane_b32 s{sW}, v{vT0}")
    e(f"s_lshr_b32 s{sB}, s2, 5")
    e(f"s_and_b32 s{sH}, s2, 31")
    e(f"s_and_b32 s{sS}, s{sH}, 7")
    e(f"s_lshl_b32 s{sS}, s{sS}, 2")
    e(f"s_lshr_b32 s{sT}, s{sH}, 3")
    e(f"s_add_u32 s{sS}, s{sS}, s{sT}")
    e(f"v_lshlrev_b32 v{vL16}, 4, v{vLane}")
    e(f"v_lshrrev_b32 v{vR}, 4, v{vLane}")
    e(f"v_and_b32 v{vC}, 15, v{vLane}")
    e(f"s_mov_b32 s{sScale}, {f32(128**-0.5)}")
    e(f"s_mov_b32 s{sL2E}, {f32(1.4426950408889634)}")
    if cfg.rot:
        e(f"s_add_u32 s{sWr}, s{sW}, s{sB}")
        e(f"s_and_b32 s{sWr}, s{sWr}, 7")
    else:
        e(f"s_mov_b32 s{sWr}, s{sW}")
    e(f"s_mul_i32 s{sTmp}, s{sWr}, 80")
    e(f"v_add_u32 v{vT0}, s{sTmp}, v{vR}")
    e(f"v_lshlrev_b32 v{vT5}, 13, v{vT0}")
    e(f"v_lshl_add_u32 v{vT5}, v{vC}, 4, v{vT5}")
    e(f"v_lshlrev_b32 v{vT3}, 2, v{vLane}")
    e(f"s_lshl_b32 s{sOff}, s{sW}, 12")
    e(f"s_waitcnt lgkmcnt(0)")
    e(f"s_lshl_b32 s{sT}, s{sH}, 8")
    srd(SC, pWQ, sT, 640*8192, size_sub=sT)
    e(f"s_lshl_b32 s{sT}, s2, 20")
    srd(SK, pK, sT, 1 << 20)
    e(f"s_cmp_lg_u32 s{sW}, 0")
    e(f"s_cbranch_scc1 L_nox")
    e(f"s_mul_i32 s{sTmp}, s{sB}, 1280")
    srd(SA, pX, sTmp, 1280)
    e(f"buffer_load_dwordx4 v[{XR}:{XR+3}], v{vL16}, s[{SA}:{SA+3}], 0 offen")
    e(f"buffer_load_dword v{XR+4}, v{vT3}, s[{SA}:{SA+3}], 0 offen offset:1024")
    A.label("L_nox"); A.hist = []
    srd(SV, pV, sT, 1 << 20)
    early = []
    for t in range(4):
        for j in range(4):
            def fk(t=t, j=j):
                r = RING + 16*t + 4*j
                vq.issue(("K", t), f"buffer_load_dwordx4 v[{r}:{r+3}], v{vL16}, s[{SK}:{SK+3}], s{sOff} offen offset:{j*1024} {cfg.kflag}")
                if j == 3: e(f"s_add_u32 s{sOff}, s{sOff}, 32768")
            early.append(fk)
    for j in range(20):
        e(f"s_mov_b32 s{sTmp}, {j*32768}")
        vq.issue(("WQ", j), f"buffer_load_dwordx4 v[{W+4*j}:{W+4*j+3}], v{vT5}, s[{SC}:{SC+3}], s{sTmp} offen {cfg.wflag}")
    def wave_red(v, t1, op):
        e(f"{op}_dpp v{v}, v{v}, v{v} quad_perm:[1,0,3,2] row_mask:0xf bank_mask:0xf")
        e(f"{op}_dpp v{v}, v{v}, v{v} quad_perm:[2,3,0,1] row_mask:0xf bank_mask:0xf")
        e(f"{op}_dpp v{v}, v{v}, v{v} row_half_mirror row_mask:0xf bank_mask:0xf")
        e(f"{op}_dpp v{v}, v{v}, v{v} row_mirror row_mask:0xf bank_mask:0xf")
        e(f"v_mov_b32 v{t1}, v{v}")
        e(f"v_permlane16_swap_b32 v{v}, v{t1}")
        e(f"{op} v{v}, v{v}, v{t1}")
        e(f"v_mov_b32 v{t1}, v{v}")
        e(f"v_permlane32_swap_b32 v{v}, v{t1}")
        e(f"{op} v{v}, v{v}, v{t1}")
    def wave_sum(v, t1): wave_red(v, t1, "v_add_f32")
    def unpack_xr():
        for i in range(5):
            e(f"v_lshlrev_b32 v{XU+2*i}, 16, v{XR+i}")
            e(f"v_and_b32 v{XU+2*i+1}, 0xffff0000, v{XR+i}")
    def layernorm(norm_regs):
        s_, t1, mean, mb = vT0, vT1, vT2, vT3
        e(f"v_add_f32 v{s_}, v{XU}, v{XU+1}")
        e(f"v_add_f32 v{t1}, v{XU+2}, v{XU+3}")
        e(f"v_add_f32 v{mean}, v{XU+4}, v{XU+5}")
        e(f"v_add_f32 v{mb}, v{XU+6}, v{XU+7}")
        e(f"v_add_f32 v{s_}, v{s_}, v{t1}")
        e(f"v_add_f32 v{t1}, v{XU+8}, v{XU+9}")
        e(f"v_add_f32 v{mean}, v{mean}, v{mb}")
        e(f"v_add_f32 v{s_}, v{s_}, v{t1}")
        e(f"v_add_f32 v{s_}, v{s_}, v{mean}")
        wave_sum(s_, t1)
        e(f"v_mul_f32 v{mean}, {f32(1.0/640)}, v{s_}")
        e(f"v_cvt_pk_bf16_f32 v{mb}, 0, v{mean}")
        e(f"v_sub_f32 v{t1}, v{XU}, v{mean}")
        e(f"v_mul_f32 v{s_}, v{t1}, v{t1}")
        for i in range(1, 10):
            e(f"v_sub_f32 v{t1}, v{XU+i}, v{mean}")
            e(f"v_fmac_f32 v{s_}, v{t1}, v{t1}")
        wave_sum(s_, t1)
        e(f"v_mul_f32 v{s_}, {f32(1.0/640)}, v{s_}")
        e(f"v_cvt_pk_bf16_f32 v{s_}, 0, v{s_}")
        e(f"v_add_f32 v{s_}, {f32(1e-5)}, v{s_}")
        e(f"v_cvt_pk_bf16_f32 v{s_}, 0, v{s_}")
        e(f"v_sqrt_f32 v{s_}, v{s_}")
        e(f"v_cvt_pk_bf16_f32 v{s_}, 0, v{s_}")
        e(f"v_rcp_f32 v{s_}, v{s_}")
        for r in norm_regs: e(f"v_sub_f32 v{r}, v{r}, v{mb}")
        for r in norm_regs: e(f"v_cvt_pk_bf16_f32 v{r}, 0, v{r}")
        for r in norm_regs: e(f"v_mul_f32 v{r}, v{r}, v{s_}")
    e(f"s_cmp_lg_u32 s{sW}, 0")
    e(f"s_cbranch_scc1 L_noln")
    e(f"s_waitcnt vmcnt(20)")
    unpack_xr()
    layernorm([XU+i for i in range(10)])
    for i in range(5):
        e(f"v_cvt_pk_bf16_f32 v{XR+i}, v{XU+2*i}, v{XU+2*i+1}")
    e(f"v_lshlrev_b32 v{vT3}, 2, v{vLane}")
    e(f"ds_write_b128 v{vL16}, v[{XR}:{XR+3}] offset:{L_XN}")
    e(f"ds_write_b32 v{vT3}, v{XR+4} offset:{L_XN+1024}")
    e(f"s_waitcnt lgkmcnt(0)")
    A.label("L_noln"); A.hist = []
    stamp(1)
    e(f"s_barrier")
    e(f"s_mul_i32 s{sTmp}, s{sWr}, 80")
    e(f"v_lshl_add_u32 v{vT1}, v{vC}, 2, v{vR}")
    e(f"v_add_u32 v{vT2}, s{sTmp}, v{vT1}")
    e(f"v_lshlrev_b32 v{vT2}, 1, v{vT2}")
    e(f"ds_read_u16 v{XL0}, v{vT2} offset:{L_XN}")
    e(f"ds_read_u16 v{XL1}, v{vT2} offset:{L_XN+128}")
    for _ in range(cfg.e1): early.pop(0)()
    for i in range(8): e(f"v_mov_b32 v{ACCQ+i}, 0")
    e(f"s_waitcnt lgkmcnt(0)")
    e(f"v_lshlrev_b32 v{XH0}, 16, v{XL0}")
    e(f"v_lshlrev_b32 v{XH1}, 16, v{XL1}")
    for j in range(20):
        vq.wait(("WQ", j))
        xl, xh, jj = (XL0, XH0, j) if j < 16 else (XL1, XH1, j - 16)
        for d in range(4):
            e(f"v_dot2c_f32_bf16_dpp v{ACCQ+2*d}, v{xl}, v{W+4*j+d} {bc(jj)}")
            e(f"v_dot2c_f32_bf16_dpp v{ACCQ+2*d+1}, v{xh}, v{W+4*j+d} {bc(jj)}")
    def reduce8(a, out0, out1):
        for p in range(4): e(f"v_permlane32_swap_b32 v{a+2*p}, v{a+2*p+1}")
        for p in range(4): e(f"v_add_f32 v{a+2*p}, v{a+2*p}, v{a+2*p+1}")
        e(f"v_permlane16_swap_b32 v{a}, v{a+2}")
        e(f"v_permlane16_swap_b32 v{a+4}, v{a+6}")
        e(f"v_add_f32 v{out0}, v{a}, v{a+2}")
        e(f"v_add_f32 v{out1}, v{a+4}, v{a+6}")
    def perm_reg(dst, t):
        e(f"v_and_b32 v{dst}, 1, v{vR}")
        e(f"v_lshlrev_b32 v{dst}, 1, v{dst}")
        e(f"v_lshrrev_b32 v{t}, 1, v{vR}")
        e(f"v_or_b32 v{dst}, v{dst}, v{t}")
    perm_reg(vT4, vT1)
    e(f"v_lshl_add_u32 v{vT0}, v{vC}, 3, v{vT4}")
    e(f"v_lshlrev_b32 v{vColAddr}, 2, v{vT0}")
    reduce8(ACCQ, vT2, vT3)
    e(f"s_lshl_b32 s{sT}, s{sW}, 9")
    e(f"v_add_u32 v{vT0}, s{sT}, v{vColAddr}")
    e(f"ds_write2_b32 v{vT0}, v{vT2}, v{vT3} offset0:{L_QP//4} offset1:{L_QP//4+4}")
    for _ in range(cfg.e2): early.pop(0)()
    e(f"s_waitcnt lgkmcnt(0)")
    e(f"s_barrier")
    e(f"s_cmp_ge_u32 s{sW}, 2")
    e(f"s_cbranch_scc1 L_s2done")
    e(f"v_lshlrev_b32 v{vT0}, 2, v0")
    for w in range(8):
        e(f"ds_read_b32 v{XU+w}, v{vT0} offset:{L_QP + w*512}")
    e(f"s_waitcnt lgkmcnt(0)")
    e(f"v_add_f32 v{XU}, v{XU}, v{XU+1}")
    e(f"v_add_f32 v{XU+2}, v{XU+2}, v{XU+3}")
    e(f"v_add_f32 v{XU+4}, v{XU+4}, v{XU+5}")
    e(f"v_add_f32 v{XU+6}, v{XU+6}, v{XU+7}")
    e(f"v_add_f32 v{XU}, v{XU}, v{XU+2}")
    e(f"v_add_f32 v{XU+4}, v{XU+4}, v{XU+6}")
    e(f"v_add_f32 v{XU}, v{XU}, v{XU+4}")
    e(f"v_cvt_pk_bf16_f32 v{XU}, v{XU}, 0")
    e(f"v_lshlrev_b32 v{vT0}, 1, v0")
    e(f"ds_write_b16 v{vT0}, v{XU} offset:{L_QB}")
    e(f"s_waitcnt lgkmcnt(0)")
    A.label("L_s2done"); A.hist = []
    e(f"s_barrier")
    e(f"v_lshlrev_b32 v{vT0}, 4, v{vC}")
    e(f"ds_read_b128 v[{Q}:{Q+3}], v{vT0} offset:{L_QB}")
    while early: early.pop(0)()
    e(f"v_lshrrev_b32 v{vT0}, 2, v{vC}")
    e(f"v_lshl_add_u32 v{vT0}, v{vR}, 2, v{vT0}")
    e(f"s_lshl_b32 s{sT}, s{sW}, 7")
    e(f"v_add_u32 v{vT0}, s{sT}, v{vT0}")
    e(f"v_lshlrev_b32 v{vSc}, 4, v{vT0}")
    e(f"v_add_u32 v{vSc}, {L_SC}, v{vSc}")
    for i in range(8): e(f"v_mov_b32 v{ACC+i}, 0")
    e(f"v_mov_b32 v{vM}, 0xff800000")
    e(f"s_waitcnt lgkmcnt(0)")
    stamp(2)

    def ln2_and_setup():
        e(f"v_lshlrev_b32 v{vT3}, 2, v{vLane}")
        e(f"ds_read_b128 v[{XR}:{XR+3}], v{vL16} offset:{L_XN}")
        e(f"ds_read_b32 v{XR+4}, v{vT3} offset:{L_XN+1024}")
        e(f"s_waitcnt lgkmcnt(0)")
        unpack_xr()
        e(f"v_mov_b32 v{vOwn0}, v{XH0}")
        e(f"v_mov_b32 v{vOwn1}, v{XH1}")
        layernorm([vOwn0, vOwn1])
        e(f"v_cvt_pk_bf16_f32 v{YH0}, 0, v{vOwn0}")
        e(f"v_cvt_pk_bf16_f32 v{YH1}, 0, v{vOwn1}")
        e(f"v_lshrrev_b32 v{YL0}, 16, v{YH0}")
        e(f"v_lshrrev_b32 v{YL1}, 16, v{YH1}")
        for i in range(4): e(f"v_mov_b32 v{ACCH+i}, 0")
        e(f"s_mul_i32 s{sTmp2}, s{sS}, 108")
        srd(SD, pW1, sTmp2, 640*3456, size_sub=sTmp2)
        srd(SBq, pB1, sTmp2, 3456, size_sub=sTmp2)
        e(f"s_mul_i32 s{sT}, s{sS}, {54*1280}")
        srd(SE, pW2, sT, 1728*1280, size_sub=sT)
        e(f"s_mul_i32 s{sT}, s{sH}, {128*1280}")
        srd(SC, pWO, sT, 4096*1280, size_sub=sT)
        e(f"s_mul_i32 s{sTmp}, s{sWr}, 80")
        e(f"v_add_u32 v{vT0}, s{sTmp}, v{vR}")
        e(f"s_mov_b32 s{sT}, 3456")
        e(f"v_mul_lo_u32 v{vW1off}, v{vT0}, s{sT}")
        e(f"v_lshl_add_u32 v{vW1off}, v{vC}, 3, v{vW1off}")
        e(f"s_mul_i32 s{sTmp}, s{sW}, 7")
        e(f"v_add_u32 v{vT0}, s{sTmp}, v{vR}")
        e(f"s_mov_b32 s{sT}, 1280")
        e(f"v_mul_lo_u32 v{vW2off}, v{vT0}, s{sT}")
        e(f"v_lshl_add_u32 v{vW2off}, v{vC}, 4, v{vW2off}")
        e(f"s_lshl_b32 s{sTmp}, s{sW}, 4")
        e(f"v_add_u32 v{vT0}, s{sTmp}, v{vR}")
        e(f"v_mul_lo_u32 v{vWOoff}, v{vT0}, s{sT}")
        e(f"v_lshl_add_u32 v{vWOoff}, v{vC}, 4, v{vWOoff}")
        e(f"v_lshlrev_b32 v{vT4}, 1, v{vLane}")
        vq.issue("B1", f"buffer_load_ushort v{vB1}, v{vT4}, s[{SBq}:{SBq+3}], 0 offen")
    def w1_load(j):
        if cfg.exp == 'skip': return
        e(f"s_mov_b32 s{sT}, {j*13824}")
        vq.issue(("W1", j), f"buffer_load_dwordx2 v[{W1+2*j}:{W1+2*j+1}], v{vW1off}, s[{SD}:{SD+3}], s{sT} offen {cfg.wflag}")
    def w1_fma(j):
        vq.wait(("W1", j))
        yl, yh, jj = (YL0, YH0, j) if j < 16 else (YL1, YH1, j - 16)
        for d in range(2):
            e(f"v_dot2c_f32_bf16_dpp v{ACCH+2*d}, v{yl}, v{W1+2*j+d} {bc(jj)}")
            e(f"v_dot2c_f32_bf16_dpp v{ACCH+2*d+1}, v{yh}, v{W1+2*j+d} {bc(jj)}")
    def h_reduce():
        e(f"v_permlane32_swap_b32 v{ACCH}, v{ACCH+1}")
        e(f"v_permlane32_swap_b32 v{ACCH+2}, v{ACCH+3}")
        e(f"v_add_f32 v{ACCH}, v{ACCH}, v{ACCH+1}")
        e(f"v_add_f32 v{ACCH+2}, v{ACCH+2}, v{ACCH+3}")
        e(f"v_permlane16_swap_b32 v{ACCH}, v{ACCH+2}")
        e(f"v_add_f32 v{ACCH}, v{ACCH}, v{ACCH+2}")
        perm_reg(vT4, vT1)
        e(f"v_lshl_add_u32 v{vT0}, v{vC}, 2, v{vT4}")
        e(f"v_lshlrev_b32 v{vT0}, 2, v{vT0}")
        e(f"s_lshl_b32 s{sT}, s{sW}, 8")
        e(f"v_add_u32 v{vT0}, s{sT}, v{vT0}")
        e(f"ds_write_b32 v{vT0}, v{ACCH} offset:{L_HP}")
        vq.wait("B1")
        e(f"s_waitcnt lgkmcnt(0)")
        e(f"s_barrier")
        e(f"s_cmp_lg_u32 s{sW}, 2")
        e(f"s_cbranch_scc1 L_noh")
        T = 50
        e(f"v_lshlrev_b32 v{vT0}, 2, v{vLane}")
        for w in range(8):
            e(f"ds_read_b32 v{T+w}, v{vT0} offset:{L_HP + w*256}")
        e(f"s_waitcnt lgkmcnt(0)")
        for w in range(1, 8): e(f"v_add_f32 v{T}, v{T}, v{T+w}")
        x_ = T
        e(f"v_cvt_pk_bf16_f32 v{x_}, 0, v{x_}")
        e(f"v_lshlrev_b32 v{vB1}, 16, v{vB1}")
        e(f"v_add_f32 v{x_}, v{x_}, v{vB1}")
        e(f"v_cvt_pk_bf16_f32 v{x_}, 0, v{x_}")
        e(f"v_mul_f32 v{vT1}, v{x_}, v{x_}")
        e(f"v_mul_f32 v{vT1}, v{vT1}, v{x_}")
        e(f"v_mov_b32 v{vT2}, {f32(0.044715)}")
        e(f"v_fma_f32 v{vT1}, v{vT1}, v{vT2}, v{x_}")
        e(f"v_mul_f32 v{vT1}, {f32(-2.0*math.sqrt(2.0/math.pi)*1.4426950408889634)}, v{vT1}")
        e(f"v_exp_f32 v{vT1}, v{vT1}")
        e(f"v_add_f32 v{vT1}, 1.0, v{vT1}")
        e(f"v_rcp_f32 v{vT1}, v{vT1}")
        e(f"v_mul_f32 v{x_}, v{x_}, v{vT1}")
        e(f"v_cvt_pk_bf16_f32 v{x_}, v{x_}, 0")
        e(f"v_cmp_gt_u32 vcc, 54, v{vLane}")
        e(f"v_cndmask_b32 v{x_}, 0, v{x_}, vcc")
        e(f"v_lshlrev_b32 v{vT0}, 1, v{vLane}")
        e(f"ds_write_b16 v{vT0}, v{x_} offset:{L_HB}")
        e(f"s_waitcnt lgkmcnt(0)")
        A.label("L_noh"); A.hist = []
    def h_read():
        e(f"s_barrier")
        e(f"s_mul_i32 s{sTmp}, s{sW}, 7")
        e(f"v_lshl_add_u32 v{vT1}, v{vC}, 2, v{vR}")
        e(f"v_add_u32 v{vT2}, s{sTmp}, v{vT1}")
        e(f"v_and_b32 v{vT2}, 63, v{vT2}")
        e(f"v_lshlrev_b32 v{vT2}, 1, v{vT2}")
        e(f"ds_read_u16 v{vHL}, v{vT2} offset:{L_HB}")
        e(f"v_cmp_gt_u32 vcc, 7, v{vT1}")
        e(f"s_waitcnt lgkmcnt(0)")
        e(f"v_cndmask_b32 v{vHL}, 0, v{vHL}, vcc")
        e(f"v_lshlrev_b32 v{vHH}, 16, v{vHL}")
    def w2_load(blk):
        if cfg.exp == 'skip': return
        for g in range(2):
            r = W1 + (blk*2 + g)*4
            e(f"s_mov_b32 s{sT}, {g*5120}")
            vq.issue(("W2", blk), f"buffer_load_dwordx4 v[{r}:{r+3}], v{vW2off}, s[{SE}:{SE+3}], s{sT} offen offset:{blk*256} {cfg.wflag}")
    def w2_fma(blk):
        for i in range(8): e(f"v_mov_b32 v{ACC2+i}, 0")
        vq.wait(("W2", blk))
        for g in range(2):
            r = W1 + (blk*2 + g)*4
            for d in range(4):
                e(f"v_dot2c_f32_bf16_dpp v{ACC2+2*d}, v{vHL}, v{r+d} {bc(g)}")
                e(f"v_dot2c_f32_bf16_dpp v{ACC2+2*d+1}, v{vHH}, v{r+d} {bc(g)}")
        reduce8(ACC2, MLPS + 2*blk, MLPS + 2*blk + 1)
    def wo_load(n):
        if cfg.exp == 'skip': return
        g, blk = divmod(n, 5)
        r = W + n*4
        e(f"s_mov_b32 s{sT}, {g*5120}")
        vq.issue(("WO", n), f"buffer_load_dwordx4 v[{r}:{r+3}], v{vWOoff}, s[{SC}:{SC+3}], s{sT} offen offset:{blk*256} {cfg.wflag}")
    def midphase():
        wave_red(vM, vT1, "v_max_f32")
        e(f"s_lshl_b32 s{sT}, s{sW}, 2")
        e(f"v_mov_b32 v{vT0}, s{sT}")
        e(f"ds_write_b32 v{vT0}, v{vM} offset:{L_ML}")
        e(f"s_waitcnt lgkmcnt(0)")
        e(f"s_barrier")
        T = 50
        M8 = 26
        e(f"v_mov_b32 v{vT0}, 0")
        e(f"ds_read_b128 v[{M8}:{M8+3}], v{vT0} offset:{L_ML}")
        e(f"ds_read_b128 v[{M8+4}:{M8+7}], v{vT0} offset:{L_ML+16}")
        e(f"v_lshlrev_b32 v{vT2}, 5, v0")
        e(f"ds_read_b128 v[{T}:{T+3}], v{vT2} offset:{L_SC}")
        e(f"ds_read_b128 v[{T+4}:{T+7}], v{vT2} offset:{L_SC+16}")
        e(f"s_waitcnt lgkmcnt(2)")
        e(f"v_max3_f32 v{vM}, v{M8}, v{M8+1}, v{M8+2}")
        e(f"v_max3_f32 v{vT1}, v{M8+3}, v{M8+4}, v{M8+5}")
        e(f"v_max3_f32 v{vM}, v{vM}, v{M8+6}, v{M8+7}")
        e(f"v_max_f32 v{vM}, v{vM}, v{vT1}")
        e(f"s_waitcnt lgkmcnt(0)")
        for k in range(8): e(f"v_sub_f32 v{T+k}, v{T+k}, v{vM}")
        for k in range(8): e(f"v_mul_f32 v{T+k}, s{sL2E}, v{T+k}")
        for k in range(8): e(f"v_exp_f32 v{T+k}, v{T+k}")
        e(f"ds_write_b128 v{vT2}, v[{T}:{T+3}] offset:{L_SC}")
        e(f"ds_write_b128 v{vT2}, v[{T+4}:{T+7}] offset:{L_SC+16}")
        e(f"v_add_f32 v{vT0}, v{T}, v{T+1}")
        e(f"v_add_f32 v{vT1}, v{T+2}, v{T+3}")
        e(f"v_add_f32 v{vT3}, v{T+4}, v{T+5}")
        e(f"v_add_f32 v{vT4}, v{T+6}, v{T+7}")
        e(f"v_add_f32 v{vT0}, v{vT0}, v{vT1}")
        e(f"v_add_f32 v{vT3}, v{vT3}, v{vT4}")
        e(f"v_add_f32 v{vT0}, v{vT0}, v{vT3}")
        wave_sum(vT0, vT1)
        e(f"s_lshl_b32 s{sT}, s{sW}, 2")
        e(f"v_mov_b32 v{vT1}, s{sT}")
        e(f"ds_write_b32 v{vT1}, v{vT0} offset:{L_ML+32}")
        e(f"s_waitcnt lgkmcnt(0)")
        e(f"s_barrier")
        e(f"v_mov_b32 v{vT0}, 0")
        e(f"ds_read_b128 v[{M8}:{M8+3}], v{vT0} offset:{L_ML+32}")
        e(f"ds_read_b128 v[{M8+4}:{M8+7}], v{vT0} offset:{L_ML+48}")
        e(f"v_subrev_u32 v{vSc}, {8*256}, v{vSc}")
        e(f"s_waitcnt lgkmcnt(0)")
        for k in (0, 2, 4, 6): e(f"v_add_f32 v{M8+k}, v{M8+k}, v{M8+k+1}")
        e(f"v_add_f32 v{M8}, v{M8}, v{M8+2}")
        e(f"v_add_f32 v{M8+4}, v{M8+4}, v{M8+6}")
        e(f"v_add_f32 v{M8}, v{M8}, v{M8+4}")
        e(f"v_rcp_f32 v{vRL}, v{M8}")

    gapsK = {g: [] for g in range(7)}
    gapsV = {g: [] for g in range(7)}
    gapsK[0].append(ln2_and_setup)
    for k in range(5):
        gapsK[k+1].append(lambda k=k: [w1_fma(4*k+i) for i in range(4)])
        gapsK[k].append(lambda k=k: [w1_load(4*k+i) for i in range(4)])
    gapsK[5].append(h_reduce)
    gapsK[5].append(lambda: (w2_load(0), w2_load(1)))
    gapsK[6].append(h_read)
    gapsK[6].append(lambda: (w2_fma(0), w2_fma(1), w2_load(2), w2_load(3)))
    mid_after = [lambda: (w2_fma(2), w2_fma(3), w2_load(4))]
    gapsV[0].append(lambda: w2_fma(4))
    n = 0
    for g in range(15):
        lst = gapsK[g] if g < 7 else (mid_after if g == 7 else gapsV[g-8])
        for _ in range(cfg.wo_sched[g]):
            lst.append(lambda n=n: wo_load(n)); n += 1
    assert n == 20
    T16 = [("T",)]*16
    for g in range(8):
        if g == 7:
            for i in range(4): e(f"s_mov_b32 s{SK+i}, s{SV+i}")
            e(f"s_lshl_b32 s{sOff}, s{sW}, 12")
        A.fence()
        e(f"s_call_b64 s[94:95], {'L_k4v' if (g == 7 and cfg.kflag != cfg.vflag) else 'L_k4'}")
        A.hist = []
        vq.q = list(T16)
        if g < 7:
            for f in gapsK[g]: f()
    stamp(3)
    midphase()
    for f in mid_after: f()
    e(f"s_mov_b32 s{sLast}, 0")
    for g in range(8):
        if g == 7: e(f"s_mov_b32 s{sLast}, 1")
        A.fence()
        e(f"s_call_b64 s[94:95], L_v4")
        A.hist = []
        vq.q = list(T16)
        if g < 7:
            for f in gapsV[g]: f()
    stamp(4)
    reduce8(ACC, vT2, vT3)
    e(f"s_lshl_b32 s{sT}, s{sW}, 9")
    e(f"v_add_u32 v{vT0}, s{sT}, v{vColAddr}")
    e(f"v_add_u32 v{vT0}, {L_OP}, v{vT0}")
    e(f"ds_write2_b32 v{vT0}, v{vT2}, v{vT3} offset0:0 offset1:4")
    for i in range(40): e(f"v_mov_b32 v{ACCO+i}, 0")
    e(f"s_lshl_b32 s{sT}, s{sW}, 4")
    e(f"v_lshl_add_u32 v{vT1}, v{vC}, 2, v{vR}")
    e(f"v_add_u32 v{vT1}, s{sT}, v{vT1}")
    e(f"v_and_b32 v{vT1}, 127, v{vT1}")
    e(f"v_lshlrev_b32 v{vT1}, 2, v{vT1}")
    vq.drain()
    e(f"s_waitcnt lgkmcnt(0)")
    e(f"s_barrier")
    OP = 120
    for w in range(8):
        e(f"ds_read_b32 v{OP+w}, v{vT1} offset:{L_OP + w*512}")
    e(f"s_waitcnt lgkmcnt(0)")
    for k in (0, 2, 4, 6): e(f"v_add_f32 v{OP+k}, v{OP+k}, v{OP+k+1}")
    e(f"v_add_f32 v{OP}, v{OP}, v{OP+2}")
    e(f"v_add_f32 v{OP+4}, v{OP+4}, v{OP+6}")
    e(f"v_add_f32 v{OP}, v{OP}, v{OP+4}")
    e(f"v_cvt_pk_bf16_f32 v{vPL}, v{OP}, 0")
    e(f"v_cvt_pk_bf16_f32 v{vPH}, 0, v{OP}")
    RES = 104
    for blk in range(5):
        for g in range(4):
            r = W + (g*5 + blk)*4
            for d in range(4):
                e(f"v_dot2c_f32_bf16_dpp v{ACCO+8*blk+2*d}, v{vPL}, v{r+d} {bc(g)}")
                e(f"v_dot2c_f32_bf16_dpp v{ACCO+8*blk+2*d+1}, v{vPH}, v{r+d} {bc(g)}")
        if blk > 0:
            reduce8(ACCO + 8*(blk-1), RES + 2*(blk-1), RES + 2*(blk-1) + 1)
    reduce8(ACCO + 32, RES + 8, RES + 9)
    for i in range(10): e(f"v_add_f32 v{RES+i}, v{RES+i}, v{MLPS+i}")
    e(f"s_mul_i32 s{sT}, s{sW}, 2560")
    e(f"v_add_u32 v{vT0}, s{sT}, v{vColAddr}")
    e(f"v_add_u32 v{vT0}, {L_OUT}, v{vT0}")
    for blk in range(5):
        e(f"ds_write_b32 v{vT0}, v{RES+2*blk} offset:{blk*512}")
        e(f"ds_write_b32 v{vT0}, v{RES+2*blk+1} offset:{blk*512+16}")
    e(f"s_waitcnt lgkmcnt(0)")
    e(f"s_barrier")
    stamp(5)
    e(f"s_cmp_ge_u32 s{sW}, 3")
    e(f"s_cbranch_scc1 L_fin")
    e(f"v_cmp_gt_u32 vcc, 160, v0")
    e(f"s_and_saveexec_b64 s[{SAVE}:{SAVE+1}], vcc")
    e(f"v_lshlrev_b32 v{vT0}, 4, v0")
    P = 64
    for w in range(8):
        e(f"ds_read_b128 v[{P+4*w}:{P+4*w+3}], v{vT0} offset:{L_OUT + w*2560}")
    e(f"s_mul_i32 s{sT}, s2, 2560")
    srd(SA, pWS, sT, 2560)
    e(f"s_waitcnt lgkmcnt(0)")
    for step in (1, 2, 4):
        for w in range(0, 8, 2*step):
            for k in range(4):
                e(f"v_add_f32 v{P+4*w+k}, v{P+4*w+k}, v{P+4*(w+step)+k}")
    e(f"buffer_store_dwordx4 v[{P}:{P+3}], v{vT0}, s[{SA}:{SA+3}], 0 offen sc0 sc1")
    e(f"s_mul_i32 s{sT}, s{sB}, 3")
    e(f"s_add_u32 s{sT}, s{sT}, s{sW}")
    e(f"s_lshl_b32 s{sT}, s{sT}, 2")
    if cfg.dbgstamps: e(f"s_add_u32 s{sT}, s{sT}, 128")
    e(f"s_mov_b64 s[{SAVE+2}:{SAVE+3}], exec")
    e(f"s_waitcnt vmcnt(0)")
    e(f"s_mov_b64 exec, 1")
    e(f"v_mov_b32 v{vT1}, s{sT}")
    e(f"v_mov_b32 v{vT2}, 1")
    e(f"global_atomic_add v{vT3}, v{vT1}, v{vT2}, s[{pDBG}:{pDBG+1}] sc0 sc1")
    e(f"s_waitcnt vmcnt(0)")
    e(f"v_readfirstlane_b32 s{sT}, v{vT3}")
    e(f"s_mov_b64 exec, s[{SAVE+2}:{SAVE+3}]")
    e(f"s_cmp_lg_u32 s{sT}, 31")
    e(f"s_cbranch_scc1 L_fin")
    e(f"s_mul_i32 s{sT}, s{sB}, {32*2560}")
    srd(SA, pWS, sT, 32*2560)
    for hh in range(32):
        r = 96 + 4*hh
        e(f"s_mov_b32 s{sT}, {hh*2560}")
        e(f"buffer_load_dwordx4 v[{r}:{r+3}], v{vT0}, s[{SA}:{SA+3}], s{sT} offen sc0 sc1")
    e(f"s_mul_i32 s{sT}, s{sB}, 1280")
    srd(SBq, pX, sT, 1280)
    srd(SC, pB2, None, 1280)
    srd(SD, pOUT, sT, 1280)
    e(f"v_lshlrev_b32 v{vT1}, 3, v0")
    e(f"buffer_load_dwordx2 v[{P}:{P+1}], v{vT1}, s[{SBq}:{SBq+3}], 0 offen")
    e(f"buffer_load_dwordx2 v[{P+2}:{P+3}], v{vT1}, s[{SC}:{SC+3}], 0 offen")
    for hh in range(1, 32):
        e(f"s_waitcnt vmcnt({2 + 31 - hh})")
        for k in range(4):
            e(f"v_add_f32 v{96+k}, v{96+k}, v{96+4*hh+k}")
    e(f"s_waitcnt vmcnt(0)")
    for k in range(4):
        src = P + k//2; src2 = P + 2 + k//2
        if k % 2 == 0:
            e(f"v_lshlrev_b32 v{vT2}, 16, v{src}")
            e(f"v_lshlrev_b32 v{vT3}, 16, v{src2}")
        else:
            e(f"v_and_b32 v{vT2}, 0xffff0000, v{src}")
            e(f"v_and_b32 v{vT3}, 0xffff0000, v{src2}")
        e(f"v_add_f32 v{96+k}, v{96+k}, v{vT3}")
        e(f"v_add_f32 v{96+k}, v{96+k}, v{vT2}")
    e(f"v_cvt_pk_bf16_f32 v{P+4}, v96, v97")
    e(f"v_cvt_pk_bf16_f32 v{P+5}, v98, v99")
    e(f"buffer_store_dwordx2 v[{P+4}:{P+5}], v{vT1}, s[{SD}:{SD+3}], 0 offen")
    A.label("L_fin"); A.hist = []
    if cfg.stamps:
        e("s_mov_b64 exec, -1")
        stamp(6)
        e("s_waitcnt lgkmcnt(0)")
        if cfg.dbgstamps:
            e("s_mov_b64 exec, 1")
            for i in range(7):
                e(f"v_mov_b32 v64, s{80+2*i}")
                e(f"v_not_b32 v65, v64")
                e(f"v_mov_b32 v66, {8*i}")
                e(f"global_atomic_umax v66, v64, s[{pDBG}:{pDBG+1}] sc1")
                e(f"global_atomic_umax v66, v65, s[{pDBG}:{pDBG+1}] offset:4 sc1")
                e("s_waitcnt vmcnt(0)")
            e("s_mov_b64 exec, -1")
        e(f"s_lshl_b32 s{sT}, s2, 3")
        e(f"s_add_u32 s{sT}, s{sT}, s{sW}")
        e(f"s_lshl_b32 s{sT}, s{sT}, 6")
        e(f"s_add_u32 s{sT}, s{sT}, {1<<20}")
        for i in range(14): e(f"v_mov_b32 v{64+i}, s{80+i}")
        e(f"s_getreg_b32 s{sTmp}, hwreg(HW_REG_XCC_ID)")
        e(f"v_mov_b32 v78, s{sTmp}")
        e(f"v_mov_b32 v79, 0")
        e(f"v_mov_b32 v{vT0}, s{sT}")
        e("s_mov_b64 exec, 1")
        for i in range(4):
            e(f"global_store_dwordx4 v{vT0}, v[{64+4*i}:{67+4*i}], s[{pWS}:{pWS+1}] offset:{16*i}")
        e("s_waitcnt vmcnt(0)")
    A.label("L_end")
    e("s_endpgm")
    m = "row_mask:0xf"
    def k4(label, flag):
        A.hist = []
        A.label(label)
        for t in range(4):
            Kb = RING + 16*t
            e("s_waitcnt vmcnt(12)")
            for d in range(4):
                for j in range(4):
                    src2 = "0" if d == 0 else f"v{S+j}"
                    e(f"v_dot2_f32_bf16 v{S+j}, v{Kb+4*j+d}, v{Q+d}, {src2}")
            for j in range(4):
                e(f"buffer_load_dwordx4 v[{Kb+4*j}:{Kb+4*j+3}], v{vL16}, s[{SK}:{SK+3}], s{sOff} offen offset:{j*1024} {flag}")
            e(f"s_add_u32 s{sOff}, s{sOff}, 32768")
            e(f"v_add_f32_dpp v{vU0}, v{S}, v{S} row_mirror {m} bank_mask:0x3")
            e(f"v_add_f32_dpp v{vU1}, v{S+1}, v{S+1} row_mirror {m} bank_mask:0x3")
            e(f"v_add_f32_dpp v{vU0}, v{S+2}, v{S+2} row_mirror {m} bank_mask:0xc")
            e(f"v_add_f32_dpp v{vU1}, v{S+3}, v{S+3} row_mirror {m} bank_mask:0xc")
            e(f"v_add_f32_dpp v{vTt}, v{vU0}, v{vU0} row_half_mirror {m} bank_mask:0x5")
            e(f"v_add_f32_dpp v{vTt}, v{vU1}, v{vU1} row_half_mirror {m} bank_mask:0xa")
            e(f"v_add_f32_dpp v{vTt}, v{vTt}, v{vTt} quad_perm:[1,0,3,2] {m} bank_mask:0xf")
            e(f"v_add_f32_dpp v{vTt}, v{vTt}, v{vTt} quad_perm:[2,3,0,1] {m} bank_mask:0xf")
            e(f"v_cvt_pk_bf16_f32 v{vTt}, 0, v{vTt}")
            e(f"v_mul_f32 v{vTt}, s{sScale}, v{vTt}")
            e(f"v_cvt_pk_bf16_f32 v{vTt}, 0, v{vTt}")
            e(f"ds_write_b32 v{vSc}, v{vTt} offset:{4*t}")
            e(f"v_max_f32 v{vM}, v{vM}, v{vTt}")
        e(f"v_add_u32 v{vSc}, 256, v{vSc}")
        e(f"s_waitcnt lgkmcnt(0)")
        A.fence()
        e("s_setpc_b64 s[94:95]")
    k4("L_k4", cfg.kflag)
    if cfg.kflag != cfg.vflag: k4("L_k4v", cfg.vflag)
    A.hist = []
    A.label("L_v4")
    e(f"ds_read_b128 v[{E4}:{E4+3}], v{vSc}")
    e(f"v_add_u32 v{vSc}, 256, v{vSc}")
    for t in range(4):
        Vb = RING + 16*t
        if t == 0: e("s_waitcnt lgkmcnt(0)")
        e(f"v_mul_f32 v{E4+t}, v{E4+t}, v{vRL}")
        e(f"v_cvt_pk_bf16_f32 v{vPL}, v{E4+t}, 0")
        e(f"v_cvt_pk_bf16_f32 v{vPH}, 0, v{E4+t}")
        e("s_waitcnt vmcnt(12)")
        for j in range(4):
            for d in range(4):
                e(f"v_dot2c_f32_bf16_dpp v{ACC+2*d}, v{vPL}, v{Vb+4*j+d} {bc(4*j)}")
                e(f"v_dot2c_f32_bf16_dpp v{ACC+2*d+1}, v{vPH}, v{Vb+4*j+d} {bc(4*j)}")
        e(f"s_cmp_eq_u32 s{sLast}, 0")
        e(f"s_cbranch_scc0 L_skip{t}")
        for j in range(4):
            e(f"buffer_load_dwordx4 v[{Vb+4*j}:{Vb+4*j+3}], v{vL16}, s[{SK}:{SK+3}], s{sOff} offen offset:{j*1024} {cfg.vflag}")
        e(f"s_add_u32 s{sOff}, s{sOff}, 32768")
        if t < 3:
            e(f"s_branch L_cont{t}")
            A.label(f"L_skip{t}")
            e(f"s_waitcnt vmcnt({8 - 4*t})")
            A.label(f"L_cont{t}")
        else:
            A.label(f"L_skip{t}")
    A.fence()
    e("s_setpc_b64 s[94:95]")
    body = A.text()
    hdr = HDR + f"; @launch grid=(256,1,1) block=(512,1,1) lds={LDS_BYTES}\n"
    pre = f""".amdgcn_target "amdgcn-amd-amdhsa--gfx950"
.text
.globl {KN}
.p2align 8
.type {KN},@function
{KN}:
"""
    post = f""".section .rodata,"a"
.p2align 6
.amdhsa_kernel {KN}
  .amdhsa_next_free_vgpr 256
  .amdhsa_next_free_sgpr 102
  .amdhsa_accum_offset 256
  .amdhsa_group_segment_fixed_size 0
  .amdhsa_kernarg_size 104
  .amdhsa_user_sgpr_count 2
  .amdhsa_user_sgpr_kernarg_segment_ptr 1
  .amdhsa_system_sgpr_workgroup_id_x 1
  .amdhsa_float_denorm_mode_32 3
.end_amdhsa_kernel
"""
    return hdr + pre + body + post

if __name__ == "__main__":
    class C(Cfg): pass
    for a in sys.argv[2:]:
        k, v = a.split("=")
        setattr(C, k, eval(v))
    open(sys.argv[1], "w").write(gen(C))
```

```python
import sys, math, struct
from asmlib import Asm

KN = "parallel_sum__gqa_block_cached__mixer_channel_mlp__decode_kernel"
HDR = open("parallel_sum__gqa_block_cached__mixer_channel_mlp__decode.s.ref").read().split("; Override launch")[0]

def f32(x):
    return "0x%08x" % struct.unpack("<I", struct.pack("<f", x))[0]

class Cfg:
    kflag = "nt"
    vflag = "nt"
    wflag = ""
    stamps = False
    rot = True
    L = 5
    P = 44
    Dh = 6
    Dw = 2
    Lp = None
    Lk = None
    exp = ''
    exp2 = ''
    fin = 'tag'

class VQ:
    def __init__(self, A):
        self.q = []; self.A = A
    def issue(self, tag, text):
        self.A(text); self.q.append(tag)
        assert len(self.q) <= 63, len(self.q)
    def wait(self, tag):
        idx = [i for i, t in enumerate(self.q) if t == tag]
        if not idx: return
        i = idx[-1]
        n = len(self.q) - 1 - i
        self.A(f"s_waitcnt vmcnt({n})")
        self.q = self.q[i+1:]
    def limit(self, n):
        if len(self.q) > n:
            self.A(f"s_waitcnt vmcnt({n})")
            self.q = self.q[len(self.q)-n:] if n else []
    def drain(self):
        self.A("s_waitcnt vmcnt(0)"); self.q = []

def gen(cfg=Cfg):
    A = Asm(); e = A
    vLane = 1; vL16 = 2; vR = 3; vC = 4
    vT0, vT1, vT2, vT3, vT4, vT5 = 5, 6, 7, 8, 9, 10
    vColAddr = 11
    sW = 3; sB = 4; sH = 5; sS = 6; sT = 7
    pX, pK, pV, pWQ, pWO, pBX, pW1, pB1 = 16, 18, 20, 22, 24, 26, 28, 30
    pW2, pB2, pOUT, pDBG = 32, 34, 36, 38
    pWS = 40
    SK, SV, SA, SBq, SC, SD, SE = 44, 48, 52, 56, 60, 64, 68
    sIss = 72; sCnt = 73; sScale = 74; sL2E = 75; sTmp = 76; sTmp2 = 77; sWr = 78; sHw = 79
    SAVE = 96
    sNonce = 100; sSpin = 101
    L_QP = 0
    L_HP = 2048
    L_QB = 3072
    L_HB = 3328
    L_ML = 3456
    L_CNT = 3488
    L_OP = 3520
    L_OUT = 5568
    L_SC = 15808
    LDS_BYTES = L_SC + 16384 + 256

    def srd(dst, ptr, off, size, size_sub=None):
        if off is None:
            e(f"s_mov_b32 s{dst}, s{ptr}")
            e(f"s_and_b32 s{dst+1}, s{ptr+1}, 0xffff")
        else:
            e(f"s_add_u32 s{dst}, s{ptr}, s{off}")
            e(f"s_addc_u32 s{dst+1}, s{ptr+1}, 0")
            e(f"s_and_b32 s{dst+1}, s{dst+1}, 0xffff")
        if size_sub is None: e(f"s_mov_b32 s{dst+2}, {size}")
        else: e(f"s_sub_u32 s{dst+2}, {size}, s{size_sub}")
        e(f"s_mov_b32 s{dst+3}, 0x20000")
    def stamp(i):
        if cfg.stamps: e(f"s_memrealtime s[{80+2*i}:{81+2*i}]")
    def bc(j): return f"row_newbcast:{j} row_mask:0xf bank_mask:0xf"
    def wave_red(v, t1, op):
        e(f"{op}_dpp v{v}, v{v}, v{v} quad_perm:[1,0,3,2] row_mask:0xf bank_mask:0xf")
        e(f"{op}_dpp v{v}, v{v}, v{v} quad_perm:[2,3,0,1] row_mask:0xf bank_mask:0xf")
        e(f"{op}_dpp v{v}, v{v}, v{v} row_half_mirror row_mask:0xf bank_mask:0xf")
        e(f"{op}_dpp v{v}, v{v}, v{v} row_mirror row_mask:0xf bank_mask:0xf")
        e(f"v_mov_b32 v{t1}, v{v}")
        e(f"v_permlane16_swap_b32 v{v}, v{t1}")
        e(f"{op} v{v}, v{v}, v{t1}")
        e(f"v_mov_b32 v{t1}, v{v}")
        e(f"v_permlane32_swap_b32 v{v}, v{t1}")
        e(f"{op} v{v}, v{v}, v{t1}")
    def reduce8(a, out0, out1):
        for p in range(4): e(f"v_permlane32_swap_b32 v{a+2*p}, v{a+2*p+1}")
        for p in range(4): e(f"v_add_f32 v{a+2*p}, v{a+2*p}, v{a+2*p+1}")
        e(f"v_permlane16_swap_b32 v{a}, v{a+2}")
        e(f"v_permlane16_swap_b32 v{a+4}, v{a+6}")
        e(f"v_add_f32 v{out0}, v{a}, v{a+2}")
        e(f"v_add_f32 v{out1}, v{a+4}, v{a+6}")
    def perm_reg(dst, t):
        e(f"v_and_b32 v{dst}, 1, v{vR}")
        e(f"v_lshlrev_b32 v{dst}, 1, v{dst}")
        e(f"v_lshrrev_b32 v{t}, 1, v{vR}")
        e(f"v_or_b32 v{dst}, v{dst}, v{t}")

    e(f"s_cmp_ge_u32 s2, 256")
    e(f"s_cbranch_scc1 L_end")
    stamp(0)
    e(f"s_load_dwordx16 s[16:31], s[0:1], 0")
    e(f"s_load_dwordx8 s[32:39], s[0:1], 64")
    e(f"s_load_dwordx2 s[40:41], s[0:1], 96")
    e(f"v_and_b32 v{vLane}, 63, v0")
    e(f"v_lshrrev_b32 v{vT0}, 6, v0")
    e(f"v_readfirstlane_b32 s{sW}, v{vT0}")
    e(f"s_lshr_b32 s{sB}, s2, 5")
    e(f"s_and_b32 s{sH}, s2, 31")
    e(f"v_lshlrev_b32 v{vL16}, 4, v{vLane}")
    e(f"v_lshrrev_b32 v{vR}, 4, v{vLane}")
    e(f"v_and_b32 v{vC}, 15, v{vLane}")
    e(f"s_and_b32 s{sHw}, s{sW}, 3")
    e(f"s_mov_b32 s{sL2E}, {f32(1.4426950408889634)}")
    perm_reg(vT4, vT1)
    e(f"v_lshl_add_u32 v{vT0}, v{vC}, 3, v{vT4}")
    e(f"v_lshlrev_b32 v{vColAddr}, 2, v{vT0}")
    e(f"s_cmp_ge_u32 s{sW}, 4")
    e(f"s_cbranch_scc1 L_stream")

    vq = VQ(A)
    XR = 224
    XU = 230
    OWN = 240
    XL = [12, 14, 16]; XH = [13, 15, 17]
    YL = [18, 20, 22]; YH = [19, 21, 23]
    ACCQ = 24
    ACCH = 32
    vB1 = 36; vHL = 37; vHH = 38; vOff = 39
    MLPS = 40
    ACC2 = 50
    W = 64
    W1R = 244
    if cfg.rot:
        e(f"s_add_u32 s{sWr}, s{sHw}, s{sB}")
        e(f"s_and_b32 s{sWr}, s{sWr}, 3")
    else:
        e(f"s_mov_b32 s{sWr}, s{sHw}")
    e(f"s_and_b32 s{sS}, s{sH}, 7")
    e(f"s_lshl_b32 s{sS}, s{sS}, 2")
    e(f"s_lshr_b32 s{sT}, s{sH}, 3")
    e(f"s_add_u32 s{sS}, s{sS}, s{sT}")
    e(f"s_mul_i32 s{sTmp}, s{sWr}, 160")
    e(f"v_add_u32 v{vT0}, s{sTmp}, v{vR}")
    e(f"v_lshlrev_b32 v{vOff}, 13, v{vT0}")
    e(f"v_lshl_add_u32 v{vOff}, v{vC}, 4, v{vOff}")
    e(f"v_lshl_add_u32 v{vT1}, v{vC}, 2, v{vR}")
    e(f"v_add_u32 v{vT2}, s{sTmp}, v{vT1}")
    e(f"v_lshlrev_b32 v{vT2}, 1, v{vT2}")
    e(f"v_lshlrev_b32 v{vT3}, 2, v{vLane}")
    if cfg.fin == 'tag':
        e(f"s_lshl_b32 s{sTmp}, s{sB}, 8")
        e(f"s_waitcnt lgkmcnt(0)")
        e(f"s_load_dword s{sNonce}, s[{pWS}:{pWS+1}], s{sTmp}")
    e(f"v_mov_b32 v{vT5}, 0")
    e(f"ds_write_b32 v{vT5}, v{vT5} offset:{L_CNT}")
    e(f"ds_write_b32 v{vT5}, v{vT5} offset:{L_CNT+4}")
    e(f"ds_write_b32 v{vT5}, v{vT5} offset:{L_CNT+8}")
    e(f"s_waitcnt lgkmcnt(0)")
    e(f"s_mul_i32 s{sTmp}, s{sB}, 1280")
    srd(SA, pX, sTmp, 1280)
    e(f"s_lshl_b32 s{sT}, s{sH}, 8")
    srd(SC, pWQ, sT, 640*8192, size_sub=sT)
    vq.issue("X", f"buffer_load_dwordx4 v[{XR}:{XR+3}], v{vL16}, s[{SA}:{SA+3}], 0 offen")
    vq.issue("X", f"buffer_load_dword v{XR+4}, v{vT3}, s[{SA}:{SA+3}], 0 offen offset:1024")
    for m in range(3):
        vq.issue("X", f"buffer_load_ushort v{OWN+m}, v{vT2}, s[{SA}:{SA+3}], 0 offen offset:{128*m}")
    def wq_load(j):
        e(f"s_mov_b32 s{sT}, {j*32768}")
        vq.issue(("WQ", j), f"buffer_load_dwordx4 v[{W+4*j}:{W+4*j+3}], v{vOff}, s[{SC}:{SC+3}], s{sT} offen {cfg.wflag}")
    nq = 0
    for j in range(cfg.Dh): wq_load(j); nq += 1
    e(f"s_barrier")
    def unpack_xr():
        for i in range(5):
            e(f"v_lshlrev_b32 v{XU+2*i}, 16, v{XR+i}")
            e(f"v_and_b32 v{XU+2*i+1}, 0xffff0000, v{XR+i}")
    def layernorm(norm_regs):
        s_, t1, mean, mb = vT0, vT1, vT2, vT3
        e(f"v_add_f32 v{s_}, v{XU}, v{XU+1}")
        e(f"v_add_f32 v{t1}, v{XU+2}, v{XU+3}")
        e(f"v_add_f32 v{mean}, v{XU+4}, v{XU+5}")
        e(f"v_add_f32 v{mb}, v{XU+6}, v{XU+7}")
        e(f"v_add_f32 v{s_}, v{s_}, v{t1}")
        e(f"v_add_f32 v{t1}, v{XU+8}, v{XU+9}")
        e(f"v_add_f32 v{mean}, v{mean}, v{mb}")
        e(f"v_add_f32 v{s_}, v{s_}, v{t1}")
        e(f"v_add_f32 v{s_}, v{s_}, v{mean}")
        wave_red(s_, t1, "v_add_f32")
        e(f"v_mul_f32 v{mean}, {f32(1.0/640)}, v{s_}")
        e(f"v_cvt_pk_bf16_f32 v{mb}, 0, v{mean}")
        e(f"v_sub_f32 v{t1}, v{XU}, v{mean}")
        e(f"v_mul_f32 v{s_}, v{t1}, v{t1}")
        for i in range(1, 10):
            e(f"v_sub_f32 v{t1}, v{XU+i}, v{mean}")
            e(f"v_fmac_f32 v{s_}, v{t1}, v{t1}")
        wave_red(s_, t1, "v_add_f32")
        e(f"v_mul_f32 v{s_}, {f32(1.0/640)}, v{s_}")
        e(f"v_cvt_pk_bf16_f32 v{s_}, 0, v{s_}")
        e(f"v_add_f32 v{s_}, {f32(1e-5)}, v{s_}")
        e(f"v_cvt_pk_bf16_f32 v{s_}, 0, v{s_}")
        e(f"v_sqrt_f32 v{s_}, v{s_}")
        e(f"v_cvt_pk_bf16_f32 v{s_}, 0, v{s_}")
        e(f"v_rcp_f32 v{s_}, v{s_}")
        for r in norm_regs: e(f"v_sub_f32 v{r}, v{r}, v{mb}")
        for r in norm_regs: e(f"v_cvt_pk_bf16_f32 v{r}, 0, v{r}")
        for r in norm_regs: e(f"v_mul_f32 v{r}, v{r}, v{s_}")
        for r in norm_regs: e(f"v_cvt_pk_bf16_f32 v{r}, 0, v{r}")
    vq.wait("X")
    unpack_xr()
    for m in range(3): e(f"v_lshlrev_b32 v{OWN+m}, 16, v{OWN+m}")
    layernorm([XU+i for i in range(10)] + [OWN+m for m in range(3)])
    for m in range(3):
        e(f"v_mov_b32 v{XH[m]}, v{OWN+m}")
        e(f"v_lshrrev_b32 v{XL[m]}, 16, v{OWN+m}")
    for i in range(8): e(f"v_mov_b32 v{ACCQ+i}, 0")
    stamp(1)
    for j in range(40):
        vq.wait(("WQ", j))
        if nq < 40: wq_load(nq); nq += 1
        m, jj = divmod(j, 16)
        for d in range(4):
            e(f"v_dot2c_f32_bf16_dpp v{ACCQ+2*d}, v{XL[m]}, v{W+4*j+d} {bc(jj)}")
            e(f"v_dot2c_f32_bf16_dpp v{ACCQ+2*d+1}, v{XH[m]}, v{W+4*j+d} {bc(jj)}")
    reduce8(ACCQ, vT2, vT3)
    e(f"s_lshl_b32 s{sT}, s{sHw}, 9")
    e(f"v_add_u32 v{vT0}, s{sT}, v{vColAddr}")
    e(f"ds_write2_b32 v{vT0}, v{vT2}, v{vT3} offset0:{L_QP//4} offset1:{L_QP//4+4}")
    e(f"v_mov_b32 v{vT0}, 0")
    e(f"v_mov_b32 v{vT1}, 1")
    e(f"s_waitcnt lgkmcnt(0)")
    e(f"s_mov_b64 exec, 1")
    e(f"ds_add_rtn_u32 v{vT2}, v{vT0}, v{vT1} offset:{L_CNT}")
    e(f"s_waitcnt lgkmcnt(0)")
    e(f"v_readfirstlane_b32 s{sT}, v{vT2}")
    e(f"s_mov_b64 exec, -1")
    e(f"s_cmp_lg_u32 s{sT}, 3")
    e(f"s_cbranch_scc1 L_qdone")
    e(f"v_lshlrev_b32 v{vT0}, 3, v{vLane}")
    for w in range(4):
        e(f"ds_read_b64 v[{XU+2*w}:{XU+2*w+1}], v{vT0} offset:{L_QP + w*512}")
    e(f"s_waitcnt lgkmcnt(0)")
    e(f"v_pk_add_f32 v[{XU}:{XU+1}], v[{XU}:{XU+1}], v[{XU+2}:{XU+3}]")
    e(f"v_pk_add_f32 v[{XU+4}:{XU+5}], v[{XU+4}:{XU+5}], v[{XU+6}:{XU+7}]")
    e(f"v_pk_add_f32 v[{XU}:{XU+1}], v[{XU}:{XU+1}], v[{XU+4}:{XU+5}]")
    e(f"v_cvt_pk_bf16_f32 v{XU}, v{XU}, v{XU+1}")
    e(f"v_lshlrev_b32 v{vT0}, 2, v{vLane}")
    e(f"ds_write_b32 v{vT0}, v{XU} offset:{L_QB}")
    e(f"s_waitcnt lgkmcnt(0)")
    A.label("L_qdone"); A.hist = []
    e(f"s_barrier")
    stamp(2)
    unpack_xr()
    layernorm([XU+i for i in range(10)])
    for m in range(3): e(f"v_mov_b32 v{OWN+m}, v{XH[m]}")
    layernorm([OWN+m for m in range(3)])
    for m in range(3):
        e(f"v_mov_b32 v{YH[m]}, v{OWN+m}")
        e(f"v_lshrrev_b32 v{YL[m]}, 16, v{OWN+m}")
    for i in range(4): e(f"v_mov_b32 v{ACCH+i}, 0")
    e(f"s_mul_i32 s{sTmp2}, s{sS}, {0 if cfg.exp == 'hot' else 108}")
    srd(SD, pW1, sTmp2, 640*3456, size_sub=sTmp2)
    srd(SBq, pB1, sTmp2, 3456, size_sub=sTmp2)
    e(f"s_mul_i32 s{sTmp}, s{sWr}, 160")
    e(f"v_add_u32 v{vT0}, s{sTmp}, v{vR}")
    e(f"s_mov_b32 s{sT}, 3456")
    e(f"v_mul_lo_u32 v{vOff}, v{vT0}, s{sT}")
    e(f"v_lshl_add_u32 v{vOff}, v{vC}, 3, v{vOff}")
    e(f"v_lshlrev_b32 v{vT4}, 1, v{vLane}")
    vq.issue("B1", f"buffer_load_ushort v{vB1}, v{vT4}, s[{SBq}:{SBq+3}], 0 offen")
    NS1 = 6
    def w1_load(j):
        if cfg.exp == 'skip': return
        e(f"s_mov_b32 s{sT}, {j*13824}")
        r = W1R + 2*(j % NS1)
        vq.issue(("W1", j), f"buffer_load_dwordx2 v[{r}:{r+1}], v{vOff}, s[{SD}:{SD+3}], s{sT} offen {cfg.wflag}")
    d1 = min(2*cfg.Dw, NS1 - 1)
    n1 = 0
    for j in range(d1): w1_load(j); n1 += 1
    for j in range(40):
        vq.wait(("W1", j))
        if n1 < 40: w1_load(n1); n1 += 1
        m, jj = divmod(j, 16)
        r = W1R + 2*(j % NS1)
        for d in range(2):
            e(f"v_dot2c_f32_bf16_dpp v{ACCH+2*d}, v{YL[m]}, v{r+d} {bc(jj)}")
            e(f"v_dot2c_f32_bf16_dpp v{ACCH+2*d+1}, v{YH[m]}, v{r+d} {bc(jj)}")
    e(f"s_mul_i32 s{sT}, s{sS}, {0 if cfg.exp == 'hot' else 54*1280}")
    srd(SE, pW2, sT, 1728*1280, size_sub=sT)
    e(f"s_mul_i32 s{sTmp}, s{sHw}, 14")
    e(f"v_add_u32 v{vT0}, s{sTmp}, v{vR}")
    e(f"s_mov_b32 s{sT}, 1280")
    e(f"v_mul_lo_u32 v{vOff}, v{vT0}, s{sT}")
    e(f"v_lshl_add_u32 v{vOff}, v{vC}, 4, v{vOff}")
    for blk in range(5):
        for g in range(4):
            n = blk*4 + g
            if cfg.exp == 'skip': continue
            vq.limit(cfg.Dw - 1)
            e(f"s_mov_b32 s{sT}, {g*5120}")
            vq.issue(("W2", blk), f"buffer_load_dwordx4 v[{W+4*n}:{W+4*n+3}], v{vOff}, s[{SE}:{SE+3}], s{sT} offen offset:{blk*256} {cfg.wflag}")
    e(f"v_permlane32_swap_b32 v{ACCH}, v{ACCH+1}")
    e(f"v_permlane32_swap_b32 v{ACCH+2}, v{ACCH+3}")
    e(f"v_add_f32 v{ACCH}, v{ACCH}, v{ACCH+1}")
    e(f"v_add_f32 v{ACCH+2}, v{ACCH+2}, v{ACCH+3}")
    e(f"v_permlane16_swap_b32 v{ACCH}, v{ACCH+2}")
    e(f"v_add_f32 v{ACCH}, v{ACCH}, v{ACCH+2}")
    perm_reg(vT4, vT1)
    e(f"v_lshl_add_u32 v{vT0}, v{vC}, 2, v{vT4}")
    e(f"v_lshlrev_b32 v{vT0}, 2, v{vT0}")
    e(f"s_lshl_b32 s{sT}, s{sHw}, 8")
    e(f"v_add_u32 v{vT0}, s{sT}, v{vT0}")
    e(f"ds_write_b32 v{vT0}, v{ACCH} offset:{L_HP}")
    e(f"v_mov_b32 v{vT0}, 0")
    e(f"v_mov_b32 v{vT1}, 1")
    e(f"s_waitcnt lgkmcnt(0)")
    e(f"s_mov_b64 exec, 1")
    e(f"ds_add_rtn_u32 v{vT2}, v{vT0}, v{vT1} offset:{L_CNT+4}")
    e(f"s_waitcnt lgkmcnt(0)")
    e(f"v_readfirstlane_b32 s{sT}, v{vT2}")
    e(f"s_mov_b64 exec, -1")
    vq.wait("B1")
    e(f"s_cmp_lg_u32 s{sT}, 3")
    e(f"s_cbranch_scc1 L_hwait")
    T = 230
    e(f"v_lshlrev_b32 v{vT0}, 2, v{vLane}")
    for w in range(4):
        e(f"ds_read_b32 v{T+w}, v{vT0} offset:{L_HP + w*256}")
    e(f"s_waitcnt lgkmcnt(0)")
    e(f"v_add_f32 v{T}, v{T}, v{T+1}")
    e(f"v_add_f32 v{T+2}, v{T+2}, v{T+3}")
    e(f"v_add_f32 v{T}, v{T}, v{T+2}")
    x_ = T
    e(f"v_cvt_pk_bf16_f32 v{x_}, 0, v{x_}")
    e(f"v_lshlrev_b32 v{vB1}, 16, v{vB1}")
    e(f"v_add_f32 v{x_}, v{x_}, v{vB1}")
    e(f"v_cvt_pk_bf16_f32 v{x_}, 0, v{x_}")
    e(f"v_mul_f32 v{vT1}, v{x_}, v{x_}")
    e(f"v_mul_f32 v{vT1}, v{vT1}, v{x_}")
    e(f"v_mov_b32 v{vT2}, {f32(0.044715)}")
    e(f"v_fma_f32 v{vT1}, v{vT1}, v{vT2}, v{x_}")
    e(f"v_mul_f32 v{vT1}, {f32(-2.0*math.sqrt(2.0/math.pi)*1.4426950408889634)}, v{vT1}")
    e(f"v_exp_f32 v{vT1}, v{vT1}")
    e(f"v_add_f32 v{vT1}, 1.0, v{vT1}")
    e(f"v_rcp_f32 v{vT1}, v{vT1}")
    e(f"v_mul_f32 v{x_}, v{x_}, v{vT1}")
    e(f"v_cvt_pk_bf16_f32 v{x_}, v{x_}, 0")
    e(f"v_cmp_gt_u32 vcc, 54, v{vLane}")
    e(f"v_cndmask_b32 v{x_}, 0, v{x_}, vcc")
    e(f"v_lshlrev_b32 v{vT0}, 1, v{vLane}")
    e(f"ds_write_b16 v{vT0}, v{x_} offset:{L_HB}")
    e(f"v_mov_b32 v{vT0}, 0")
    e(f"v_mov_b32 v{vT1}, 1")
    e(f"s_waitcnt lgkmcnt(0)")
    e(f"ds_write_b32 v{vT0}, v{vT1} offset:{L_CNT+8}")
    e(f"s_waitcnt lgkmcnt(0)")
    A.label("L_hwait"); A.hist = []
    e(f"v_mov_b32 v{vT0}, 0")
    A.label("L_hspin")
    e(f"ds_read_b32 v{vT1}, v{vT0} offset:{L_CNT+8}")
    e(f"s_waitcnt lgkmcnt(0)")
    e(f"v_readfirstlane_b32 s{sT}, v{vT1}")
    e(f"s_cmp_eq_u32 s{sT}, 0")
    e(f"s_cbranch_scc0 L_hgo")
    e(f"s_sleep 2")
    e(f"s_branch L_hspin")
    A.label("L_hgo"); A.hist = []
    e(f"s_mul_i32 s{sTmp}, s{sHw}, 14")
    e(f"v_lshl_add_u32 v{vT1}, v{vC}, 2, v{vR}")
    e(f"v_add_u32 v{vT2}, s{sTmp}, v{vT1}")
    e(f"v_and_b32 v{vT2}, 63, v{vT2}")
    e(f"v_lshlrev_b32 v{vT2}, 1, v{vT2}")
    e(f"ds_read_u16 v{vHL}, v{vT2} offset:{L_HB}")
    e(f"v_cmp_gt_u32 vcc, 14, v{vT1}")
    e(f"s_waitcnt lgkmcnt(0)")
    e(f"v_cndmask_b32 v{vHL}, 0, v{vHL}, vcc")
    e(f"v_lshlrev_b32 v{vHH}, 16, v{vHL}")
    for blk in range(5):
        for i in range(8): e(f"v_mov_b32 v{ACC2+i}, 0")
        vq.wait(("W2", blk))
        for g in range(4):
            r = W + 4*(blk*4 + g)
            for d in range(4):
                e(f"v_dot2c_f32_bf16_dpp v{ACC2+2*d}, v{vHL}, v{r+d} {bc(g)}")
                e(f"v_dot2c_f32_bf16_dpp v{ACC2+2*d+1}, v{vHH}, v{r+d} {bc(g)}")
        reduce8(ACC2, MLPS + 2*blk, MLPS + 2*blk + 1)
    e(f"s_mul_i32 s{sT}, s{sH}, {0 if cfg.exp == 'hot' else 128*1280}")
    srd(SC, pWO, sT, 4096*1280, size_sub=sT)
    e(f"s_lshl_b32 s{sTmp}, s{sHw}, 5")
    e(f"v_add_u32 v{vT0}, s{sTmp}, v{vR}")
    e(f"s_mov_b32 s{sT}, 1280")
    e(f"v_mul_lo_u32 v{vOff}, v{vT0}, s{sT}")
    e(f"v_lshl_add_u32 v{vOff}, v{vC}, 4, v{vOff}")
    for g in range(8):
        for blk in range(5):
            n = g*5 + blk
            if cfg.exp == 'skip': continue
            vq.limit(cfg.Dw - 1)
            e(f"s_mov_b32 s{sT}, {g*5120}")
            vq.issue(("WO", n), f"buffer_load_dwordx4 v[{W+4*n}:{W+4*n+3}], v{vOff}, s[{SC}:{SC+3}], s{sT} offen offset:{blk*256} {cfg.wflag}")
    vXB = 62
    if cfg.fin == 'tag':
        e(f"s_mul_i32 s{sT}, s{sB}, 1280")
        e(f"s_mul_i32 s{sTmp}, s{sH}, 40")
        e(f"s_add_u32 s{sT}, s{sT}, s{sTmp}")
        srd(SBq, pX, sT, 40)
        srd(SD, pB2, sTmp, 40)
        e(f"v_lshlrev_b32 v{vT0}, 2, v{vC}")
        vq.issue("XB", f"buffer_load_dword v{vXB}, v{vT0}, s[{SBq}:{SBq+3}], 0 offen")
        vq.issue("XB", f"buffer_load_dword v{vXB+1}, v{vT0}, s[{SD}:{SD+3}], 0 offen")
        e(f"s_add_u32 s{sNonce}, s{sNonce}, 1")
    ACCO = 224 - 0
    ACCO = 12
    acco = list(range(12, 40)) + list(range(50, 62))
    ACB = [12, 20, 28, 50, 224]
    for b_ in ACB:
        for i in range(8): e(f"v_mov_b32 v{b_+i}, 0")
    e(f"s_lshl_b32 s{sT}, s{sHw}, 5")
    e(f"v_lshl_add_u32 v{vT1}, v{vC}, 2, v{vR}")
    e(f"v_add_u32 v{vT1}, s{sT}, v{vT1}")
    e(f"v_and_b32 v{vT1}, 127, v{vT1}")
    e(f"v_lshlrev_b32 v{vT1}, 2, v{vT1}")
    e(f"v_mov_b32 v{vT0}, 0")
    vq.drain()
    stamp(3)
    e(f"s_barrier")
    stamp(4)
    ML = 232; OP = 240
    e(f"ds_read_b128 v[{ML}:{ML+3}], v{vT0} offset:{L_ML}")
    e(f"ds_read_b128 v[{ML+4}:{ML+7}], v{vT0} offset:{L_ML+16}")
    for w in range(4):
        e(f"ds_read_b32 v{OP+w}, v{vT1} offset:{L_OP + w*512}")
    e(f"s_waitcnt lgkmcnt(4)")
    vMn, vL, vE, vPL, vPH = 244, 245, 246, 247, 248
    e(f"v_max3_f32 v{vMn}, v{ML}, v{ML+2}, v{ML+4}")
    e(f"v_max_f32 v{vMn}, v{vMn}, v{ML+6}")
    for w in range(4): e(f"v_sub_f32 v{ML+2*w}, v{ML+2*w}, v{vMn}")
    for w in range(4): e(f"v_mul_f32 v{ML+2*w}, s{sL2E}, v{ML+2*w}")
    for w in range(4): e(f"v_exp_f32 v{ML+2*w}, v{ML+2*w}")
    e(f"s_waitcnt lgkmcnt(0)")
    e(f"v_mul_f32 v{vL}, v{ML}, v{ML+1}")
    e(f"v_mul_f32 v{vE}, v{ML}, v{OP}")
    for w in range(1, 4):
        e(f"v_fmac_f32 v{vL}, v{ML+2*w}, v{ML+2*w+1}")
        e(f"v_fmac_f32 v{vE}, v{ML+2*w}, v{OP+w}")
    e(f"v_rcp_f32 v{vL}, v{vL}")
    e(f"v_mul_f32 v{vE}, v{vE}, v{vL}")
    e(f"v_cvt_pk_bf16_f32 v{vPL}, v{vE}, 0")
    e(f"v_cvt_pk_bf16_f32 v{vPH}, 0, v{vE}")
    RES = 232
    for blk in range(5):
        for g in range(8):
            r = W + (g*5 + blk)*4
            for d in range(4):
                e(f"v_dot2c_f32_bf16_dpp v{ACB[blk]+2*d}, v{vPL}, v{r+d} {bc(g)}")
                e(f"v_dot2c_f32_bf16_dpp v{ACB[blk]+2*d+1}, v{vPH}, v{r+d} {bc(g)}")
        if blk > 0:
            reduce8(ACB[blk-1], RES + 2*(blk-1), RES + 2*(blk-1) + 1)
    reduce8(ACB[4], RES + 8, RES + 9)
    for i in range(10): e(f"v_add_f32 v{RES+i}, v{RES+i}, v{MLPS+i}")
    e(f"s_mul_i32 s{sT}, s{sHw}, 2560")
    e(f"v_add_u32 v{vT0}, s{sT}, v{vColAddr}")
    e(f"v_add_u32 v{vT0}, {L_OUT}, v{vT0}")
    for blk in range(5):
        e(f"ds_write_b32 v{vT0}, v{RES+2*blk} offset:{blk*512}")
        e(f"ds_write_b32 v{vT0}, v{RES+2*blk+1} offset:{blk*512+16}")
    e(f"s_waitcnt lgkmcnt(0)")
    e(f"s_barrier")
    stamp(5)
    if cfg.fin == 'tag':
        GB = 4096
        e(f"s_cmp_eq_u32 s{sW}, 3")
        e(f"s_cbranch_scc1 L_cons")
        e(f"v_cmp_gt_u32 vcc, 160, v0")
        e(f"s_and_saveexec_b64 s[{SAVE}:{SAVE+1}], vcc")
        e(f"v_lshlrev_b32 v{vT0}, 4, v0")
        Pp = 64
        for w in range(4):
            e(f"ds_read_b128 v[{Pp+4*w}:{Pp+4*w+3}], v{vT0} offset:{L_OUT + w*2560}")
        e(f"s_mul_i32 s{sT}, s{sB}, {32*5120}")
        e(f"s_add_u32 s{sT}, s{sT}, {GB}")
        srd(SA, pWS, sT, 32*5120)
        e(f"v_mul_u32_u24 v{vT1}, 205, v0")
        e(f"v_lshrrev_b32 v{vT1}, 10, v{vT1}")
        e(f"v_mul_u32_u24 v{vT2}, 5, v{vT1}")
        e(f"v_sub_u32 v{vT2}, v0, v{vT2}")
        e(f"v_mul_u32_u24 v{vT1}, 5120, v{vT1}")
        e(f"v_lshl_add_u32 v{vT1}, v{vT2}, 5, v{vT1}")
        e(f"s_mul_i32 s{sT}, s{sH}, 160")
        e(f"v_mov_b32 v{Pp+17}, s{sNonce}")
        e(f"v_mov_b32 v{Pp+19}, s{sNonce}")
        e(f"v_mov_b32 v{Pp+21}, s{sNonce}")
        e(f"v_mov_b32 v{Pp+23}, s{sNonce}")
        e(f"s_waitcnt lgkmcnt(0)")
        for k in range(4):
            e(f"v_add_f32 v{Pp+k}, v{Pp+k}, v{Pp+4+k}")
            e(f"v_add_f32 v{Pp+8+k}, v{Pp+8+k}, v{Pp+12+k}")
        for k in range(4):
            e(f"v_add_f32 v{Pp+16+2*k}, v{Pp+k}, v{Pp+8+k}")
        e(f"buffer_store_dwordx4 v[{Pp+16}:{Pp+19}], v{vT1}, s[{SA}:{SA+3}], s{sT} offen sc0 sc1")
        e(f"buffer_store_dwordx4 v[{Pp+20}:{Pp+23}], v{vT1}, s[{SA}:{SA+3}], s{sT} offen offset:16 sc0 sc1")
        e(f"s_branch L_fin")
        A.label("L_cons"); A.hist = []
        e(f"s_mul_i32 s{sT}, s2, 5120")
        e(f"s_add_u32 s{sT}, s{sT}, {GB}")
        srd(SA, pWS, sT, 5120)
        e(f"v_mul_u32_u24 v{vT0}, 160, v{vLane}")
        e(f"v_mul_u32_u24 v{vT1}, 160, v{vR}")
        e(f"v_lshl_add_u32 v{vT1}, v{vC}, 4, v{vT1}")
        e(f"s_mov_b32 s{sSpin}, 0")
        e(f"s_mov_b32 s{sTmp}, 2560")
        G = 64
        A.label("L_poll1"); A.hist = []
        e(f"buffer_load_dwordx4 v[{G}:{G+3}], v{vT0}, s[{SA}:{SA+3}], 0 offen sc0 sc1")
        e(f"s_add_u32 s{sSpin}, s{sSpin}, 1")
        e(f"s_waitcnt vmcnt(0)")
        e(f"v_xor_b32 v{G}, s{sNonce}, v{G+1}")
        e(f"v_xor_b32 v{G+2}, s{sNonce}, v{G+3}")
        e(f"v_or_b32 v{G}, v{G}, v{G+2}")
        e(f"v_cmp_eq_u32 vcc, 0, v{G}")
        e(f"s_cmp_gt_u32 s{sSpin}, 200000")
        e(f"s_cbranch_scc1 L_fin")
        e(f"s_cmp_eq_u32 vcc_lo, -1")
        e(f"s_cbranch_scc0 L_poll1")
        A.label("L_poll2"); A.hist = []
        for i in range(8):
            so = "0" if i < 4 else f"s{sTmp}"
            e(f"buffer_load_dwordx4 v[{G+4*i}:{G+4*i+3}], v{vT1}, s[{SA}:{SA+3}], {so} offen offset:{(i%4)*640} sc0 sc1")
        e(f"s_add_u32 s{sSpin}, s{sSpin}, 1")
        e(f"s_waitcnt vmcnt(0)")
        e(f"v_xor_b32 v{vT2}, s{sNonce}, v{G+1}")
        for i in range(8):
            for k in (1, 3):
                if i == 0 and k == 1: continue
                e(f"v_xor_b32 v{vT3}, s{sNonce}, v{G+4*i+k}")
                e(f"v_or_b32 v{vT2}, v{vT2}, v{vT3}")
        e(f"v_cmp_gt_u32 vcc, 10, v{vC}")
        e(f"v_cndmask_b32 v{vT2}, 0, v{vT2}, vcc")
        e(f"v_cmp_ne_u32 vcc, 0, v{vT2}")
        e(f"s_cmp_gt_u32 s{sSpin}, 200000")
        e(f"s_cbranch_scc1 L_fin")
        e(f"s_cmp_eq_u64 vcc, 0")
        e(f"s_cbranch_scc0 L_poll2")
        for i in range(1, 8):
            e(f"v_add_f32 v{G}, v{G}, v{G+4*i}")
            e(f"v_add_f32 v{G+2}, v{G+2}, v{G+4*i+2}")
        for r in (G, G+2):
            e(f"v_mov_b32 v{vT2}, v{r}")
            e(f"v_permlane16_swap_b32 v{r}, v{vT2}")
            e(f"v_add_f32 v{r}, v{r}, v{vT2}")
            e(f"v_mov_b32 v{vT2}, v{r}")
            e(f"v_permlane32_swap_b32 v{r}, v{vT2}")
            e(f"v_add_f32 v{r}, v{r}, v{vT2}")
        e(f"v_lshlrev_b32 v{vT2}, 16, v{vXB+1}")
        e(f"v_and_b32 v{vT3}, 0xffff0000, v{vXB+1}")
        e(f"v_add_f32 v{G}, v{G}, v{vT2}")
        e(f"v_add_f32 v{G+2}, v{G+2}, v{vT3}")
        e(f"v_lshlrev_b32 v{vT2}, 16, v{vXB}")
        e(f"v_and_b32 v{vT3}, 0xffff0000, v{vXB}")
        e(f"v_add_f32 v{G}, v{G}, v{vT2}")
        e(f"v_add_f32 v{G+2}, v{G+2}, v{vT3}")
        e(f"v_cvt_pk_bf16_f32 v{G}, v{G}, v{G+2}")
        e(f"s_mul_i32 s{sT}, s{sB}, 1280")
        e(f"s_mul_i32 s{sTmp}, s{sH}, 40")
        e(f"s_add_u32 s{sT}, s{sT}, s{sTmp}")
        srd(SD, pOUT, sT, 40)
        e(f"v_lshlrev_b32 v{vT0}, 2, v{vLane}")
        e(f"buffer_store_dword v{G}, v{vT0}, s[{SD}:{SD+3}], 0 offen")
        e(f"s_cmp_lg_u32 s{sH}, 0")
        e(f"s_cbranch_scc1 L_fin")
        e(f"s_lshl_b32 s{sT}, s{sB}, 8")
        srd(SC, pWS, sT, 4)
        e(f"v_mov_b32 v{vT2}, s{sNonce}")
        e(f"buffer_store_dword v{vT2}, v{vT0}, s[{SC}:{SC+3}], 0 offen sc0 sc1")
        e(f"s_branch L_fin")
    else:
        e(f"s_cmp_ge_u32 s{sW}, 3")
        e(f"s_cbranch_scc1 L_fin")
        e(f"v_cmp_gt_u32 vcc, 160, v0")
        e(f"s_and_saveexec_b64 s[{SAVE}:{SAVE+1}], vcc")
        e(f"v_lshlrev_b32 v{vT0}, 4, v0")
        Pp = 64
        for w in range(4):
            e(f"ds_read_b128 v[{Pp+4*w}:{Pp+4*w+3}], v{vT0} offset:{L_OUT + w*2560}")
        e(f"s_mul_i32 s{sT}, s2, 2560")
        srd(SA, pWS, sT, 2560)
        e(f"s_waitcnt lgkmcnt(0)")
        for k in range(4):
            e(f"v_add_f32 v{Pp+k}, v{Pp+k}, v{Pp+4+k}")
            e(f"v_add_f32 v{Pp+8+k}, v{Pp+8+k}, v{Pp+12+k}")
        for k in range(4):
            e(f"v_add_f32 v{Pp+k}, v{Pp+k}, v{Pp+8+k}")
        e(f"buffer_store_dwordx4 v[{Pp}:{Pp+3}], v{vT0}, s[{SA}:{SA+3}], 0 offen sc0 sc1")
        e(f"s_mul_i32 s{sT}, s{sB}, 3")
        e(f"s_add_u32 s{sT}, s{sT}, s{sW}")
        e(f"s_lshl_b32 s{sT}, s{sT}, 2")
        e(f"s_mov_b64 s[{SAVE+2}:{SAVE+3}], exec")
        e(f"s_waitcnt vmcnt(0)")
        e(f"s_mov_b64 exec, 1")
        e(f"v_mov_b32 v{vT1}, s{sT}")
        e(f"v_mov_b32 v{vT2}, 1")
        e(f"global_atomic_add v{vT3}, v{vT1}, v{vT2}, s[{pDBG}:{pDBG+1}] sc0 sc1")
        e(f"s_waitcnt vmcnt(0)")
        e(f"v_readfirstlane_b32 s{sT}, v{vT3}")
        e(f"s_mov_b64 exec, s[{SAVE+2}:{SAVE+3}]")
        e(f"s_cmp_lg_u32 s{sT}, 31")
        e(f"s_cbranch_scc1 L_fin")
        e(f"s_mul_i32 s{sT}, s{sB}, {32*2560}")
        srd(SA, pWS, sT, 32*2560)
        for hh in range(32):
            r = 96 + 4*hh
            e(f"s_mov_b32 s{sT}, {hh*2560}")
            e(f"buffer_load_dwordx4 v[{r}:{r+3}], v{vT0}, s[{SA}:{SA+3}], s{sT} offen sc0 sc1")
        e(f"s_mul_i32 s{sT}, s{sB}, 1280")
        srd(SBq, pX, sT, 1280)
        srd(SC, pB2, None, 1280)
        srd(SD, pOUT, sT, 1280)
        e(f"v_lshlrev_b32 v{vT1}, 3, v0")
        e(f"buffer_load_dwordx2 v[{Pp}:{Pp+1}], v{vT1}, s[{SBq}:{SBq+3}], 0 offen")
        e(f"buffer_load_dwordx2 v[{Pp+2}:{Pp+3}], v{vT1}, s[{SC}:{SC+3}], 0 offen")
        for hh in range(1, 32):
            e(f"s_waitcnt vmcnt({2 + 31 - hh})")
            for k in range(4):
                e(f"v_add_f32 v{96+k}, v{96+k}, v{96+4*hh+k}")
        e(f"s_waitcnt vmcnt(0)")
        for k in range(4):
            src = Pp + k//2; src2 = Pp + 2 + k//2
            if k % 2 == 0:
                e(f"v_lshlrev_b32 v{vT2}, 16, v{src}")
                e(f"v_lshlrev_b32 v{vT3}, 16, v{src2}")
            else:
                e(f"v_and_b32 v{vT2}, 0xffff0000, v{src}")
                e(f"v_and_b32 v{vT3}, 0xffff0000, v{src2}")
            e(f"v_add_f32 v{96+k}, v{96+k}, v{vT3}")
            e(f"v_add_f32 v{96+k}, v{96+k}, v{vT2}")
        e(f"v_cvt_pk_bf16_f32 v{Pp+4}, v96, v97")
        e(f"v_cvt_pk_bf16_f32 v{Pp+5}, v98, v99")
        e(f"buffer_store_dwordx2 v[{Pp+4}:{Pp+5}], v{vT1}, s[{SD}:{SD+3}], 0 offen")
        e(f"s_branch L_fin")


    A.hist = []
    A.label("L_stream")
    L = cfg.L; P = cfg.P
    Q = 12; ACC = 16; vM = 24; vSc = 25; S = 26
    vU0, vU1, vTt = 30, 31, 32
    vLs = 33; E2 = 34
    E2n = 36
    vPL, vPH, vE = 38, 39, 40
    RING = 44
    BIG = 76
    assert BIG + 4*P <= 256
    e(f"s_mov_b32 s{sScale}, {f32(128**-0.5)}")
    e(f"s_lshl_b32 s{sIss}, s{sHw}, 12")
    e(f"v_lshrrev_b32 v{vT0}, 2, v{vC}")
    e(f"v_lshl_add_u32 v{vT0}, v{vR}, 2, v{vT0}")
    e(f"s_lshl_b32 s{sT}, s{sHw}, 9")
    e(f"v_add_u32 v{vT0}, s{sT}, v{vT0}")
    e(f"v_lshlrev_b32 v{vSc}, 3, v{vT0}")
    e(f"v_add_u32 v{vSc}, {L_SC}, v{vSc}")
    e(f"s_waitcnt lgkmcnt(0)")
    e(f"s_lshl_b32 s{sT}, s2, 20")
    srd(SK, pK, sT, 1 << 20)
    srd(SV, pV, sT, 1 << 20)
    slot = {}
    def issue(n, reg):
        isV = n >= 256
        j = n % 4
        if n == 256: e(f"s_lshl_b32 s{sIss}, s{sHw}, 12")
        srdr = SV if isV else SK
        fl = cfg.vflag if isV else cfg.kflag
        e(f"buffer_load_dwordx4 v[{reg}:{reg+3}], v{vL16}, s[{srdr}:{srdr+3}], s{sIss} offen offset:{j*1024} {fl}")
        if j == 3: e(f"s_add_u32 s{sIss}, s{sIss}, 16384")
        slot[n] = reg
    m_ = "row_mask:0xf"
    def consumeK(n, scoff=None):
        j = n % 4; reg = slot[n]; i = n // 4
        for d in range(4):
            src2 = "0" if d == 0 else f"v{S+j}"
            e(f"v_dot2_f32_bf16 v{S+j}, v{reg+d}, v{Q+d}, {src2}")
        if j == 3:
            e(f"v_add_f32_dpp v{vU0}, v{S}, v{S} row_mirror {m_} bank_mask:0x3")
            e(f"v_add_f32_dpp v{vU1}, v{S+1}, v{S+1} row_mirror {m_} bank_mask:0x3")
            e(f"v_add_f32_dpp v{vU0}, v{S+2}, v{S+2} row_mirror {m_} bank_mask:0xc")
            e(f"v_add_f32_dpp v{vU1}, v{S+3}, v{S+3} row_mirror {m_} bank_mask:0xc")
            e(f"v_add_f32_dpp v{vTt}, v{vU0}, v{vU0} row_half_mirror {m_} bank_mask:0x5")
            e(f"v_add_f32_dpp v{vTt}, v{vU1}, v{vU1} row_half_mirror {m_} bank_mask:0xa")
            e(f"v_add_f32_dpp v{vTt}, v{vTt}, v{vTt} quad_perm:[1,0,3,2] {m_} bank_mask:0xf")
            e(f"v_add_f32_dpp v{vTt}, v{vTt}, v{vTt} quad_perm:[2,3,0,1] {m_} bank_mask:0xf")
            e(f"v_cvt_pk_bf16_f32 v{vTt}, 0, v{vTt}")
            e(f"v_mul_f32 v{vTt}, s{sScale}, v{vTt}")
            e(f"v_cvt_pk_bf16_f32 v{vTt}, 0, v{vTt}")
            e(f"ds_write_b32 v{vSc}, v{vTt} offset:{4*(i % 2)}")
            e(f"v_max_f32 v{vM}, v{vM}, v{vTt}")
            if i % 2 == 1: e(f"v_add_u32 v{vSc}, 128, v{vSc}")
    def consumeV(n):
        j = n % 4; reg = slot[n]; i = (n - 256) // 4
        if j == 0:
            if i % 2 == 0:
                e(f"s_waitcnt lgkmcnt(0)")
                e(f"v_sub_f32 v{E2}, v{E2n}, v{vM}")
                e(f"v_sub_f32 v{E2+1}, v{E2n+1}, v{vM}")
                e(f"ds_read_b64 v[{E2n}:{E2n+1}], v{vSc}")
                e(f"v_add_u32 v{vSc}, 128, v{vSc}")
                e(f"v_mul_f32 v{E2}, s{sL2E}, v{E2}")
                e(f"v_mul_f32 v{E2+1}, s{sL2E}, v{E2+1}")
                e(f"v_exp_f32 v{E2}, v{E2}")
                e(f"v_exp_f32 v{E2+1}, v{E2+1}")
                e(f"v_add_f32 v{vLs}, v{vLs}, v{E2}")
                e(f"v_add_f32 v{vLs}, v{vLs}, v{E2+1}")
            e(f"v_cvt_pk_bf16_f32 v{vPL}, v{E2 + i % 2}, 0")
            e(f"v_cvt_pk_bf16_f32 v{vPH}, 0, v{E2 + i % 2}")
        for d in range(4):
            e(f"v_dot2c_f32_bf16_dpp v{ACC+2*d}, v{vPL}, v{reg+d} {bc(4*j)}")
            e(f"v_dot2c_f32_bf16_dpp v{ACC+2*d+1}, v{vPH}, v{reg+d} {bc(4*j)}")
    Lp = cfg.Lp or L
    for n in range(P):
        if n == Lp: e(f"s_barrier")
        if n >= Lp: e(f"s_waitcnt vmcnt({Lp-1})")
        issue(n, BIG + 4*n)
    if P <= Lp: e("s_barrier")
    stamp(1)
    e(f"s_barrier")
    e(f"v_lshlrev_b32 v{vT0}, 4, v{vC}")
    e(f"ds_read_b128 v[{Q}:{Q+3}], v{vT0} offset:{L_QB}")
    for i in range(8): e(f"v_mov_b32 v{ACC+i}, 0")
    e(f"v_mov_b32 v{vM}, 0xff800000")
    e(f"v_mov_b32 v{vLs}, 0")
    e(f"s_waitcnt lgkmcnt(0)")
    stamp(2)
    I = P; C = 0
    free = []
    def alloc(n):
        return None
    while I - C > L:
        e(f"s_waitcnt vmcnt({L-1})")
        prev = I - 8
        ringreg = RING + 4*(I % 8)
        tenant = [n for n, r in slot.items() if r == ringreg and n >= C]
        if not tenant and (I - C) <= 16:
            reg = ringreg
        else:
            reg = free.pop(0) if free else None
            if reg is None:
                assert not tenant
                reg = ringreg
        issue(I, reg); I += 1
        for _ in range(2):
            if I - C > L:
                consumeK(C)
                if BIG <= slot[C] : free.append(slot[C])
                C += 1
    def steady(nsteps_end):
        nonlocal I, C
        while C < nsteps_end:
            e(f"s_waitcnt vmcnt({L-1})")
            if I < 512:
                ringreg = RING + 4*(I % 8)
                assert not [n for n, r in slot.items() if r == ringreg and C <= n < I], (I, C)
                issue(I, ringreg); I += 1
            if C < 256: consumeK(C)
            else: consumeV(C)
            C += 1
    while not (C % 8 == 0 and all(slot[n] == RING + 4*(n % 8) for n in range(C, I))):
        steady(C + 1)
    c0 = C
    niterK = (248 - c0) // 8
    assert niterK >= 1 and c0 + 8*niterK == 248, (c0, niterK)
    if cfg.exp2 == 'kstart': stamp(5)
    e(f"s_mov_b32 s{sCnt}, {niterK}")
    A.fence()
    A.label("L_kloop")
    steady(C + 8)
    e(f"s_sub_u32 s{sCnt}, s{sCnt}, 1")
    e(f"s_cmp_lg_u32 s{sCnt}, 0")
    A.fence()
    e(f"s_cbranch_scc1 L_kloop")
    shift = 248 - C
    for n in range(C, I): slot[n + shift] = slot[n]
    C += shift; I += shift
    steady(256)
    stamp(3)
    wave_red(vM, vT1, "v_max_f32")
    e(f"v_subrev_u32 v{vSc}, {32*128}, v{vSc}")
    e(f"s_waitcnt lgkmcnt(0)")
    e(f"ds_read_b64 v[{E2n}:{E2n+1}], v{vSc}")
    e(f"v_add_u32 v{vSc}, 128, v{vSc}")
    steady(264)
    niterV = (512 - 8 - 264) // 8
    e(f"s_mov_b32 s{sCnt}, {niterV}")
    A.fence()
    A.label("L_vloop")
    steady(C + 8)
    e(f"s_sub_u32 s{sCnt}, s{sCnt}, 1")
    e(f"s_cmp_lg_u32 s{sCnt}, 0")
    A.fence()
    e(f"s_cbranch_scc1 L_vloop")
    shift = 504 - C
    for n in range(C, I): slot[n + shift] = slot[n]
    C += shift; I += shift
    while C < 512:
        out = I - C
        if I < 512:
            e(f"s_waitcnt vmcnt({L-1})")
            issue(I, RING + 4*(I % 8)); I += 1
        else:
            e(f"s_waitcnt vmcnt({I - C - 1})")
        consumeV(C); C += 1
    stamp(4)
    m = "row_mask:0xf bank_mask:0xf"
    e(f"v_add_f32_dpp v{vLs}, v{vLs}, v{vLs} row_half_mirror {m}")
    e(f"v_add_f32_dpp v{vLs}, v{vLs}, v{vLs} row_mirror {m}")
    e(f"v_mov_b32 v{vT1}, v{vLs}")
    e(f"v_permlane16_swap_b32 v{vLs}, v{vT1}")
    e(f"v_add_f32 v{vLs}, v{vLs}, v{vT1}")
    e(f"v_mov_b32 v{vT1}, v{vLs}")
    e(f"v_permlane32_swap_b32 v{vLs}, v{vT1}")
    e(f"v_add_f32 v35, v{vLs}, v{vT1}")
    e(f"v_mov_b32 v34, v{vM}")
    reduce8(ACC, vT2, vT3)
    e(f"s_lshl_b32 s{sT}, s{sHw}, 9")
    e(f"v_add_u32 v{vT0}, s{sT}, v{vColAddr}")
    e(f"v_add_u32 v{vT0}, {L_OP}, v{vT0}")
    e(f"ds_write2_b32 v{vT0}, v{vT2}, v{vT3} offset0:0 offset1:4")
    e(f"s_lshl_b32 s{sT}, s{sHw}, 3")
    e(f"v_mov_b32 v{vT0}, s{sT}")
    e(f"ds_write_b64 v{vT0}, v[34:35] offset:{L_ML}")
    e(f"s_waitcnt lgkmcnt(0)")
    e(f"s_barrier")
    if cfg.exp2 != 'kstart': stamp(5)
    A.label("L_fin"); A.hist = []
    if cfg.stamps:
        e("s_mov_b64 exec, -1")
        stamp(6)
        e("s_waitcnt lgkmcnt(0)")
        e(f"s_lshl_b32 s{sT}, s2, 3")
        e(f"s_add_u32 s{sT}, s{sT}, s{sW}")
        e(f"s_lshl_b32 s{sT}, s{sT}, 6")
        e(f"s_add_u32 s{sT}, s{sT}, {1<<20}")
        for i in range(14): e(f"v_mov_b32 v{64+i}, s{80+i}")
        e(f"s_getreg_b32 s{sTmp}, hwreg(HW_REG_XCC_ID)")
        e(f"v_mov_b32 v78, s{sTmp}")
        e(f"v_mov_b32 v79, 0")
        e(f"v_mov_b32 v{vT0}, s{sT}")
        e("s_mov_b64 exec, 1")
        for i in range(4):
            e(f"global_store_dwordx4 v{vT0}, v[{64+4*i}:{67+4*i}], s[{pWS}:{pWS+1}] offset:{16*i}")
        e("s_waitcnt vmcnt(0)")
    A.label("L_end")
    e("s_endpgm")
    body = A.text()
    hdr = HDR + f"; @launch grid=(256,1,1) block=(512,1,1) lds={LDS_BYTES}\n"
    pre = f""".amdgcn_target "amdgcn-amd-amdhsa--gfx950"
.text
.globl {KN}
.p2align 8
.type {KN},@function
{KN}:
"""
    post = f""".section .rodata,"a"
.p2align 6
.amdhsa_kernel {KN}
  .amdhsa_next_free_vgpr 256
  .amdhsa_next_free_sgpr 102
  .amdhsa_accum_offset 256
  .amdhsa_group_segment_fixed_size 0
  .amdhsa_kernarg_size 104
  .amdhsa_user_sgpr_count 2
  .amdhsa_user_sgpr_kernarg_segment_ptr 1
  .amdhsa_system_sgpr_workgroup_id_x 1
  .amdhsa_float_denorm_mode_32 3
.end_amdhsa_kernel
"""
    return hdr + pre + body + post

if __name__ == "__main__":
    class C(Cfg): pass
    for a in sys.argv[2:]:
        k, v = a.split("=")
        setattr(C, k, eval(v))
    open(sys.argv[1], "w").write(gen(C))
```

```python
import sys, math, struct
from asmlib import Asm

KN = "parallel_sum__gqa_block_cached__mixer_channel_mlp__decode_kernel"
HDR = open("parallel_sum__gqa_block_cached__mixer_channel_mlp__decode.s.ref").read().split("; Override launch")[0]

def f32(x):
    return "0x%08x" % struct.unpack("<I", struct.pack("<f", x))[0]

class Cfg:
    kflag = "nt"
    vflag = "nt"
    wflag = ""
    stamps = False
    rot = True
    L = 5
    P = 44
    Dh = 6
    Dw = 2
    Lp = None
    Kpat = None
    Vpat = None
    tailN = 0
    Ltail = 7
    exp = ''
    exp2 = ''
    fin = 'tag8'

class VQ:
    def __init__(self, A):
        self.q = []; self.A = A
    def issue(self, tag, text):
        self.A(text); self.q.append(tag)
        assert len(self.q) <= 63, len(self.q)
    def wait(self, tag):
        idx = [i for i, t in enumerate(self.q) if t == tag]
        if not idx: return
        i = idx[-1]
        n = len(self.q) - 1 - i
        self.A(f"s_waitcnt vmcnt({n})")
        self.q = self.q[i+1:]
    def limit(self, n):
        if len(self.q) > n:
            self.A(f"s_waitcnt vmcnt({n})")
            self.q = self.q[len(self.q)-n:] if n else []
    def drain(self):
        self.A("s_waitcnt vmcnt(0)"); self.q = []

def gen(cfg=Cfg):
    A = Asm(); e = A
    vLane = 1; vL16 = 2; vR = 3; vC = 4
    vT0, vT1, vT2, vT3, vT4, vT5 = 5, 6, 7, 8, 9, 10
    vColAddr = 11
    sW = 3; sB = 4; sH = 5; sS = 6; sT = 7
    pX, pK, pV, pWQ, pWO, pBX, pW1, pB1 = 16, 18, 20, 22, 24, 26, 28, 30
    pW2, pB2, pOUT, pDBG = 32, 34, 36, 38
    pWS = 40
    SK, SV, SA, SBq, SC, SD, SE = 44, 48, 52, 56, 60, 64, 68
    sIss = 72; sCnt = 73; sScale = 74; sL2E = 75; sTmp = 76; sTmp2 = 77; sWr = 78; sHw = 79
    SAVE = 96
    sNonce = 100; sSpin = 101
    L_QP = 0
    L_HP = 2048
    L_QB = 3072
    L_HB = 3328
    L_ML = 3456
    L_CNT = 3488
    L_OP = 3520
    L_OUT = 5568
    L_SC = 15808
    LDS_BYTES = L_SC + 16384 + 256

    def srd(dst, ptr, off, size, size_sub=None):
        if off is None:
            e(f"s_mov_b32 s{dst}, s{ptr}")
            e(f"s_and_b32 s{dst+1}, s{ptr+1}, 0xffff")
        else:
            e(f"s_add_u32 s{dst}, s{ptr}, s{off}")
            e(f"s_addc_u32 s{dst+1}, s{ptr+1}, 0")
            e(f"s_and_b32 s{dst+1}, s{dst+1}, 0xffff")
        if size_sub is None: e(f"s_mov_b32 s{dst+2}, {size}")
        else: e(f"s_sub_u32 s{dst+2}, {size}, s{size_sub}")
        e(f"s_mov_b32 s{dst+3}, 0x20000")
    def stamp(i):
        if cfg.stamps: e(f"s_memrealtime s[{80+2*i}:{81+2*i}]")
    def bc(j): return f"row_newbcast:{j} row_mask:0xf bank_mask:0xf"
    def wave_red(v, t1, op):
        e(f"{op}_dpp v{v}, v{v}, v{v} quad_perm:[1,0,3,2] row_mask:0xf bank_mask:0xf")
        e(f"{op}_dpp v{v}, v{v}, v{v} quad_perm:[2,3,0,1] row_mask:0xf bank_mask:0xf")
        e(f"{op}_dpp v{v}, v{v}, v{v} row_half_mirror row_mask:0xf bank_mask:0xf")
        e(f"{op}_dpp v{v}, v{v}, v{v} row_mirror row_mask:0xf bank_mask:0xf")
        e(f"v_mov_b32 v{t1}, v{v}")
        e(f"v_permlane16_swap_b32 v{v}, v{t1}")
        e(f"{op} v{v}, v{v}, v{t1}")
        e(f"v_mov_b32 v{t1}, v{v}")
        e(f"v_permlane32_swap_b32 v{v}, v{t1}")
        e(f"{op} v{v}, v{v}, v{t1}")
    def reduce8(a, out0, out1):
        for p in range(4): e(f"v_permlane32_swap_b32 v{a+2*p}, v{a+2*p+1}")
        for p in range(4): e(f"v_add_f32 v{a+2*p}, v{a+2*p}, v{a+2*p+1}")
        e(f"v_permlane16_swap_b32 v{a}, v{a+2}")
        e(f"v_permlane16_swap_b32 v{a+4}, v{a+6}")
        e(f"v_add_f32 v{out0}, v{a}, v{a+2}")
        e(f"v_add_f32 v{out1}, v{a+4}, v{a+6}")
    def perm_reg(dst, t):
        e(f"v_and_b32 v{dst}, 1, v{vR}")
        e(f"v_lshlrev_b32 v{dst}, 1, v{dst}")
        e(f"v_lshrrev_b32 v{t}, 1, v{vR}")
        e(f"v_or_b32 v{dst}, v{dst}, v{t}")

    e(f"s_cmp_ge_u32 s2, 256")
    e(f"s_cbranch_scc1 L_end")
    stamp(0)
    e(f"s_load_dwordx16 s[16:31], s[0:1], 0")
    e(f"s_load_dwordx8 s[32:39], s[0:1], 64")
    e(f"s_load_dwordx2 s[40:41], s[0:1], 96")
    e(f"v_and_b32 v{vLane}, 63, v0")
    e(f"v_lshrrev_b32 v{vT0}, 6, v0")
    e(f"v_readfirstlane_b32 s{sW}, v{vT0}")
    e(f"s_lshr_b32 s{sB}, s2, 5")
    e(f"s_and_b32 s{sH}, s2, 31")
    e(f"v_lshlrev_b32 v{vL16}, 4, v{vLane}")
    e(f"v_lshrrev_b32 v{vR}, 4, v{vLane}")
    e(f"v_and_b32 v{vC}, 15, v{vLane}")
    e(f"s_and_b32 s{sHw}, s{sW}, 3")
    e(f"s_mov_b32 s{sL2E}, {f32(1.4426950408889634)}")
    perm_reg(vT4, vT1)
    e(f"v_lshl_add_u32 v{vT0}, v{vC}, 3, v{vT4}")
    e(f"v_lshlrev_b32 v{vColAddr}, 2, v{vT0}")
    e(f"s_cmp_ge_u32 s{sW}, 4")
    e(f"s_cbranch_scc1 L_stream")

    vq = VQ(A)
    XR = 224
    XU = 230
    OWN = 240
    XL = [12, 14, 16]; XH = [13, 15, 17]
    YL = [18, 20, 22]; YH = [19, 21, 23]
    ACCQ = 24
    ACCH = 32
    vB1 = 36; vHL = 37; vHH = 38; vOff = 39
    MLPS = 40
    ACC2 = 50
    W = 64
    W1R = 244
    if cfg.rot:
        e(f"s_add_u32 s{sWr}, s{sHw}, s{sB}")
        e(f"s_and_b32 s{sWr}, s{sWr}, 3")
    else:
        e(f"s_mov_b32 s{sWr}, s{sHw}")
    e(f"s_and_b32 s{sS}, s{sH}, 7")
    e(f"s_lshl_b32 s{sS}, s{sS}, 2")
    e(f"s_lshr_b32 s{sT}, s{sH}, 3")
    e(f"s_add_u32 s{sS}, s{sS}, s{sT}")
    e(f"s_mul_i32 s{sTmp}, s{sWr}, 160")
    e(f"v_add_u32 v{vT0}, s{sTmp}, v{vR}")
    e(f"v_lshlrev_b32 v{vOff}, 13, v{vT0}")
    e(f"v_lshl_add_u32 v{vOff}, v{vC}, 4, v{vOff}")
    e(f"v_lshl_add_u32 v{vT1}, v{vC}, 2, v{vR}")
    e(f"v_add_u32 v{vT2}, s{sTmp}, v{vT1}")
    e(f"v_lshlrev_b32 v{vT2}, 1, v{vT2}")
    e(f"v_lshlrev_b32 v{vT3}, 2, v{vLane}")
    if cfg.fin in ('tag', 'tag8'):
        e(f"s_lshl_b32 s{sTmp}, s{sB}, 8")
        e(f"s_waitcnt lgkmcnt(0)")
        e(f"s_load_dword s{sNonce}, s[{pWS}:{pWS+1}], s{sTmp}")
    e(f"v_mov_b32 v{vT5}, 0")
    e(f"ds_write_b32 v{vT5}, v{vT5} offset:{L_CNT}")
    e(f"ds_write_b32 v{vT5}, v{vT5} offset:{L_CNT+4}")
    e(f"ds_write_b32 v{vT5}, v{vT5} offset:{L_CNT+8}")
    e(f"s_waitcnt lgkmcnt(0)")
    e(f"s_mul_i32 s{sTmp}, s{sB}, 1280")
    srd(SA, pX, sTmp, 1280)
    e(f"s_lshl_b32 s{sT}, s{sH}, 8")
    srd(SC, pWQ, sT, 640*8192, size_sub=sT)
    vq.issue("X", f"buffer_load_dwordx4 v[{XR}:{XR+3}], v{vL16}, s[{SA}:{SA+3}], 0 offen")
    vq.issue("X", f"buffer_load_dword v{XR+4}, v{vT3}, s[{SA}:{SA+3}], 0 offen offset:1024")
    for m in range(3):
        vq.issue("X", f"buffer_load_ushort v{OWN+m}, v{vT2}, s[{SA}:{SA+3}], 0 offen offset:{128*m}")
    def wq_load(j):
        e(f"s_mov_b32 s{sT}, {j*32768}")
        vq.issue(("WQ", j), f"buffer_load_dwordx4 v[{W+4*j}:{W+4*j+3}], v{vOff}, s[{SC}:{SC+3}], s{sT} offen {cfg.wflag}")
    nq = 0
    for j in range(cfg.Dh): wq_load(j); nq += 1
    e(f"s_barrier")
    def unpack_xr():
        for i in range(5):
            e(f"v_lshlrev_b32 v{XU+2*i}, 16, v{XR+i}")
            e(f"v_and_b32 v{XU+2*i+1}, 0xffff0000, v{XR+i}")
    def layernorm(norm_regs):
        s_, t1, mean, mb = vT0, vT1, vT2, vT3
        e(f"v_add_f32 v{s_}, v{XU}, v{XU+1}")
        e(f"v_add_f32 v{t1}, v{XU+2}, v{XU+3}")
        e(f"v_add_f32 v{mean}, v{XU+4}, v{XU+5}")
        e(f"v_add_f32 v{mb}, v{XU+6}, v{XU+7}")
        e(f"v_add_f32 v{s_}, v{s_}, v{t1}")
        e(f"v_add_f32 v{t1}, v{XU+8}, v{XU+9}")
        e(f"v_add_f32 v{mean}, v{mean}, v{mb}")
        e(f"v_add_f32 v{s_}, v{s_}, v{t1}")
        e(f"v_add_f32 v{s_}, v{s_}, v{mean}")
        wave_red(s_, t1, "v_add_f32")
        e(f"v_mul_f32 v{mean}, {f32(1.0/640)}, v{s_}")
        e(f"v_cvt_pk_bf16_f32 v{mb}, 0, v{mean}")
        e(f"v_sub_f32 v{t1}, v{XU}, v{mean}")
        e(f"v_mul_f32 v{s_}, v{t1}, v{t1}")
        for i in range(1, 10):
            e(f"v_sub_f32 v{t1}, v{XU+i}, v{mean}")
            e(f"v_fmac_f32 v{s_}, v{t1}, v{t1}")
        wave_red(s_, t1, "v_add_f32")
        e(f"v_mul_f32 v{s_}, {f32(1.0/640)}, v{s_}")
        e(f"v_cvt_pk_bf16_f32 v{s_}, 0, v{s_}")
        e(f"v_add_f32 v{s_}, {f32(1e-5)}, v{s_}")
        e(f"v_cvt_pk_bf16_f32 v{s_}, 0, v{s_}")
        e(f"v_sqrt_f32 v{s_}, v{s_}")
        e(f"v_cvt_pk_bf16_f32 v{s_}, 0, v{s_}")
        e(f"v_rcp_f32 v{s_}, v{s_}")
        for r in norm_regs: e(f"v_sub_f32 v{r}, v{r}, v{mb}")
        for r in norm_regs: e(f"v_cvt_pk_bf16_f32 v{r}, 0, v{r}")
        for r in norm_regs: e(f"v_mul_f32 v{r}, v{r}, v{s_}")
        for r in norm_regs: e(f"v_cvt_pk_bf16_f32 v{r}, 0, v{r}")
    vq.wait("X")
    unpack_xr()
    for m in range(3): e(f"v_lshlrev_b32 v{OWN+m}, 16, v{OWN+m}")
    layernorm([XU+i for i in range(10)] + [OWN+m for m in range(3)])
    for m in range(3):
        e(f"v_mov_b32 v{XH[m]}, v{OWN+m}")
        e(f"v_lshrrev_b32 v{XL[m]}, 16, v{OWN+m}")
    for i in range(8): e(f"v_mov_b32 v{ACCQ+i}, 0")
    stamp(1)
    for j in range(40):
        vq.wait(("WQ", j))
        if nq < 40: wq_load(nq); nq += 1
        m, jj = divmod(j, 16)
        for d in range(4):
            e(f"v_dot2c_f32_bf16_dpp v{ACCQ+2*d}, v{XL[m]}, v{W+4*j+d} {bc(jj)}")
            e(f"v_dot2c_f32_bf16_dpp v{ACCQ+2*d+1}, v{XH[m]}, v{W+4*j+d} {bc(jj)}")
    reduce8(ACCQ, vT2, vT3)
    e(f"s_lshl_b32 s{sT}, s{sHw}, 9")
    e(f"v_add_u32 v{vT0}, s{sT}, v{vColAddr}")
    e(f"ds_write2_b32 v{vT0}, v{vT2}, v{vT3} offset0:{L_QP//4} offset1:{L_QP//4+4}")
    e(f"v_mov_b32 v{vT0}, 0")
    e(f"v_mov_b32 v{vT1}, 1")
    e(f"s_waitcnt lgkmcnt(0)")
    e(f"s_mov_b64 exec, 1")
    e(f"ds_add_rtn_u32 v{vT2}, v{vT0}, v{vT1} offset:{L_CNT}")
    e(f"s_waitcnt lgkmcnt(0)")
    e(f"v_readfirstlane_b32 s{sT}, v{vT2}")
    e(f"s_mov_b64 exec, -1")
    e(f"s_cmp_lg_u32 s{sT}, 3")
    e(f"s_cbranch_scc1 L_qdone")
    e(f"v_lshlrev_b32 v{vT0}, 3, v{vLane}")
    for w in range(4):
        e(f"ds_read_b64 v[{XU+2*w}:{XU+2*w+1}], v{vT0} offset:{L_QP + w*512}")
    e(f"s_waitcnt lgkmcnt(0)")
    e(f"v_pk_add_f32 v[{XU}:{XU+1}], v[{XU}:{XU+1}], v[{XU+2}:{XU+3}]")
    e(f"v_pk_add_f32 v[{XU+4}:{XU+5}], v[{XU+4}:{XU+5}], v[{XU+6}:{XU+7}]")
    e(f"v_pk_add_f32 v[{XU}:{XU+1}], v[{XU}:{XU+1}], v[{XU+4}:{XU+5}]")
    e(f"v_cvt_pk_bf16_f32 v{XU}, v{XU}, v{XU+1}")
    e(f"v_lshlrev_b32 v{vT0}, 2, v{vLane}")
    e(f"ds_write_b32 v{vT0}, v{XU} offset:{L_QB}")
    e(f"s_waitcnt lgkmcnt(0)")
    A.label("L_qdone"); A.hist = []
    e(f"s_barrier")
    stamp(2)
    unpack_xr()
    layernorm([XU+i for i in range(10)])
    for m in range(3): e(f"v_mov_b32 v{OWN+m}, v{XH[m]}")
    layernorm([OWN+m for m in range(3)])
    for m in range(3):
        e(f"v_mov_b32 v{YH[m]}, v{OWN+m}")
        e(f"v_lshrrev_b32 v{YL[m]}, 16, v{OWN+m}")
    for i in range(4): e(f"v_mov_b32 v{ACCH+i}, 0")
    e(f"s_mul_i32 s{sTmp2}, s{sS}, {0 if cfg.exp == 'hot' else 108}")
    srd(SD, pW1, sTmp2, 640*3456, size_sub=sTmp2)
    srd(SBq, pB1, sTmp2, 3456, size_sub=sTmp2)
    e(f"s_mul_i32 s{sTmp}, s{sWr}, 160")
    e(f"v_add_u32 v{vT0}, s{sTmp}, v{vR}")
    e(f"s_mov_b32 s{sT}, 3456")
    e(f"v_mul_lo_u32 v{vOff}, v{vT0}, s{sT}")
    e(f"v_lshl_add_u32 v{vOff}, v{vC}, 3, v{vOff}")
    e(f"v_lshlrev_b32 v{vT4}, 1, v{vLane}")
    vq.issue("B1", f"buffer_load_ushort v{vB1}, v{vT4}, s[{SBq}:{SBq+3}], 0 offen")
    NS1 = 6
    def w1_load(j):
        if cfg.exp == 'skip': return
        e(f"s_mov_b32 s{sT}, {j*13824}")
        r = W1R + 2*(j % NS1)
        vq.issue(("W1", j), f"buffer_load_dwordx2 v[{r}:{r+1}], v{vOff}, s[{SD}:{SD+3}], s{sT} offen {cfg.wflag}")
    d1 = min(2*cfg.Dw, NS1 - 1)
    n1 = 0
    for j in range(d1): w1_load(j); n1 += 1
    for j in range(40):
        vq.wait(("W1", j))
        if n1 < 40: w1_load(n1); n1 += 1
        m, jj = divmod(j, 16)
        r = W1R + 2*(j % NS1)
        for d in range(2):
            e(f"v_dot2c_f32_bf16_dpp v{ACCH+2*d}, v{YL[m]}, v{r+d} {bc(jj)}")
            e(f"v_dot2c_f32_bf16_dpp v{ACCH+2*d+1}, v{YH[m]}, v{r+d} {bc(jj)}")
    e(f"s_mul_i32 s{sT}, s{sS}, {0 if cfg.exp == 'hot' else 54*1280}")
    srd(SE, pW2, sT, 1728*1280, size_sub=sT)
    e(f"s_mul_i32 s{sTmp}, s{sHw}, 14")
    e(f"v_add_u32 v{vT0}, s{sTmp}, v{vR}")
    e(f"s_mov_b32 s{sT}, 1280")
    e(f"v_mul_lo_u32 v{vOff}, v{vT0}, s{sT}")
    e(f"v_lshl_add_u32 v{vOff}, v{vC}, 4, v{vOff}")
    for blk in range(5):
        for g in range(4):
            n = blk*4 + g
            if cfg.exp == 'skip': continue
            vq.limit(cfg.Dw - 1)
            e(f"s_mov_b32 s{sT}, {g*5120}")
            vq.issue(("W2", blk), f"buffer_load_dwordx4 v[{W+4*n}:{W+4*n+3}], v{vOff}, s[{SE}:{SE+3}], s{sT} offen offset:{blk*256} {cfg.wflag}")
    e(f"v_permlane32_swap_b32 v{ACCH}, v{ACCH+1}")
    e(f"v_permlane32_swap_b32 v{ACCH+2}, v{ACCH+3}")
    e(f"v_add_f32 v{ACCH}, v{ACCH}, v{ACCH+1}")
    e(f"v_add_f32 v{ACCH+2}, v{ACCH+2}, v{ACCH+3}")
    e(f"v_permlane16_swap_b32 v{ACCH}, v{ACCH+2}")
    e(f"v_add_f32 v{ACCH}, v{ACCH}, v{ACCH+2}")
    perm_reg(vT4, vT1)
    e(f"v_lshl_add_u32 v{vT0}, v{vC}, 2, v{vT4}")
    e(f"v_lshlrev_b32 v{vT0}, 2, v{vT0}")
    e(f"s_lshl_b32 s{sT}, s{sHw}, 8")
    e(f"v_add_u32 v{vT0}, s{sT}, v{vT0}")
    e(f"ds_write_b32 v{vT0}, v{ACCH} offset:{L_HP}")
    e(f"v_mov_b32 v{vT0}, 0")
    e(f"v_mov_b32 v{vT1}, 1")
    e(f"s_waitcnt lgkmcnt(0)")
    e(f"s_mov_b64 exec, 1")
    e(f"ds_add_rtn_u32 v{vT2}, v{vT0}, v{vT1} offset:{L_CNT+4}")
    e(f"s_waitcnt lgkmcnt(0)")
    e(f"v_readfirstlane_b32 s{sT}, v{vT2}")
    e(f"s_mov_b64 exec, -1")
    vq.wait("B1")
    e(f"s_cmp_lg_u32 s{sT}, 3")
    e(f"s_cbranch_scc1 L_hwait")
    T = 230
    e(f"v_lshlrev_b32 v{vT0}, 2, v{vLane}")
    for w in range(4):
        e(f"ds_read_b32 v{T+w}, v{vT0} offset:{L_HP + w*256}")
    e(f"s_waitcnt lgkmcnt(0)")
    e(f"v_add_f32 v{T}, v{T}, v{T+1}")
    e(f"v_add_f32 v{T+2}, v{T+2}, v{T+3}")
    e(f"v_add_f32 v{T}, v{T}, v{T+2}")
    x_ = T
    e(f"v_cvt_pk_bf16_f32 v{x_}, 0, v{x_}")
    e(f"v_lshlrev_b32 v{vB1}, 16, v{vB1}")
    e(f"v_add_f32 v{x_}, v{x_}, v{vB1}")
    e(f"v_cvt_pk_bf16_f32 v{x_}, 0, v{x_}")
    e(f"v_mul_f32 v{vT1}, v{x_}, v{x_}")
    e(f"v_mul_f32 v{vT1}, v{vT1}, v{x_}")
    e(f"v_mov_b32 v{vT2}, {f32(0.044715)}")
    e(f"v_fma_f32 v{vT1}, v{vT1}, v{vT2}, v{x_}")
    e(f"v_mul_f32 v{vT1}, {f32(-2.0*math.sqrt(2.0/math.pi)*1.4426950408889634)}, v{vT1}")
    e(f"v_exp_f32 v{vT1}, v{vT1}")
    e(f"v_add_f32 v{vT1}, 1.0, v{vT1}")
    e(f"v_rcp_f32 v{vT1}, v{vT1}")
    e(f"v_mul_f32 v{x_}, v{x_}, v{vT1}")
    e(f"v_cvt_pk_bf16_f32 v{x_}, v{x_}, 0")
    e(f"v_cmp_gt_u32 vcc, 54, v{vLane}")
    e(f"v_cndmask_b32 v{x_}, 0, v{x_}, vcc")
    e(f"v_lshlrev_b32 v{vT0}, 1, v{vLane}")
    e(f"ds_write_b16 v{vT0}, v{x_} offset:{L_HB}")
    e(f"v_mov_b32 v{vT0}, 0")
    e(f"v_mov_b32 v{vT1}, 1")
    e(f"s_waitcnt lgkmcnt(0)")
    e(f"ds_write_b32 v{vT0}, v{vT1} offset:{L_CNT+8}")
    e(f"s_waitcnt lgkmcnt(0)")
    A.label("L_hwait"); A.hist = []
    e(f"v_mov_b32 v{vT0}, 0")
    A.label("L_hspin")
    e(f"ds_read_b32 v{vT1}, v{vT0} offset:{L_CNT+8}")
    e(f"s_waitcnt lgkmcnt(0)")
    e(f"v_readfirstlane_b32 s{sT}, v{vT1}")
    e(f"s_cmp_eq_u32 s{sT}, 0")
    e(f"s_cbranch_scc0 L_hgo")
    e(f"s_sleep 2")
    e(f"s_branch L_hspin")
    A.label("L_hgo"); A.hist = []
    e(f"s_mul_i32 s{sTmp}, s{sHw}, 14")
    e(f"v_lshl_add_u32 v{vT1}, v{vC}, 2, v{vR}")
    e(f"v_add_u32 v{vT2}, s{sTmp}, v{vT1}")
    e(f"v_and_b32 v{vT2}, 63, v{vT2}")
    e(f"v_lshlrev_b32 v{vT2}, 1, v{vT2}")
    e(f"ds_read_u16 v{vHL}, v{vT2} offset:{L_HB}")
    e(f"v_cmp_gt_u32 vcc, 14, v{vT1}")
    e(f"s_waitcnt lgkmcnt(0)")
    e(f"v_cndmask_b32 v{vHL}, 0, v{vHL}, vcc")
    e(f"v_lshlrev_b32 v{vHH}, 16, v{vHL}")
    for blk in range(5):
        for i in range(8): e(f"v_mov_b32 v{ACC2+i}, 0")
        vq.wait(("W2", blk))
        for g in range(4):
            r = W + 4*(blk*4 + g)
            for d in range(4):
                e(f"v_dot2c_f32_bf16_dpp v{ACC2+2*d}, v{vHL}, v{r+d} {bc(g)}")
                e(f"v_dot2c_f32_bf16_dpp v{ACC2+2*d+1}, v{vHH}, v{r+d} {bc(g)}")
        reduce8(ACC2, MLPS + 2*blk, MLPS + 2*blk + 1)
    e(f"s_mul_i32 s{sT}, s{sH}, {0 if cfg.exp == 'hot' else 128*1280}")
    srd(SC, pWO, sT, 4096*1280, size_sub=sT)
    e(f"s_lshl_b32 s{sTmp}, s{sHw}, 5")
    e(f"v_add_u32 v{vT0}, s{sTmp}, v{vR}")
    e(f"s_mov_b32 s{sT}, 1280")
    e(f"v_mul_lo_u32 v{vOff}, v{vT0}, s{sT}")
    e(f"v_lshl_add_u32 v{vOff}, v{vC}, 4, v{vOff}")
    for g in range(8):
        for blk in range(5):
            n = g*5 + blk
            if cfg.exp == 'skip': continue
            vq.limit(cfg.Dw - 1)
            e(f"s_mov_b32 s{sT}, {g*5120}")
            vq.issue(("WO", n), f"buffer_load_dwordx4 v[{W+4*n}:{W+4*n+3}], v{vOff}, s[{SC}:{SC+3}], s{sT} offen offset:{blk*256} {cfg.wflag}")
    vXB = 62
    vXB2 = 58
    if cfg.fin == 'tag8':
        e(f"s_mul_i32 s{sT}, s{sB}, 1280")
        e(f"s_mul_i32 s{sTmp}, s{sH}, 40")
        e(f"s_add_u32 s{sT}, s{sT}, s{sTmp}")
        srd(SBq, pX, sT, 40)
        srd(SD, pB2, sTmp, 40)
        e(f"v_and_b32 v{vT0}, 7, v{vLane}")
        e(f"v_lshlrev_b32 v{vT0}, 3, v{vT0}")
        vq.issue("XB", f"buffer_load_dwordx2 v[{vXB2}:{vXB2+1}], v{vT0}, s[{SBq}:{SBq+3}], 0 offen")
        vq.issue("XB", f"buffer_load_dwordx2 v[{vXB2+2}:{vXB2+3}], v{vT0}, s[{SD}:{SD+3}], 0 offen")
        e(f"s_add_u32 s{sNonce}, s{sNonce}, 1")
    if cfg.fin == 'tag':
        e(f"s_mul_i32 s{sT}, s{sB}, 1280")
        e(f"s_mul_i32 s{sTmp}, s{sH}, 40")
        e(f"s_add_u32 s{sT}, s{sT}, s{sTmp}")
        srd(SBq, pX, sT, 40)
        srd(SD, pB2, sTmp, 40)
        e(f"v_lshlrev_b32 v{vT0}, 2, v{vC}")
        vq.issue("XB", f"buffer_load_dword v{vXB}, v{vT0}, s[{SBq}:{SBq+3}], 0 offen")
        vq.issue("XB", f"buffer_load_dword v{vXB+1}, v{vT0}, s[{SD}:{SD+3}], 0 offen")
        e(f"s_add_u32 s{sNonce}, s{sNonce}, 1")
    ACCO = 224 - 0
    ACCO = 12
    acco = list(range(12, 40)) + list(range(50, 62))
    ACB = [12, 20, 28, 50, 224]
    for b_ in ACB:
        for i in range(8): e(f"v_mov_b32 v{b_+i}, 0")
    e(f"s_lshl_b32 s{sT}, s{sHw}, 5")
    e(f"v_lshl_add_u32 v{vT1}, v{vC}, 2, v{vR}")
    e(f"v_add_u32 v{vT1}, s{sT}, v{vT1}")
    e(f"v_and_b32 v{vT1}, 127, v{vT1}")
    e(f"v_lshlrev_b32 v{vT1}, 2, v{vT1}")
    e(f"v_mov_b32 v{vT0}, 0")
    vq.drain()
    stamp(3)
    e(f"s_barrier")
    stamp(4)
    ML = 232; OP = 240
    e(f"ds_read_b128 v[{ML}:{ML+3}], v{vT0} offset:{L_ML}")
    e(f"ds_read_b128 v[{ML+4}:{ML+7}], v{vT0} offset:{L_ML+16}")
    for w in range(4):
        e(f"ds_read_b32 v{OP+w}, v{vT1} offset:{L_OP + w*512}")
    e(f"s_waitcnt lgkmcnt(4)")
    vMn, vL, vE, vPL, vPH = 244, 245, 246, 247, 248
    e(f"v_max3_f32 v{vMn}, v{ML}, v{ML+2}, v{ML+4}")
    e(f"v_max_f32 v{vMn}, v{vMn}, v{ML+6}")
    for w in range(4): e(f"v_sub_f32 v{ML+2*w}, v{ML+2*w}, v{vMn}")
    for w in range(4): e(f"v_mul_f32 v{ML+2*w}, s{sL2E}, v{ML+2*w}")
    for w in range(4): e(f"v_exp_f32 v{ML+2*w}, v{ML+2*w}")
    e(f"s_waitcnt lgkmcnt(0)")
    e(f"v_mul_f32 v{vL}, v{ML}, v{ML+1}")
    e(f"v_mul_f32 v{vE}, v{ML}, v{OP}")
    for w in range(1, 4):
        e(f"v_fmac_f32 v{vL}, v{ML+2*w}, v{ML+2*w+1}")
        e(f"v_fmac_f32 v{vE}, v{ML+2*w}, v{OP+w}")
    e(f"v_rcp_f32 v{vL}, v{vL}")
    e(f"v_mul_f32 v{vE}, v{vE}, v{vL}")
    e(f"v_cvt_pk_bf16_f32 v{vPL}, v{vE}, 0")
    e(f"v_cvt_pk_bf16_f32 v{vPH}, 0, v{vE}")
    RES = 232
    for blk in range(5):
        for g in range(8):
            r = W + (g*5 + blk)*4
            for d in range(4):
                e(f"v_dot2c_f32_bf16_dpp v{ACB[blk]+2*d}, v{vPL}, v{r+d} {bc(g)}")
                e(f"v_dot2c_f32_bf16_dpp v{ACB[blk]+2*d+1}, v{vPH}, v{r+d} {bc(g)}")
        if blk > 0:
            reduce8(ACB[blk-1], RES + 2*(blk-1), RES + 2*(blk-1) + 1)
    reduce8(ACB[4], RES + 8, RES + 9)
    for i in range(10): e(f"v_add_f32 v{RES+i}, v{RES+i}, v{MLPS+i}")
    e(f"s_mul_i32 s{sT}, s{sHw}, 2560")
    e(f"v_add_u32 v{vT0}, s{sT}, v{vColAddr}")
    e(f"v_add_u32 v{vT0}, {L_OUT}, v{vT0}")
    for blk in range(5):
        e(f"ds_write_b32 v{vT0}, v{RES+2*blk} offset:{blk*512}")
        e(f"ds_write_b32 v{vT0}, v{RES+2*blk+1} offset:{blk*512+16}")
    e(f"s_waitcnt lgkmcnt(0)")
    e(f"s_barrier")
    stamp(5)
    if cfg.fin == 'tag8':
        GB = 4096
        e(f"s_and_b32 s{sTmp2}, s{sNonce}, 0xff")
        e(f"s_cmp_eq_u32 s{sW}, 3")
        e(f"s_cbranch_scc1 L_cons")
        e(f"v_cmp_gt_u32 vcc, 160, v0")
        e(f"s_and_saveexec_b64 s[{SAVE}:{SAVE+1}], vcc")
        e(f"v_lshlrev_b32 v{vT0}, 4, v0")
        Pp = 64
        for w in range(4):
            e(f"ds_read_b128 v[{Pp+4*w}:{Pp+4*w+3}], v{vT0} offset:{L_OUT + w*2560}")
        e(f"s_mul_i32 s{sT}, s{sB}, {32*2560}")
        e(f"s_add_u32 s{sT}, s{sT}, {GB}")
        srd(SA, pWS, sT, 32*2560)
        e(f"v_mul_u32_u24 v{vT1}, 205, v0")
        e(f"v_lshrrev_b32 v{vT1}, 10, v{vT1}")
        e(f"v_mul_u32_u24 v{vT2}, 5, v{vT1}")
        e(f"v_sub_u32 v{vT2}, v0, v{vT2}")
        e(f"v_mul_u32_u24 v{vT1}, 2560, v{vT1}")
        e(f"v_lshl_add_u32 v{vT1}, v{vT2}, 4, v{vT1}")
        e(f"s_mul_i32 s{sT}, s{sH}, 80")
        e(f"v_mov_b32 v{vT3}, 0xffffff00")
        e(f"v_mov_b32 v{vT4}, s{sTmp2}")
        e(f"s_waitcnt lgkmcnt(0)")
        for k in range(4):
            e(f"v_add_f32 v{Pp+k}, v{Pp+k}, v{Pp+4+k}")
            e(f"v_add_f32 v{Pp+8+k}, v{Pp+8+k}, v{Pp+12+k}")
        for k in range(4):
            e(f"v_add_f32 v{Pp+k}, v{Pp+k}, v{Pp+8+k}")
        for k in range(4):
            e(f"v_add_u32 v{Pp+k}, 0x80, v{Pp+k}")
        for k in range(4):
            e(f"v_and_or_b32 v{Pp+k}, v{Pp+k}, v{vT3}, v{vT4}")
        e(f"buffer_store_dwordx4 v[{Pp}:{Pp+3}], v{vT1}, s[{SA}:{SA+3}], s{sT} offen sc0 sc1")
        e(f"s_branch L_fin")
        A.label("L_cons"); A.hist = []
        e(f"s_mul_i32 s{sT}, s2, 2560")
        e(f"s_add_u32 s{sT}, s{sT}, {GB}")
        srd(SA, pWS, sT, 2560)
        e(f"v_lshrrev_b32 v{vT0}, 3, v{vLane}")
        e(f"v_and_b32 v{vT4}, 7, v{vLane}")
        e(f"v_mul_u32_u24 v{vT1}, 80, v{vT0}")
        e(f"v_lshl_add_u32 v{vT1}, v{vT4}, 4, v{vT1}")
        e(f"s_mov_b32 s{sSpin}, 0")
        e(f"v_mov_b32 v{vT5}, s{sTmp2}")
        G = 64
        A.label("L_poll2"); A.hist = []
        for i in range(4):
            e(f"buffer_load_dwordx4 v[{G+4*i}:{G+4*i+3}], v{vT1}, s[{SA}:{SA+3}], 0 offen offset:{i*640} sc0 sc1")
        e(f"s_add_u32 s{sSpin}, s{sSpin}, 1")
        e(f"s_waitcnt vmcnt(0)")
        X = 84
        for k in range(16):
            e(f"v_xor_b32 v{X+k}, v{vT5}, v{G+k}")
        for k in range(0, 15, 3):
            e(f"v_or3_b32 v{X+k}, v{X+k}, v{X+k+1}, v{X+k+2}")
        e(f"v_or3_b32 v{X}, v{X}, v{X+3}, v{X+6}")
        e(f"v_or3_b32 v{X+9}, v{X+9}, v{X+12}, v{X+15}")
        e(f"v_or_b32 v{X}, v{X}, v{X+9}")
        e(f"v_and_b32 v{X}, 0xff, v{X}")
        e(f"v_cmp_gt_u32 vcc, 5, v{vT4}")
        e(f"v_cndmask_b32 v{X}, 0, v{X}, vcc")
        e(f"v_cmp_ne_u32 vcc, 0, v{X}")
        e(f"s_cmp_gt_u32 s{sSpin}, 200000")
        e(f"s_cbranch_scc1 L_fin")
        e(f"s_cmp_eq_u64 vcc, 0")
        e(f"s_cbranch_scc0 L_poll2")
        for k in range(16):
            e(f"v_and_b32 v{G+k}, 0xffffff00, v{G+k}")
        for k in range(4):
            e(f"v_add_f32 v{G+k}, v{G+k}, v{G+4+k}")
            e(f"v_add_f32 v{G+8+k}, v{G+8+k}, v{G+12+k}")
        for k in range(4):
            e(f"v_add_f32 v{G+k}, v{G+k}, v{G+8+k}")
        for k in range(4):
            e(f"v_add_f32_dpp v{G+k}, v{G+k}, v{G+k} row_ror:8 row_mask:0xf bank_mask:0xf")
        for k in range(4):
            e(f"v_mov_b32 v{G+4+k}, v{G+k}")
        for k in range(4):
            e(f"v_permlane16_swap_b32 v{G+k}, v{G+4+k}")
        for k in range(4):
            e(f"v_add_f32 v{G+k}, v{G+k}, v{G+4+k}")
        for k in range(4):
            e(f"v_mov_b32 v{G+4+k}, v{G+k}")
        for k in range(4):
            e(f"v_permlane32_swap_b32 v{G+k}, v{G+4+k}")
        for k in range(4):
            e(f"v_add_f32 v{G+k}, v{G+k}, v{G+4+k}")
        for k in range(4):
            for src in (vXB2 + 2 + k//2, vXB2 + k//2):
                if k % 2 == 0: e(f"v_lshlrev_b32 v{vT2}, 16, v{src}")
                else: e(f"v_and_b32 v{vT2}, 0xffff0000, v{src}")
                e(f"v_add_f32 v{G+k}, v{G+k}, v{vT2}")
        e(f"v_cvt_pk_bf16_f32 v{G+4}, v{G}, v{G+1}")
        e(f"v_cvt_pk_bf16_f32 v{G+5}, v{G+2}, v{G+3}")
        e(f"s_mul_i32 s{sT}, s{sB}, 1280")
        e(f"s_mul_i32 s{sTmp}, s{sH}, 40")
        e(f"s_add_u32 s{sT}, s{sT}, s{sTmp}")
        srd(SD, pOUT, sT, 40)
        e(f"v_lshlrev_b32 v{vT0}, 3, v{vLane}")
        e(f"buffer_store_dwordx2 v[{G+4}:{G+5}], v{vT0}, s[{SD}:{SD+3}], 0 offen")
        e(f"s_cmp_lg_u32 s{sH}, 0")
        e(f"s_cbranch_scc1 L_fin")
        e(f"s_lshl_b32 s{sT}, s{sB}, 8")
        srd(SC, pWS, sT, 4)
        e(f"v_mov_b32 v{vT2}, s{sNonce}")
        e(f"buffer_store_dword v{vT2}, v{vT0}, s[{SC}:{SC+3}], 0 offen sc0 sc1")
        e(f"s_branch L_fin")
    elif cfg.fin == 'tag':
        GB = 4096
        e(f"s_cmp_eq_u32 s{sW}, 3")
        e(f"s_cbranch_scc1 L_cons")
        e(f"v_cmp_gt_u32 vcc, 160, v0")
        e(f"s_and_saveexec_b64 s[{SAVE}:{SAVE+1}], vcc")
        e(f"v_lshlrev_b32 v{vT0}, 4, v0")
        Pp = 64
        for w in range(4):
            e(f"ds_read_b128 v[{Pp+4*w}:{Pp+4*w+3}], v{vT0} offset:{L_OUT + w*2560}")
        e(f"s_mul_i32 s{sT}, s{sB}, {32*5120}")
        e(f"s_add_u32 s{sT}, s{sT}, {GB}")
        srd(SA, pWS, sT, 32*5120)
        e(f"v_mul_u32_u24 v{vT1}, 205, v0")
        e(f"v_lshrrev_b32 v{vT1}, 10, v{vT1}")
        e(f"v_mul_u32_u24 v{vT2}, 5, v{vT1}")
        e(f"v_sub_u32 v{vT2}, v0, v{vT2}")
        e(f"v_mul_u32_u24 v{vT1}, 5120, v{vT1}")
        e(f"v_lshl_add_u32 v{vT1}, v{vT2}, 5, v{vT1}")
        e(f"s_mul_i32 s{sT}, s{sH}, 160")
        e(f"v_mov_b32 v{Pp+17}, s{sNonce}")
        e(f"v_mov_b32 v{Pp+19}, s{sNonce}")
        e(f"v_mov_b32 v{Pp+21}, s{sNonce}")
        e(f"v_mov_b32 v{Pp+23}, s{sNonce}")
        e(f"s_waitcnt lgkmcnt(0)")
        for k in range(4):
            e(f"v_add_f32 v{Pp+k}, v{Pp+k}, v{Pp+4+k}")
            e(f"v_add_f32 v{Pp+8+k}, v{Pp+8+k}, v{Pp+12+k}")
        for k in range(4):
            e(f"v_add_f32 v{Pp+16+2*k}, v{Pp+k}, v{Pp+8+k}")
        e(f"buffer_store_dwordx4 v[{Pp+16}:{Pp+19}], v{vT1}, s[{SA}:{SA+3}], s{sT} offen sc0 sc1")
        e(f"buffer_store_dwordx4 v[{Pp+20}:{Pp+23}], v{vT1}, s[{SA}:{SA+3}], s{sT} offen offset:16 sc0 sc1")
        e(f"s_branch L_fin")
        A.label("L_cons"); A.hist = []
        e(f"s_mul_i32 s{sT}, s2, 5120")
        e(f"s_add_u32 s{sT}, s{sT}, {GB}")
        srd(SA, pWS, sT, 5120)
        e(f"v_mul_u32_u24 v{vT0}, 160, v{vLane}")
        e(f"v_mul_u32_u24 v{vT1}, 160, v{vR}")
        e(f"v_lshl_add_u32 v{vT1}, v{vC}, 4, v{vT1}")
        e(f"s_mov_b32 s{sSpin}, 0")
        e(f"s_mov_b32 s{sTmp}, 2560")
        G = 64
        A.label("L_poll1"); A.hist = []
        e(f"buffer_load_dwordx4 v[{G}:{G+3}], v{vT0}, s[{SA}:{SA+3}], 0 offen sc0 sc1")
        e(f"s_add_u32 s{sSpin}, s{sSpin}, 1")
        e(f"s_waitcnt vmcnt(0)")
        e(f"v_xor_b32 v{G}, s{sNonce}, v{G+1}")
        e(f"v_xor_b32 v{G+2}, s{sNonce}, v{G+3}")
        e(f"v_or_b32 v{G}, v{G}, v{G+2}")
        e(f"v_cmp_eq_u32 vcc, 0, v{G}")
        e(f"s_cmp_gt_u32 s{sSpin}, 200000")
        e(f"s_cbranch_scc1 L_fin")
        e(f"s_cmp_eq_u32 vcc_lo, -1")
        e(f"s_cbranch_scc0 L_poll1")
        A.label("L_poll2"); A.hist = []
        for i in range(8):
            so = "0" if i < 4 else f"s{sTmp}"
            e(f"buffer_load_dwordx4 v[{G+4*i}:{G+4*i+3}], v{vT1}, s[{SA}:{SA+3}], {so} offen offset:{(i%4)*640} sc0 sc1")
        e(f"s_add_u32 s{sSpin}, s{sSpin}, 1")
        e(f"s_waitcnt vmcnt(0)")
        e(f"v_xor_b32 v{vT2}, s{sNonce}, v{G+1}")
        for i in range(8):
            for k in (1, 3):
                if i == 0 and k == 1: continue
                e(f"v_xor_b32 v{vT3}, s{sNonce}, v{G+4*i+k}")
                e(f"v_or_b32 v{vT2}, v{vT2}, v{vT3}")
        e(f"v_cmp_gt_u32 vcc, 10, v{vC}")
        e(f"v_cndmask_b32 v{vT2}, 0, v{vT2}, vcc")
        e(f"v_cmp_ne_u32 vcc, 0, v{vT2}")
        e(f"s_cmp_gt_u32 s{sSpin}, 200000")
        e(f"s_cbranch_scc1 L_fin")
        e(f"s_cmp_eq_u64 vcc, 0")
        e(f"s_cbranch_scc0 L_poll2")
        for i in range(1, 8):
            e(f"v_add_f32 v{G}, v{G}, v{G+4*i}")
            e(f"v_add_f32 v{G+2}, v{G+2}, v{G+4*i+2}")
        for r in (G, G+2):
            e(f"v_mov_b32 v{vT2}, v{r}")
            e(f"v_permlane16_swap_b32 v{r}, v{vT2}")
            e(f"v_add_f32 v{r}, v{r}, v{vT2}")
            e(f"v_mov_b32 v{vT2}, v{r}")
            e(f"v_permlane32_swap_b32 v{r}, v{vT2}")
            e(f"v_add_f32 v{r}, v{r}, v{vT2}")
        e(f"v_lshlrev_b32 v{vT2}, 16, v{vXB+1}")
        e(f"v_and_b32 v{vT3}, 0xffff0000, v{vXB+1}")
        e(f"v_add_f32 v{G}, v{G}, v{vT2}")
        e(f"v_add_f32 v{G+2}, v{G+2}, v{vT3}")
        e(f"v_lshlrev_b32 v{vT2}, 16, v{vXB}")
        e(f"v_and_b32 v{vT3}, 0xffff0000, v{vXB}")
        e(f"v_add_f32 v{G}, v{G}, v{vT2}")
        e(f"v_add_f32 v{G+2}, v{G+2}, v{vT3}")
        e(f"v_cvt_pk_bf16_f32 v{G}, v{G}, v{G+2}")
        e(f"s_mul_i32 s{sT}, s{sB}, 1280")
        e(f"s_mul_i32 s{sTmp}, s{sH}, 40")
        e(f"s_add_u32 s{sT}, s{sT}, s{sTmp}")
        srd(SD, pOUT, sT, 40)
        e(f"v_lshlrev_b32 v{vT0}, 2, v{vLane}")
        e(f"buffer_store_dword v{G}, v{vT0}, s[{SD}:{SD+3}], 0 offen")
        e(f"s_cmp_lg_u32 s{sH}, 0")
        e(f"s_cbranch_scc1 L_fin")
        e(f"s_lshl_b32 s{sT}, s{sB}, 8")
        srd(SC, pWS, sT, 4)
        e(f"v_mov_b32 v{vT2}, s{sNonce}")
        e(f"buffer_store_dword v{vT2}, v{vT0}, s[{SC}:{SC+3}], 0 offen sc0 sc1")
        e(f"s_branch L_fin")
    else:
        e(f"s_cmp_ge_u32 s{sW}, 3")
        e(f"s_cbranch_scc1 L_fin")
        e(f"v_cmp_gt_u32 vcc, 160, v0")
        e(f"s_and_saveexec_b64 s[{SAVE}:{SAVE+1}], vcc")
        e(f"v_lshlrev_b32 v{vT0}, 4, v0")
        Pp = 64
        for w in range(4):
            e(f"ds_read_b128 v[{Pp+4*w}:{Pp+4*w+3}], v{vT0} offset:{L_OUT + w*2560}")
        e(f"s_mul_i32 s{sT}, s2, 2560")
        srd(SA, pWS, sT, 2560)
        e(f"s_waitcnt lgkmcnt(0)")
        for k in range(4):
            e(f"v_add_f32 v{Pp+k}, v{Pp+k}, v{Pp+4+k}")
            e(f"v_add_f32 v{Pp+8+k}, v{Pp+8+k}, v{Pp+12+k}")
        for k in range(4):
            e(f"v_add_f32 v{Pp+k}, v{Pp+k}, v{Pp+8+k}")
        e(f"buffer_store_dwordx4 v[{Pp}:{Pp+3}], v{vT0}, s[{SA}:{SA+3}], 0 offen sc0 sc1")
        e(f"s_mul_i32 s{sT}, s{sB}, 3")
        e(f"s_add_u32 s{sT}, s{sT}, s{sW}")
        e(f"s_lshl_b32 s{sT}, s{sT}, 2")
        e(f"s_mov_b64 s[{SAVE+2}:{SAVE+3}], exec")
        e(f"s_waitcnt vmcnt(0)")
        e(f"s_mov_b64 exec, 1")
        e(f"v_mov_b32 v{vT1}, s{sT}")
        e(f"v_mov_b32 v{vT2}, 1")
        e(f"global_atomic_add v{vT3}, v{vT1}, v{vT2}, s[{pDBG}:{pDBG+1}] sc0 sc1")
        e(f"s_waitcnt vmcnt(0)")
        e(f"v_readfirstlane_b32 s{sT}, v{vT3}")
        e(f"s_mov_b64 exec, s[{SAVE+2}:{SAVE+3}]")
        e(f"s_cmp_lg_u32 s{sT}, 31")
        e(f"s_cbranch_scc1 L_fin")
        e(f"s_mul_i32 s{sT}, s{sB}, {32*2560}")
        srd(SA, pWS, sT, 32*2560)
        for hh in range(32):
            r = 96 + 4*hh
            e(f"s_mov_b32 s{sT}, {hh*2560}")
            e(f"buffer_load_dwordx4 v[{r}:{r+3}], v{vT0}, s[{SA}:{SA+3}], s{sT} offen sc0 sc1")
        e(f"s_mul_i32 s{sT}, s{sB}, 1280")
        srd(SBq, pX, sT, 1280)
        srd(SC, pB2, None, 1280)
        srd(SD, pOUT, sT, 1280)
        e(f"v_lshlrev_b32 v{vT1}, 3, v0")
        e(f"buffer_load_dwordx2 v[{Pp}:{Pp+1}], v{vT1}, s[{SBq}:{SBq+3}], 0 offen")
        e(f"buffer_load_dwordx2 v[{Pp+2}:{Pp+3}], v{vT1}, s[{SC}:{SC+3}], 0 offen")
        for hh in range(1, 32):
            e(f"s_waitcnt vmcnt({2 + 31 - hh})")
            for k in range(4):
                e(f"v_add_f32 v{96+k}, v{96+k}, v{96+4*hh+k}")
        e(f"s_waitcnt vmcnt(0)")
        for k in range(4):
            src = Pp + k//2; src2 = Pp + 2 + k//2
            if k % 2 == 0:
                e(f"v_lshlrev_b32 v{vT2}, 16, v{src}")
                e(f"v_lshlrev_b32 v{vT3}, 16, v{src2}")
            else:
                e(f"v_and_b32 v{vT2}, 0xffff0000, v{src}")
                e(f"v_and_b32 v{vT3}, 0xffff0000, v{src2}")
            e(f"v_add_f32 v{96+k}, v{96+k}, v{vT3}")
            e(f"v_add_f32 v{96+k}, v{96+k}, v{vT2}")
        e(f"v_cvt_pk_bf16_f32 v{Pp+4}, v96, v97")
        e(f"v_cvt_pk_bf16_f32 v{Pp+5}, v98, v99")
        e(f"buffer_store_dwordx2 v[{Pp+4}:{Pp+5}], v{vT1}, s[{SD}:{SD+3}], 0 offen")
        e(f"s_branch L_fin")


    A.hist = []
    A.label("L_stream")
    L = cfg.L; P = cfg.P
    Q = 12; ACC = 16; vM = 24; vSc = 25; S = 26
    vU0, vU1, vTt = 30, 31, 32
    vLs = 33; E2 = 34
    E2n = 36
    vPL, vPH, vE = 38, 39, 40
    RING = 44
    BIG = 76
    assert BIG + 4*P <= 256
    e(f"s_mov_b32 s{sScale}, {f32(128**-0.5)}")
    e(f"s_lshl_b32 s{sIss}, s{sHw}, 12")
    e(f"v_lshrrev_b32 v{vT0}, 2, v{vC}")
    e(f"v_lshl_add_u32 v{vT0}, v{vR}, 2, v{vT0}")
    e(f"s_lshl_b32 s{sT}, s{sHw}, 9")
    e(f"v_add_u32 v{vT0}, s{sT}, v{vT0}")
    e(f"v_lshlrev_b32 v{vSc}, 3, v{vT0}")
    e(f"v_add_u32 v{vSc}, {L_SC}, v{vSc}")
    e(f"s_waitcnt lgkmcnt(0)")
    e(f"s_lshl_b32 s{sT}, s2, 20")
    srd(SK, pK, sT, 1 << 20)
    srd(SV, pV, sT, 1 << 20)
    slot = {}
    def issue(n, reg):
        isV = n >= 256
        j = n % 4
        if n == 256: e(f"s_lshl_b32 s{sIss}, s{sHw}, 12")
        srdr = SV if isV else SK
        fl = cfg.vflag if isV else cfg.kflag
        e(f"buffer_load_dwordx4 v[{reg}:{reg+3}], v{vL16}, s[{srdr}:{srdr+3}], s{sIss} offen offset:{j*1024} {fl}")
        if j == 3: e(f"s_add_u32 s{sIss}, s{sIss}, 16384")
        slot[n] = reg
    m_ = "row_mask:0xf"
    def consumeK(n, scoff=None):
        j = n % 4; reg = slot[n]; i = n // 4
        for d in range(4):
            src2 = "0" if d == 0 else f"v{S+j}"
            e(f"v_dot2_f32_bf16 v{S+j}, v{reg+d}, v{Q+d}, {src2}")
        if j == 3:
            e(f"v_add_f32_dpp v{vU0}, v{S}, v{S} row_mirror {m_} bank_mask:0x3")
            e(f"v_add_f32_dpp v{vU1}, v{S+1}, v{S+1} row_mirror {m_} bank_mask:0x3")
            e(f"v_add_f32_dpp v{vU0}, v{S+2}, v{S+2} row_mirror {m_} bank_mask:0xc")
            e(f"v_add_f32_dpp v{vU1}, v{S+3}, v{S+3} row_mirror {m_} bank_mask:0xc")
            e(f"v_add_f32_dpp v{vTt}, v{vU0}, v{vU0} row_half_mirror {m_} bank_mask:0x5")
            e(f"v_add_f32_dpp v{vTt}, v{vU1}, v{vU1} row_half_mirror {m_} bank_mask:0xa")
            e(f"v_add_f32_dpp v{vTt}, v{vTt}, v{vTt} quad_perm:[1,0,3,2] {m_} bank_mask:0xf")
            e(f"v_add_f32_dpp v{vTt}, v{vTt}, v{vTt} quad_perm:[2,3,0,1] {m_} bank_mask:0xf")
            e(f"v_cvt_pk_bf16_f32 v{vTt}, 0, v{vTt}")
            e(f"v_mul_f32 v{vTt}, s{sScale}, v{vTt}")
            e(f"v_cvt_pk_bf16_f32 v{vTt}, 0, v{vTt}")
            e(f"ds_write_b32 v{vSc}, v{vTt} offset:{4*(i % 2)}")
            e(f"v_max_f32 v{vM}, v{vM}, v{vTt}")
            if i % 2 == 1: e(f"v_add_u32 v{vSc}, 128, v{vSc}")
    def consumeV(n):
        j = n % 4; reg = slot[n]; i = (n - 256) // 4
        if j == 0:
            if i % 2 == 0:
                e(f"s_waitcnt lgkmcnt(0)")
                e(f"v_sub_f32 v{E2}, v{E2n}, v{vM}")
                e(f"v_sub_f32 v{E2+1}, v{E2n+1}, v{vM}")
                e(f"ds_read_b64 v[{E2n}:{E2n+1}], v{vSc}")
                e(f"v_add_u32 v{vSc}, 128, v{vSc}")
                e(f"v_mul_f32 v{E2}, s{sL2E}, v{E2}")
                e(f"v_mul_f32 v{E2+1}, s{sL2E}, v{E2+1}")
                e(f"v_exp_f32 v{E2}, v{E2}")
                e(f"v_exp_f32 v{E2+1}, v{E2+1}")
                e(f"v_add_f32 v{vLs}, v{vLs}, v{E2}")
                e(f"v_add_f32 v{vLs}, v{vLs}, v{E2+1}")
            e(f"v_cvt_pk_bf16_f32 v{vPL}, v{E2 + i % 2}, 0")
            e(f"v_cvt_pk_bf16_f32 v{vPH}, 0, v{E2 + i % 2}")
        for d in range(4):
            e(f"v_dot2c_f32_bf16_dpp v{ACC+2*d}, v{vPL}, v{reg+d} {bc(4*j)}")
            e(f"v_dot2c_f32_bf16_dpp v{ACC+2*d+1}, v{vPH}, v{reg+d} {bc(4*j)}")
    Lp = cfg.Lp or L
    for n in range(P):
        if n == Lp: e(f"s_barrier")
        if n >= Lp: e(f"s_waitcnt vmcnt({Lp-1})")
        issue(n, BIG + 4*n)
    if P <= Lp: e("s_barrier")
    stamp(1)
    e(f"s_barrier")
    e(f"v_lshlrev_b32 v{vT0}, 4, v{vC}")
    e(f"ds_read_b128 v[{Q}:{Q+3}], v{vT0} offset:{L_QB}")
    for i in range(8): e(f"v_mov_b32 v{ACC+i}, 0")
    e(f"v_mov_b32 v{vM}, 0xff800000")
    e(f"v_mov_b32 v{vLs}, 0")
    e(f"s_waitcnt lgkmcnt(0)")
    stamp(2)
    I = P; C = 0
    free = []
    def alloc(n):
        return None
    while I - C > L:
        e(f"s_waitcnt vmcnt({L-1})")
        prev = I - 8
        ringreg = RING + 4*(I % 8)
        tenant = [n for n, r in slot.items() if r == ringreg and n >= C]
        if not tenant and (I - C) <= 16:
            reg = ringreg
        else:
            reg = free.pop(0) if free else None
            if reg is None:
                assert not tenant
                reg = ringreg
        issue(I, reg); I += 1
        for _ in range(2):
            if I - C > L:
                consumeK(C)
                if BIG <= slot[C] : free.append(slot[C])
                C += 1
    Kpat = cfg.Kpat or [L]*8
    Vpat = cfg.Vpat or [L]*8
    def target(n):
        if n >= 512: return 0
        t = Kpat[n % 8] if n < 256 else Vpat[n % 8]
        if n >= 512 - cfg.tailN: t = cfg.Ltail
        return min(t, 512 - n)
    def steady(nsteps_end):
        nonlocal I, C
        while C < nsteps_end:
            e(f"s_waitcnt vmcnt({I - C - 1})")
            while I < 512 and I - (C + 1) < target(C + 1):
                ringreg = RING + 4*(I % 8)
                assert not [n for n, r in slot.items() if r == ringreg and C <= n < I], (I, C)
                issue(I, ringreg); I += 1
            if C < 256: consumeK(C)
            else: consumeV(C)
            C += 1
    while not (C % 8 == 0 and I - C == target(C) and all(slot[n] == RING + 4*(n % 8) for n in range(C, I))):
        steady(C + 1)
    c0 = C
    niterK = (248 - c0) // 8
    assert niterK >= 1 and c0 + 8*niterK == 248, (c0, niterK)
    if cfg.exp2 == 'kstart': stamp(5)
    e(f"s_mov_b32 s{sCnt}, {niterK}")
    A.fence()
    A.label("L_kloop")
    steady(C + 8)
    e(f"s_sub_u32 s{sCnt}, s{sCnt}, 1")
    e(f"s_cmp_lg_u32 s{sCnt}, 0")
    A.fence()
    e(f"s_cbranch_scc1 L_kloop")
    shift = 248 - C
    for n in range(C, I): slot[n + shift] = slot[n]
    C += shift; I += shift
    steady(256)
    stamp(3)
    wave_red(vM, vT1, "v_max_f32")
    e(f"v_subrev_u32 v{vSc}, {32*128}, v{vSc}")
    e(f"s_waitcnt lgkmcnt(0)")
    e(f"ds_read_b64 v[{E2n}:{E2n+1}], v{vSc}")
    e(f"v_add_u32 v{vSc}, 128, v{vSc}")
    steady(264)
    vend = 512 - 8 - cfg.tailN - (8 if cfg.tailN else 0)
    niterV = (vend - 264) // 8
    e(f"s_mov_b32 s{sCnt}, {niterV}")
    A.fence()
    A.label("L_vloop")
    steady(C + 8)
    e(f"s_sub_u32 s{sCnt}, s{sCnt}, 1")
    e(f"s_cmp_lg_u32 s{sCnt}, 0")
    A.fence()
    e(f"s_cbranch_scc1 L_vloop")
    shift = vend - C
    for n in range(C, I): slot[n + shift] = slot[n]
    C += shift; I += shift
    if cfg.tailN:
        steady(512 - cfg.tailN + 8)
        nt_ = (504 - C) // 8
        if nt_ > 0:
            e(f"s_mov_b32 s{sCnt}, {nt_}")
            A.fence()
            A.label("L_tloop")
            c_ = C
            steady(C + 8)
            e(f"s_sub_u32 s{sCnt}, s{sCnt}, 1")
            e(f"s_cmp_lg_u32 s{sCnt}, 0")
            A.fence()
            e(f"s_cbranch_scc1 L_tloop")
            shift = 504 - C
            for n in range(C, I): slot[n + shift] = slot[n]
            C += shift; I += shift
    steady(512)
    stamp(4)
    m = "row_mask:0xf bank_mask:0xf"
    e(f"v_add_f32_dpp v{vLs}, v{vLs}, v{vLs} row_half_mirror {m}")
    e(f"v_add_f32_dpp v{vLs}, v{vLs}, v{vLs} row_mirror {m}")
    e(f"v_mov_b32 v{vT1}, v{vLs}")
    e(f"v_permlane16_swap_b32 v{vLs}, v{vT1}")
    e(f"v_add_f32 v{vLs}, v{vLs}, v{vT1}")
    e(f"v_mov_b32 v{vT1}, v{vLs}")
    e(f"v_permlane32_swap_b32 v{vLs}, v{vT1}")
    e(f"v_add_f32 v35, v{vLs}, v{vT1}")
    e(f"v_mov_b32 v34, v{vM}")
    reduce8(ACC, vT2, vT3)
    e(f"s_lshl_b32 s{sT}, s{sHw}, 9")
    e(f"v_add_u32 v{vT0}, s{sT}, v{vColAddr}")
    e(f"v_add_u32 v{vT0}, {L_OP}, v{vT0}")
    e(f"ds_write2_b32 v{vT0}, v{vT2}, v{vT3} offset0:0 offset1:4")
    e(f"s_lshl_b32 s{sT}, s{sHw}, 3")
    e(f"v_mov_b32 v{vT0}, s{sT}")
    e(f"ds_write_b64 v{vT0}, v[34:35] offset:{L_ML}")
    e(f"s_waitcnt lgkmcnt(0)")
    e(f"s_barrier")
    if cfg.exp2 != 'kstart': stamp(5)
    A.label("L_fin"); A.hist = []
    if cfg.stamps:
        e("s_mov_b64 exec, -1")
        stamp(6)
        e("s_waitcnt lgkmcnt(0)")
        e(f"s_lshl_b32 s{sT}, s2, 3")
        e(f"s_add_u32 s{sT}, s{sT}, s{sW}")
        e(f"s_lshl_b32 s{sT}, s{sT}, 6")
        e(f"s_add_u32 s{sT}, s{sT}, {1<<20}")
        for i in range(14): e(f"v_mov_b32 v{64+i}, s{80+i}")
        e(f"s_getreg_b32 s{sTmp}, hwreg(HW_REG_XCC_ID)")
        e(f"v_mov_b32 v78, s{sTmp}")
        e(f"v_mov_b32 v79, 0")
        e(f"v_mov_b32 v{vT0}, s{sT}")
        e("s_mov_b64 exec, 1")
        for i in range(4):
            e(f"global_store_dwordx4 v{vT0}, v[{64+4*i}:{67+4*i}], s[{pWS}:{pWS+1}] offset:{16*i}")
        e("s_waitcnt vmcnt(0)")
    A.label("L_end")
    e("s_endpgm")
    body = A.text()
    hdr = HDR + f"; @launch grid=(256,1,1) block=(512,1,1) lds={LDS_BYTES}\n"
    pre = f""".amdgcn_target "amdgcn-amd-amdhsa--gfx950"
.text
.globl {KN}
.p2align 8
.type {KN},@function
{KN}:
"""
    post = f""".section .rodata,"a"
.p2align 6
.amdhsa_kernel {KN}
  .amdhsa_next_free_vgpr 256
  .amdhsa_next_free_sgpr 102
  .amdhsa_accum_offset 256
  .amdhsa_group_segment_fixed_size 0
  .amdhsa_kernarg_size 104
  .amdhsa_user_sgpr_count 2
  .amdhsa_user_sgpr_kernarg_segment_ptr 1
  .amdhsa_system_sgpr_workgroup_id_x 1
  .amdhsa_float_denorm_mode_32 3
.end_amdhsa_kernel
"""
    return hdr + pre + body + post

if __name__ == "__main__":
    class C(Cfg): pass
    for a in sys.argv[2:]:
        k, v = a.split("=")
        setattr(C, k, eval(v))
    open(sys.argv[1], "w").write(gen(C))
```

```python
import sys, math, struct
from asmlib import Asm

KN = "parallel_sum__gqa_block_cached__mixer_channel_mlp__decode_kernel"
HDR = open("parallel_sum__gqa_block_cached__mixer_channel_mlp__decode.s.ref").read().split("; Override launch")[0]

def f32(x):
    return "0x%08x" % struct.unpack("<I", struct.pack("<f", x))[0]

class Cfg:
    kflag = "nt"
    vflag = "nt"
    wflag = ""
    stamps = False
    rot = True
    L = 5
    P = 44
    Dh = 6
    Dw = 2
    Lp = None
    Kpat = None
    Vpat = None
    tailN = 0
    Ltail = 7
    exp = ''
    exp2 = ''
    dbgstamps = False
    fin = 'tag8'

class VQ:
    def __init__(self, A):
        self.q = []; self.A = A
    def issue(self, tag, text):
        self.A(text); self.q.append(tag)
        assert len(self.q) <= 63, len(self.q)
    def wait(self, tag):
        idx = [i for i, t in enumerate(self.q) if t == tag]
        if not idx: return
        i = idx[-1]
        n = len(self.q) - 1 - i
        self.A(f"s_waitcnt vmcnt({n})")
        self.q = self.q[i+1:]
    def limit(self, n):
        if len(self.q) > n:
            self.A(f"s_waitcnt vmcnt({n})")
            self.q = self.q[len(self.q)-n:] if n else []
    def drain(self):
        self.A("s_waitcnt vmcnt(0)"); self.q = []

def gen(cfg=Cfg):
    A = Asm(); e = A
    vLane = 1; vL16 = 2; vR = 3; vC = 4
    vT0, vT1, vT2, vT3, vT4, vT5 = 5, 6, 7, 8, 9, 10
    vColAddr = 11
    sW = 3; sB = 4; sH = 5; sS = 6; sT = 7
    pX, pK, pV, pWQ, pWO, pBX, pW1, pB1 = 16, 18, 20, 22, 24, 26, 28, 30
    pW2, pB2, pOUT, pDBG = 32, 34, 36, 38
    pWS = 40
    SK, SV, SA, SBq, SC, SD, SE = 44, 48, 52, 56, 60, 64, 68
    sIss = 72; sCnt = 73; sScale = 74; sL2E = 75; sTmp = 76; sTmp2 = 77; sWr = 78; sHw = 79
    SAVE = 96
    sNonce = 100; sSpin = 101
    L_QP = 0
    L_HP = 2048
    L_QB = 3072
    L_HB = 3328
    L_ML = 3456
    L_CNT = 3488
    L_OP = 3520
    L_OUT = 5568
    L_SC = 15808
    LDS_BYTES = L_SC + 16384 + 256

    def srd(dst, ptr, off, size, size_sub=None):
        if off is None:
            e(f"s_mov_b32 s{dst}, s{ptr}")
            e(f"s_and_b32 s{dst+1}, s{ptr+1}, 0xffff")
        else:
            e(f"s_add_u32 s{dst}, s{ptr}, s{off}")
            e(f"s_addc_u32 s{dst+1}, s{ptr+1}, 0")
            e(f"s_and_b32 s{dst+1}, s{dst+1}, 0xffff")
        if size_sub is None: e(f"s_mov_b32 s{dst+2}, {size}")
        else: e(f"s_sub_u32 s{dst+2}, {size}, s{size_sub}")
        e(f"s_mov_b32 s{dst+3}, 0x20000")
    def stamp(i):
        if cfg.stamps: e(f"s_memrealtime s[{80+2*i}:{81+2*i}]")
    def bc(j): return f"row_newbcast:{j} row_mask:0xf bank_mask:0xf"
    def wave_red(v, t1, op):
        e(f"{op}_dpp v{v}, v{v}, v{v} quad_perm:[1,0,3,2] row_mask:0xf bank_mask:0xf")
        e(f"{op}_dpp v{v}, v{v}, v{v} quad_perm:[2,3,0,1] row_mask:0xf bank_mask:0xf")
        e(f"{op}_dpp v{v}, v{v}, v{v} row_half_mirror row_mask:0xf bank_mask:0xf")
        e(f"{op}_dpp v{v}, v{v}, v{v} row_mirror row_mask:0xf bank_mask:0xf")
        e(f"v_mov_b32 v{t1}, v{v}")
        e(f"v_permlane16_swap_b32 v{v}, v{t1}")
        e(f"{op} v{v}, v{v}, v{t1}")
        e(f"v_mov_b32 v{t1}, v{v}")
        e(f"v_permlane32_swap_b32 v{v}, v{t1}")
        e(f"{op} v{v}, v{v}, v{t1}")
    def reduce8(a, out0, out1):
        for p in range(4): e(f"v_permlane32_swap_b32 v{a+2*p}, v{a+2*p+1}")
        for p in range(4): e(f"v_add_f32 v{a+2*p}, v{a+2*p}, v{a+2*p+1}")
        e(f"v_permlane16_swap_b32 v{a}, v{a+2}")
        e(f"v_permlane16_swap_b32 v{a+4}, v{a+6}")
        e(f"v_add_f32 v{out0}, v{a}, v{a+2}")
        e(f"v_add_f32 v{out1}, v{a+4}, v{a+6}")
    def perm_reg(dst, t):
        e(f"v_and_b32 v{dst}, 1, v{vR}")
        e(f"v_lshlrev_b32 v{dst}, 1, v{dst}")
        e(f"v_lshrrev_b32 v{t}, 1, v{vR}")
        e(f"v_or_b32 v{dst}, v{dst}, v{t}")

    e(f"s_cmp_ge_u32 s2, 256")
    e(f"s_cbranch_scc1 L_end")
    stamp(0)
    e(f"s_load_dwordx16 s[16:31], s[0:1], 0")
    e(f"s_load_dwordx8 s[32:39], s[0:1], 64")
    e(f"s_load_dwordx2 s[40:41], s[0:1], 96")
    e(f"v_and_b32 v{vLane}, 63, v0")
    e(f"v_lshrrev_b32 v{vT0}, 6, v0")
    e(f"v_readfirstlane_b32 s{sW}, v{vT0}")
    e(f"s_lshr_b32 s{sB}, s2, 5")
    e(f"s_and_b32 s{sH}, s2, 31")
    e(f"v_lshlrev_b32 v{vL16}, 4, v{vLane}")
    e(f"v_lshrrev_b32 v{vR}, 4, v{vLane}")
    e(f"v_and_b32 v{vC}, 15, v{vLane}")
    e(f"s_and_b32 s{sHw}, s{sW}, 3")
    e(f"s_mov_b32 s{sL2E}, {f32(1.4426950408889634)}")
    perm_reg(vT4, vT1)
    e(f"v_lshl_add_u32 v{vT0}, v{vC}, 3, v{vT4}")
    e(f"v_lshlrev_b32 v{vColAddr}, 2, v{vT0}")
    e(f"s_cmp_ge_u32 s{sW}, 4")
    e(f"s_cbranch_scc1 L_stream")

    vq = VQ(A)
    XR = 224
    XU = 230
    OWN = 240
    XL = [12, 14, 16]; XH = [13, 15, 17]
    YL = [18, 20, 22]; YH = [19, 21, 23]
    ACCQ = 24
    ACCH = 32
    vB1 = 36; vHL = 37; vHH = 38; vOff = 39
    MLPS = 40
    ACC2 = 50
    W = 64
    W1R = 244
    if cfg.rot:
        e(f"s_add_u32 s{sWr}, s{sHw}, s{sB}")
        e(f"s_and_b32 s{sWr}, s{sWr}, 3")
    else:
        e(f"s_mov_b32 s{sWr}, s{sHw}")
    e(f"s_and_b32 s{sS}, s{sH}, 7")
    e(f"s_lshl_b32 s{sS}, s{sS}, 2")
    e(f"s_lshr_b32 s{sT}, s{sH}, 3")
    e(f"s_add_u32 s{sS}, s{sS}, s{sT}")
    e(f"s_mul_i32 s{sTmp}, s{sWr}, 160")
    e(f"v_add_u32 v{vT0}, s{sTmp}, v{vR}")
    e(f"v_lshlrev_b32 v{vOff}, 13, v{vT0}")
    e(f"v_lshl_add_u32 v{vOff}, v{vC}, 4, v{vOff}")
    e(f"v_lshl_add_u32 v{vT1}, v{vC}, 2, v{vR}")
    e(f"v_add_u32 v{vT2}, s{sTmp}, v{vT1}")
    e(f"v_lshlrev_b32 v{vT2}, 1, v{vT2}")
    e(f"v_lshlrev_b32 v{vT3}, 2, v{vLane}")
    if cfg.fin in ('tag', 'tag8'):
        e(f"s_lshl_b32 s{sTmp}, s{sB}, 8")
        e(f"s_waitcnt lgkmcnt(0)")
        e(f"s_load_dword s{sNonce}, s[{pWS}:{pWS+1}], s{sTmp}")
    e(f"v_mov_b32 v{vT5}, 0")
    e(f"ds_write_b32 v{vT5}, v{vT5} offset:{L_CNT}")
    e(f"ds_write_b32 v{vT5}, v{vT5} offset:{L_CNT+4}")
    e(f"ds_write_b32 v{vT5}, v{vT5} offset:{L_CNT+8}")
    e(f"s_waitcnt lgkmcnt(0)")
    e(f"s_mul_i32 s{sTmp}, s{sB}, 1280")
    srd(SA, pX, sTmp, 1280)
    e(f"s_lshl_b32 s{sT}, s{sH}, 8")
    srd(SC, pWQ, sT, 640*8192, size_sub=sT)
    vq.issue("X", f"buffer_load_dwordx4 v[{XR}:{XR+3}], v{vL16}, s[{SA}:{SA+3}], 0 offen")
    vq.issue("X", f"buffer_load_dword v{XR+4}, v{vT3}, s[{SA}:{SA+3}], 0 offen offset:1024")
    for m in range(3):
        vq.issue("X", f"buffer_load_ushort v{OWN+m}, v{vT2}, s[{SA}:{SA+3}], 0 offen offset:{128*m}")
    def wq_load(j):
        e(f"s_mov_b32 s{sT}, {j*32768}")
        vq.issue(("WQ", j), f"buffer_load_dwordx4 v[{W+4*j}:{W+4*j+3}], v{vOff}, s[{SC}:{SC+3}], s{sT} offen {cfg.wflag}")
    nq = 0
    for j in range(cfg.Dh): wq_load(j); nq += 1
    e(f"s_barrier")
    def unpack_xr():
        for i in range(5):
            e(f"v_lshlrev_b32 v{XU+2*i}, 16, v{XR+i}")
            e(f"v_and_b32 v{XU+2*i+1}, 0xffff0000, v{XR+i}")
    def layernorm(norm_regs):
        s_, t1, mean, mb = vT0, vT1, vT2, vT3
        e(f"v_add_f32 v{s_}, v{XU}, v{XU+1}")
        e(f"v_add_f32 v{t1}, v{XU+2}, v{XU+3}")
        e(f"v_add_f32 v{mean}, v{XU+4}, v{XU+5}")
        e(f"v_add_f32 v{mb}, v{XU+6}, v{XU+7}")
        e(f"v_add_f32 v{s_}, v{s_}, v{t1}")
        e(f"v_add_f32 v{t1}, v{XU+8}, v{XU+9}")
        e(f"v_add_f32 v{mean}, v{mean}, v{mb}")
        e(f"v_add_f32 v{s_}, v{s_}, v{t1}")
        e(f"v_add_f32 v{s_}, v{s_}, v{mean}")
        wave_red(s_, t1, "v_add_f32")
        e(f"v_mul_f32 v{mean}, {f32(1.0/640)}, v{s_}")
        e(f"v_cvt_pk_bf16_f32 v{mb}, 0, v{mean}")
        e(f"v_sub_f32 v{t1}, v{XU}, v{mean}")
        e(f"v_mul_f32 v{s_}, v{t1}, v{t1}")
        for i in range(1, 10):
            e(f"v_sub_f32 v{t1}, v{XU+i}, v{mean}")
            e(f"v_fmac_f32 v{s_}, v{t1}, v{t1}")
        wave_red(s_, t1, "v_add_f32")
        e(f"v_mul_f32 v{s_}, {f32(1.0/640)}, v{s_}")
        e(f"v_cvt_pk_bf16_f32 v{s_}, 0, v{s_}")
        e(f"v_add_f32 v{s_}, {f32(1e-5)}, v{s_}")
        e(f"v_cvt_pk_bf16_f32 v{s_}, 0, v{s_}")
        e(f"v_sqrt_f32 v{s_}, v{s_}")
        e(f"v_cvt_pk_bf16_f32 v{s_}, 0, v{s_}")
        e(f"v_rcp_f32 v{s_}, v{s_}")
        for r in norm_regs: e(f"v_sub_f32 v{r}, v{r}, v{mb}")
        for r in norm_regs: e(f"v_cvt_pk_bf16_f32 v{r}, 0, v{r}")
        for r in norm_regs: e(f"v_mul_f32 v{r}, v{r}, v{s_}")
        for r in norm_regs: e(f"v_cvt_pk_bf16_f32 v{r}, 0, v{r}")
    vq.wait("X")
    unpack_xr()
    for m in range(3): e(f"v_lshlrev_b32 v{OWN+m}, 16, v{OWN+m}")
    layernorm([XU+i for i in range(10)] + [OWN+m for m in range(3)])
    for m in range(3):
        e(f"v_mov_b32 v{XH[m]}, v{OWN+m}")
        e(f"v_lshrrev_b32 v{XL[m]}, 16, v{OWN+m}")
    for i in range(8): e(f"v_mov_b32 v{ACCQ+i}, 0")
    stamp(1)
    for j in range(40):
        vq.wait(("WQ", j))
        if nq < 40: wq_load(nq); nq += 1
        m, jj = divmod(j, 16)
        for d in range(4):
            e(f"v_dot2c_f32_bf16_dpp v{ACCQ+2*d}, v{XL[m]}, v{W+4*j+d} {bc(jj)}")
            e(f"v_dot2c_f32_bf16_dpp v{ACCQ+2*d+1}, v{XH[m]}, v{W+4*j+d} {bc(jj)}")
    reduce8(ACCQ, vT2, vT3)
    e(f"s_lshl_b32 s{sT}, s{sHw}, 9")
    e(f"v_add_u32 v{vT0}, s{sT}, v{vColAddr}")
    e(f"ds_write2_b32 v{vT0}, v{vT2}, v{vT3} offset0:{L_QP//4} offset1:{L_QP//4+4}")
    e(f"v_mov_b32 v{vT0}, 0")
    e(f"v_mov_b32 v{vT1}, 1")
    e(f"s_waitcnt lgkmcnt(0)")
    e(f"s_mov_b64 exec, 1")
    e(f"ds_add_rtn_u32 v{vT2}, v{vT0}, v{vT1} offset:{L_CNT}")
    e(f"s_waitcnt lgkmcnt(0)")
    e(f"v_readfirstlane_b32 s{sT}, v{vT2}")
    e(f"s_mov_b64 exec, -1")
    e(f"s_cmp_lg_u32 s{sT}, 3")
    e(f"s_cbranch_scc1 L_qdone")
    e(f"v_lshlrev_b32 v{vT0}, 3, v{vLane}")
    for w in range(4):
        e(f"ds_read_b64 v[{XU+2*w}:{XU+2*w+1}], v{vT0} offset:{L_QP + w*512}")
    e(f"s_waitcnt lgkmcnt(0)")
    e(f"v_pk_add_f32 v[{XU}:{XU+1}], v[{XU}:{XU+1}], v[{XU+2}:{XU+3}]")
    e(f"v_pk_add_f32 v[{XU+4}:{XU+5}], v[{XU+4}:{XU+5}], v[{XU+6}:{XU+7}]")
    e(f"v_pk_add_f32 v[{XU}:{XU+1}], v[{XU}:{XU+1}], v[{XU+4}:{XU+5}]")
    e(f"v_cvt_pk_bf16_f32 v{XU}, v{XU}, v{XU+1}")
    e(f"v_lshlrev_b32 v{vT0}, 2, v{vLane}")
    e(f"ds_write_b32 v{vT0}, v{XU} offset:{L_QB}")
    e(f"s_waitcnt lgkmcnt(0)")
    A.label("L_qdone"); A.hist = []
    e(f"s_barrier")
    stamp(2)
    unpack_xr()
    layernorm([XU+i for i in range(10)])
    for m in range(3): e(f"v_mov_b32 v{OWN+m}, v{XH[m]}")
    layernorm([OWN+m for m in range(3)])
    for m in range(3):
        e(f"v_mov_b32 v{YH[m]}, v{OWN+m}")
        e(f"v_lshrrev_b32 v{YL[m]}, 16, v{OWN+m}")
    for i in range(4): e(f"v_mov_b32 v{ACCH+i}, 0")
    e(f"s_mul_i32 s{sTmp2}, s{sS}, {0 if cfg.exp == 'hot' else 108}")
    srd(SD, pW1, sTmp2, 640*3456, size_sub=sTmp2)
    srd(SBq, pB1, sTmp2, 3456, size_sub=sTmp2)
    e(f"s_mul_i32 s{sTmp}, s{sWr}, 160")
    e(f"v_add_u32 v{vT0}, s{sTmp}, v{vR}")
    e(f"s_mov_b32 s{sT}, 3456")
    e(f"v_mul_lo_u32 v{vOff}, v{vT0}, s{sT}")
    e(f"v_lshl_add_u32 v{vOff}, v{vC}, 3, v{vOff}")
    e(f"v_lshlrev_b32 v{vT4}, 1, v{vLane}")
    vq.issue("B1", f"buffer_load_ushort v{vB1}, v{vT4}, s[{SBq}:{SBq+3}], 0 offen")
    NS1 = 6
    def w1_load(j):
        if cfg.exp == 'skip': return
        e(f"s_mov_b32 s{sT}, {j*13824}")
        r = W1R + 2*(j % NS1)
        vq.issue(("W1", j), f"buffer_load_dwordx2 v[{r}:{r+1}], v{vOff}, s[{SD}:{SD+3}], s{sT} offen {cfg.wflag}")
    d1 = min(2*cfg.Dw, NS1 - 1)
    n1 = 0
    for j in range(d1): w1_load(j); n1 += 1
    for j in range(40):
        vq.wait(("W1", j))
        if n1 < 40: w1_load(n1); n1 += 1
        m, jj = divmod(j, 16)
        r = W1R + 2*(j % NS1)
        for d in range(2):
            e(f"v_dot2c_f32_bf16_dpp v{ACCH+2*d}, v{YL[m]}, v{r+d} {bc(jj)}")
            e(f"v_dot2c_f32_bf16_dpp v{ACCH+2*d+1}, v{YH[m]}, v{r+d} {bc(jj)}")
    e(f"s_mul_i32 s{sT}, s{sS}, {0 if cfg.exp == 'hot' else 54*1280}")
    srd(SE, pW2, sT, 1728*1280, size_sub=sT)
    e(f"s_mul_i32 s{sTmp}, s{sHw}, 14")
    e(f"v_add_u32 v{vT0}, s{sTmp}, v{vR}")
    e(f"s_mov_b32 s{sT}, 1280")
    e(f"v_mul_lo_u32 v{vOff}, v{vT0}, s{sT}")
    e(f"v_lshl_add_u32 v{vOff}, v{vC}, 4, v{vOff}")
    for blk in range(5):
        for g in range(4):
            n = blk*4 + g
            if cfg.exp == 'skip': continue
            vq.limit(cfg.Dw - 1)
            e(f"s_mov_b32 s{sT}, {g*5120}")
            vq.issue(("W2", blk), f"buffer_load_dwordx4 v[{W+4*n}:{W+4*n+3}], v{vOff}, s[{SE}:{SE+3}], s{sT} offen offset:{blk*256} {cfg.wflag}")
    e(f"v_permlane32_swap_b32 v{ACCH}, v{ACCH+1}")
    e(f"v_permlane32_swap_b32 v{ACCH+2}, v{ACCH+3}")
    e(f"v_add_f32 v{ACCH}, v{ACCH}, v{ACCH+1}")
    e(f"v_add_f32 v{ACCH+2}, v{ACCH+2}, v{ACCH+3}")
    e(f"v_permlane16_swap_b32 v{ACCH}, v{ACCH+2}")
    e(f"v_add_f32 v{ACCH}, v{ACCH}, v{ACCH+2}")
    perm_reg(vT4, vT1)
    e(f"v_lshl_add_u32 v{vT0}, v{vC}, 2, v{vT4}")
    e(f"v_lshlrev_b32 v{vT0}, 2, v{vT0}")
    e(f"s_lshl_b32 s{sT}, s{sHw}, 8")
    e(f"v_add_u32 v{vT0}, s{sT}, v{vT0}")
    e(f"ds_write_b32 v{vT0}, v{ACCH} offset:{L_HP}")
    e(f"v_mov_b32 v{vT0}, 0")
    e(f"v_mov_b32 v{vT1}, 1")
    e(f"s_waitcnt lgkmcnt(0)")
    e(f"s_mov_b64 exec, 1")
    e(f"ds_add_rtn_u32 v{vT2}, v{vT0}, v{vT1} offset:{L_CNT+4}")
    e(f"s_waitcnt lgkmcnt(0)")
    e(f"v_readfirstlane_b32 s{sT}, v{vT2}")
    e(f"s_mov_b64 exec, -1")
    vq.wait("B1")
    e(f"s_cmp_lg_u32 s{sT}, 3")
    e(f"s_cbranch_scc1 L_hwait")
    T = 230
    e(f"v_lshlrev_b32 v{vT0}, 2, v{vLane}")
    for w in range(4):
        e(f"ds_read_b32 v{T+w}, v{vT0} offset:{L_HP + w*256}")
    e(f"s_waitcnt lgkmcnt(0)")
    e(f"v_add_f32 v{T}, v{T}, v{T+1}")
    e(f"v_add_f32 v{T+2}, v{T+2}, v{T+3}")
    e(f"v_add_f32 v{T}, v{T}, v{T+2}")
    x_ = T
    e(f"v_cvt_pk_bf16_f32 v{x_}, 0, v{x_}")
    e(f"v_lshlrev_b32 v{vB1}, 16, v{vB1}")
    e(f"v_add_f32 v{x_}, v{x_}, v{vB1}")
    e(f"v_cvt_pk_bf16_f32 v{x_}, 0, v{x_}")
    e(f"v_mul_f32 v{vT1}, v{x_}, v{x_}")
    e(f"v_mul_f32 v{vT1}, v{vT1}, v{x_}")
    e(f"v_mov_b32 v{vT2}, {f32(0.044715)}")
    e(f"v_fma_f32 v{vT1}, v{vT1}, v{vT2}, v{x_}")
    e(f"v_mul_f32 v{vT1}, {f32(-2.0*math.sqrt(2.0/math.pi)*1.4426950408889634)}, v{vT1}")
    e(f"v_exp_f32 v{vT1}, v{vT1}")
    e(f"v_add_f32 v{vT1}, 1.0, v{vT1}")
    e(f"v_rcp_f32 v{vT1}, v{vT1}")
    e(f"v_mul_f32 v{x_}, v{x_}, v{vT1}")
    e(f"v_cvt_pk_bf16_f32 v{x_}, v{x_}, 0")
    e(f"v_cmp_gt_u32 vcc, 54, v{vLane}")
    e(f"v_cndmask_b32 v{x_}, 0, v{x_}, vcc")
    e(f"v_lshlrev_b32 v{vT0}, 1, v{vLane}")
    e(f"ds_write_b16 v{vT0}, v{x_} offset:{L_HB}")
    e(f"v_mov_b32 v{vT0}, 0")
    e(f"v_mov_b32 v{vT1}, 1")
    e(f"s_waitcnt lgkmcnt(0)")
    e(f"ds_write_b32 v{vT0}, v{vT1} offset:{L_CNT+8}")
    e(f"s_waitcnt lgkmcnt(0)")
    A.label("L_hwait"); A.hist = []
    e(f"v_mov_b32 v{vT0}, 0")
    A.label("L_hspin")
    e(f"ds_read_b32 v{vT1}, v{vT0} offset:{L_CNT+8}")
    e(f"s_waitcnt lgkmcnt(0)")
    e(f"v_readfirstlane_b32 s{sT}, v{vT1}")
    e(f"s_cmp_eq_u32 s{sT}, 0")
    e(f"s_cbranch_scc0 L_hgo")
    e(f"s_sleep 2")
    e(f"s_branch L_hspin")
    A.label("L_hgo"); A.hist = []
    e(f"s_mul_i32 s{sTmp}, s{sHw}, 14")
    e(f"v_lshl_add_u32 v{vT1}, v{vC}, 2, v{vR}")
    e(f"v_add_u32 v{vT2}, s{sTmp}, v{vT1}")
    e(f"v_and_b32 v{vT2}, 63, v{vT2}")
    e(f"v_lshlrev_b32 v{vT2}, 1, v{vT2}")
    e(f"ds_read_u16 v{vHL}, v{vT2} offset:{L_HB}")
    e(f"v_cmp_gt_u32 vcc, 14, v{vT1}")
    e(f"s_waitcnt lgkmcnt(0)")
    e(f"v_cndmask_b32 v{vHL}, 0, v{vHL}, vcc")
    e(f"v_lshlrev_b32 v{vHH}, 16, v{vHL}")
    for blk in range(5):
        for i in range(8): e(f"v_mov_b32 v{ACC2+i}, 0")
        vq.wait(("W2", blk))
        for g in range(4):
            r = W + 4*(blk*4 + g)
            for d in range(4):
                e(f"v_dot2c_f32_bf16_dpp v{ACC2+2*d}, v{vHL}, v{r+d} {bc(g)}")
                e(f"v_dot2c_f32_bf16_dpp v{ACC2+2*d+1}, v{vHH}, v{r+d} {bc(g)}")
        reduce8(ACC2, MLPS + 2*blk, MLPS + 2*blk + 1)
    e(f"s_mul_i32 s{sT}, s{sH}, {0 if cfg.exp == 'hot' else 128*1280}")
    srd(SC, pWO, sT, 4096*1280, size_sub=sT)
    e(f"s_lshl_b32 s{sTmp}, s{sHw}, 5")
    e(f"v_add_u32 v{vT0}, s{sTmp}, v{vR}")
    e(f"s_mov_b32 s{sT}, 1280")
    e(f"v_mul_lo_u32 v{vOff}, v{vT0}, s{sT}")
    e(f"v_lshl_add_u32 v{vOff}, v{vC}, 4, v{vOff}")
    for g in range(8):
        for blk in range(5):
            n = g*5 + blk
            if cfg.exp == 'skip': continue
            vq.limit(cfg.Dw - 1)
            e(f"s_mov_b32 s{sT}, {g*5120}")
            vq.issue(("WO", n), f"buffer_load_dwordx4 v[{W+4*n}:{W+4*n+3}], v{vOff}, s[{SC}:{SC+3}], s{sT} offen offset:{blk*256} {cfg.wflag}")
    vXB = 62
    vXB2 = 58
    if cfg.fin == 'tag8':
        e(f"s_mul_i32 s{sT}, s{sB}, 1280")
        e(f"s_mul_i32 s{sTmp}, s{sH}, 40")
        e(f"s_add_u32 s{sT}, s{sT}, s{sTmp}")
        srd(SBq, pX, sT, 40)
        srd(SD, pB2, sTmp, 40)
        e(f"v_and_b32 v{vT0}, 7, v{vLane}")
        e(f"v_lshlrev_b32 v{vT0}, 3, v{vT0}")
        vq.issue("XB", f"buffer_load_dwordx2 v[{vXB2}:{vXB2+1}], v{vT0}, s[{SBq}:{SBq+3}], 0 offen")
        vq.issue("XB", f"buffer_load_dwordx2 v[{vXB2+2}:{vXB2+3}], v{vT0}, s[{SD}:{SD+3}], 0 offen")
        e(f"s_add_u32 s{sNonce}, s{sNonce}, 1")
    if cfg.fin == 'tag':
        e(f"s_mul_i32 s{sT}, s{sB}, 1280")
        e(f"s_mul_i32 s{sTmp}, s{sH}, 40")
        e(f"s_add_u32 s{sT}, s{sT}, s{sTmp}")
        srd(SBq, pX, sT, 40)
        srd(SD, pB2, sTmp, 40)
        e(f"v_lshlrev_b32 v{vT0}, 2, v{vC}")
        vq.issue("XB", f"buffer_load_dword v{vXB}, v{vT0}, s[{SBq}:{SBq+3}], 0 offen")
        vq.issue("XB", f"buffer_load_dword v{vXB+1}, v{vT0}, s[{SD}:{SD+3}], 0 offen")
        e(f"s_add_u32 s{sNonce}, s{sNonce}, 1")
    ACCO = 224 - 0
    ACCO = 12
    acco = list(range(12, 40)) + list(range(50, 62))
    ACB = [12, 20, 28, 50, 224]
    for b_ in ACB:
        for i in range(8): e(f"v_mov_b32 v{b_+i}, 0")
    e(f"s_lshl_b32 s{sT}, s{sHw}, 5")
    e(f"v_lshl_add_u32 v{vT1}, v{vC}, 2, v{vR}")
    e(f"v_add_u32 v{vT1}, s{sT}, v{vT1}")
    e(f"v_and_b32 v{vT1}, 127, v{vT1}")
    e(f"v_lshlrev_b32 v{vT1}, 2, v{vT1}")
    e(f"v_mov_b32 v{vT0}, 0")
    vq.drain()
    stamp(3)
    e(f"s_barrier")
    stamp(4)
    ML = 232; OP = 240
    e(f"ds_read_b128 v[{ML}:{ML+3}], v{vT0} offset:{L_ML}")
    e(f"ds_read_b128 v[{ML+4}:{ML+7}], v{vT0} offset:{L_ML+16}")
    for w in range(4):
        e(f"ds_read_b32 v{OP+w}, v{vT1} offset:{L_OP + w*512}")
    e(f"s_waitcnt lgkmcnt(4)")
    vMn, vL, vE, vPL, vPH = 244, 245, 246, 247, 248
    e(f"v_max3_f32 v{vMn}, v{ML}, v{ML+2}, v{ML+4}")
    e(f"v_max_f32 v{vMn}, v{vMn}, v{ML+6}")
    for w in range(4): e(f"v_sub_f32 v{ML+2*w}, v{ML+2*w}, v{vMn}")
    for w in range(4): e(f"v_mul_f32 v{ML+2*w}, s{sL2E}, v{ML+2*w}")
    for w in range(4): e(f"v_exp_f32 v{ML+2*w}, v{ML+2*w}")
    e(f"s_waitcnt lgkmcnt(0)")
    e(f"v_mul_f32 v{vL}, v{ML}, v{ML+1}")
    e(f"v_mul_f32 v{vE}, v{ML}, v{OP}")
    for w in range(1, 4):
        e(f"v_fmac_f32 v{vL}, v{ML+2*w}, v{ML+2*w+1}")
        e(f"v_fmac_f32 v{vE}, v{ML+2*w}, v{OP+w}")
    e(f"v_rcp_f32 v{vL}, v{vL}")
    e(f"v_mul_f32 v{vE}, v{vE}, v{vL}")
    e(f"v_cvt_pk_bf16_f32 v{vPL}, v{vE}, 0")
    e(f"v_cvt_pk_bf16_f32 v{vPH}, 0, v{vE}")
    RES = 232
    for blk in range(5):
        for g in range(8):
            r = W + (g*5 + blk)*4
            for d in range(4):
                e(f"v_dot2c_f32_bf16_dpp v{ACB[blk]+2*d}, v{vPL}, v{r+d} {bc(g)}")
                e(f"v_dot2c_f32_bf16_dpp v{ACB[blk]+2*d+1}, v{vPH}, v{r+d} {bc(g)}")
        if blk > 0:
            reduce8(ACB[blk-1], RES + 2*(blk-1), RES + 2*(blk-1) + 1)
    reduce8(ACB[4], RES + 8, RES + 9)
    for i in range(10): e(f"v_add_f32 v{RES+i}, v{RES+i}, v{MLPS+i}")
    e(f"s_mul_i32 s{sT}, s{sHw}, 2560")
    e(f"v_add_u32 v{vT0}, s{sT}, v{vColAddr}")
    e(f"v_add_u32 v{vT0}, {L_OUT}, v{vT0}")
    for blk in range(5):
        e(f"ds_write_b32 v{vT0}, v{RES+2*blk} offset:{blk*512}")
        e(f"ds_write_b32 v{vT0}, v{RES+2*blk+1} offset:{blk*512+16}")
    e(f"s_waitcnt lgkmcnt(0)")
    e(f"s_barrier")
    stamp(5)
    if cfg.fin == 'tag8':
        GB = 4096
        e(f"s_and_b32 s{sTmp2}, s{sNonce}, 0xff")
        e(f"s_cmp_eq_u32 s{sW}, 3")
        e(f"s_cbranch_scc1 L_cons")
        e(f"v_cmp_gt_u32 vcc, 160, v0")
        e(f"s_and_saveexec_b64 s[{SAVE}:{SAVE+1}], vcc")
        e(f"v_lshlrev_b32 v{vT0}, 4, v0")
        Pp = 64
        for w in range(4):
            e(f"ds_read_b128 v[{Pp+4*w}:{Pp+4*w+3}], v{vT0} offset:{L_OUT + w*2560}")
        e(f"s_mul_i32 s{sT}, s{sB}, {32*2560}")
        e(f"s_add_u32 s{sT}, s{sT}, {GB}")
        srd(SA, pWS, sT, 32*2560)
        e(f"v_mul_u32_u24 v{vT1}, 205, v0")
        e(f"v_lshrrev_b32 v{vT1}, 10, v{vT1}")
        e(f"v_mul_u32_u24 v{vT2}, 5, v{vT1}")
        e(f"v_sub_u32 v{vT2}, v0, v{vT2}")
        e(f"v_mul_u32_u24 v{vT1}, 2560, v{vT1}")
        e(f"v_lshl_add_u32 v{vT1}, v{vT2}, 4, v{vT1}")
        e(f"s_mul_i32 s{sT}, s{sH}, 80")
        e(f"v_mov_b32 v{vT3}, 0xffffff00")
        e(f"v_mov_b32 v{vT4}, s{sTmp2}")
        e(f"s_waitcnt lgkmcnt(0)")
        for k in range(4):
            e(f"v_add_f32 v{Pp+k}, v{Pp+k}, v{Pp+4+k}")
            e(f"v_add_f32 v{Pp+8+k}, v{Pp+8+k}, v{Pp+12+k}")
        for k in range(4):
            e(f"v_add_f32 v{Pp+k}, v{Pp+k}, v{Pp+8+k}")
        for k in range(4):
            e(f"v_add_u32 v{Pp+k}, 0x80, v{Pp+k}")
        for k in range(4):
            e(f"v_and_or_b32 v{Pp+k}, v{Pp+k}, v{vT3}, v{vT4}")
        e(f"buffer_store_dwordx4 v[{Pp}:{Pp+3}], v{vT1}, s[{SA}:{SA+3}], s{sT} offen sc0 sc1")
        e(f"s_branch L_fin")
        A.label("L_cons"); A.hist = []
        e(f"s_mul_i32 s{sT}, s2, 2560")
        e(f"s_add_u32 s{sT}, s{sT}, {GB}")
        srd(SA, pWS, sT, 2560)
        e(f"v_lshrrev_b32 v{vT0}, 3, v{vLane}")
        e(f"v_and_b32 v{vT4}, 7, v{vLane}")
        e(f"v_mul_u32_u24 v{vT1}, 80, v{vT0}")
        e(f"v_lshl_add_u32 v{vT1}, v{vT4}, 4, v{vT1}")
        e(f"s_mov_b32 s{sSpin}, 0")
        e(f"v_mov_b32 v{vT5}, s{sTmp2}")
        G = 64
        A.label("L_poll2"); A.hist = []
        for i in range(4):
            e(f"buffer_load_dwordx4 v[{G+4*i}:{G+4*i+3}], v{vT1}, s[{SA}:{SA+3}], 0 offen offset:{i*640} sc0 sc1")
        e(f"s_add_u32 s{sSpin}, s{sSpin}, 1")
        e(f"s_waitcnt vmcnt(0)")
        X = 84
        for k in range(16):
            e(f"v_xor_b32 v{X+k}, v{vT5}, v{G+k}")
        for k in range(0, 15, 3):
            e(f"v_or3_b32 v{X+k}, v{X+k}, v{X+k+1}, v{X+k+2}")
        e(f"v_or3_b32 v{X}, v{X}, v{X+3}, v{X+6}")
        e(f"v_or3_b32 v{X+9}, v{X+9}, v{X+12}, v{X+15}")
        e(f"v_or_b32 v{X}, v{X}, v{X+9}")
        e(f"v_and_b32 v{X}, 0xff, v{X}")
        e(f"v_cmp_gt_u32 vcc, 5, v{vT4}")
        e(f"v_cndmask_b32 v{X}, 0, v{X}, vcc")
        e(f"v_cmp_ne_u32 vcc, 0, v{X}")
        e(f"s_cmp_gt_u32 s{sSpin}, 200000")
        e(f"s_cbranch_scc1 L_fin")
        e(f"s_cmp_eq_u64 vcc, 0")
        e(f"s_cbranch_scc0 L_poll2")
        for k in range(16):
            e(f"v_and_b32 v{G+k}, 0xffffff00, v{G+k}")
        for k in range(4):
            e(f"v_add_f32 v{G+k}, v{G+k}, v{G+4+k}")
            e(f"v_add_f32 v{G+8+k}, v{G+8+k}, v{G+12+k}")
        for k in range(4):
            e(f"v_add_f32 v{G+k}, v{G+k}, v{G+8+k}")
        for k in range(4):
            e(f"v_add_f32_dpp v{G+k}, v{G+k}, v{G+k} row_ror:8 row_mask:0xf bank_mask:0xf")
        for k in range(4):
            e(f"v_mov_b32 v{G+4+k}, v{G+k}")
        for k in range(4):
            e(f"v_permlane16_swap_b32 v{G+k}, v{G+4+k}")
        for k in range(4):
            e(f"v_add_f32 v{G+k}, v{G+k}, v{G+4+k}")
        for k in range(4):
            e(f"v_mov_b32 v{G+4+k}, v{G+k}")
        for k in range(4):
            e(f"v_permlane32_swap_b32 v{G+k}, v{G+4+k}")
        for k in range(4):
            e(f"v_add_f32 v{G+k}, v{G+k}, v{G+4+k}")
        for k in range(4):
            for src in (vXB2 + 2 + k//2, vXB2 + k//2):
                if k % 2 == 0: e(f"v_lshlrev_b32 v{vT2}, 16, v{src}")
                else: e(f"v_and_b32 v{vT2}, 0xffff0000, v{src}")
                e(f"v_add_f32 v{G+k}, v{G+k}, v{vT2}")
        e(f"v_cvt_pk_bf16_f32 v{G+4}, v{G}, v{G+1}")
        e(f"v_cvt_pk_bf16_f32 v{G+5}, v{G+2}, v{G+3}")
        e(f"s_mul_i32 s{sT}, s{sB}, 1280")
        e(f"s_mul_i32 s{sTmp}, s{sH}, 40")
        e(f"s_add_u32 s{sT}, s{sT}, s{sTmp}")
        srd(SD, pOUT, sT, 40)
        e(f"v_lshlrev_b32 v{vT0}, 3, v{vLane}")
        e(f"buffer_store_dwordx2 v[{G+4}:{G+5}], v{vT0}, s[{SD}:{SD+3}], 0 offen")
        e(f"s_cmp_lg_u32 s{sH}, 0")
        e(f"s_cbranch_scc1 L_fin")
        e(f"s_lshl_b32 s{sT}, s{sB}, 8")
        srd(SC, pWS, sT, 4)
        e(f"v_mov_b32 v{vT2}, s{sNonce}")
        e(f"buffer_store_dword v{vT2}, v{vT0}, s[{SC}:{SC+3}], 0 offen sc0 sc1")
        e(f"s_branch L_fin")
    elif cfg.fin == 'tag':
        GB = 4096
        e(f"s_cmp_eq_u32 s{sW}, 3")
        e(f"s_cbranch_scc1 L_cons")
        e(f"v_cmp_gt_u32 vcc, 160, v0")
        e(f"s_and_saveexec_b64 s[{SAVE}:{SAVE+1}], vcc")
        e(f"v_lshlrev_b32 v{vT0}, 4, v0")
        Pp = 64
        for w in range(4):
            e(f"ds_read_b128 v[{Pp+4*w}:{Pp+4*w+3}], v{vT0} offset:{L_OUT + w*2560}")
        e(f"s_mul_i32 s{sT}, s{sB}, {32*5120}")
        e(f"s_add_u32 s{sT}, s{sT}, {GB}")
        srd(SA, pWS, sT, 32*5120)
        e(f"v_mul_u32_u24 v{vT1}, 205, v0")
        e(f"v_lshrrev_b32 v{vT1}, 10, v{vT1}")
        e(f"v_mul_u32_u24 v{vT2}, 5, v{vT1}")
        e(f"v_sub_u32 v{vT2}, v0, v{vT2}")
        e(f"v_mul_u32_u24 v{vT1}, 5120, v{vT1}")
        e(f"v_lshl_add_u32 v{vT1}, v{vT2}, 5, v{vT1}")
        e(f"s_mul_i32 s{sT}, s{sH}, 160")
        e(f"v_mov_b32 v{Pp+17}, s{sNonce}")
        e(f"v_mov_b32 v{Pp+19}, s{sNonce}")
        e(f"v_mov_b32 v{Pp+21}, s{sNonce}")
        e(f"v_mov_b32 v{Pp+23}, s{sNonce}")
        e(f"s_waitcnt lgkmcnt(0)")
        for k in range(4):
            e(f"v_add_f32 v{Pp+k}, v{Pp+k}, v{Pp+4+k}")
            e(f"v_add_f32 v{Pp+8+k}, v{Pp+8+k}, v{Pp+12+k}")
        for k in range(4):
            e(f"v_add_f32 v{Pp+16+2*k}, v{Pp+k}, v{Pp+8+k}")
        e(f"buffer_store_dwordx4 v[{Pp+16}:{Pp+19}], v{vT1}, s[{SA}:{SA+3}], s{sT} offen sc0 sc1")
        e(f"buffer_store_dwordx4 v[{Pp+20}:{Pp+23}], v{vT1}, s[{SA}:{SA+3}], s{sT} offen offset:16 sc0 sc1")
        e(f"s_branch L_fin")
        A.label("L_cons"); A.hist = []
        e(f"s_mul_i32 s{sT}, s2, 5120")
        e(f"s_add_u32 s{sT}, s{sT}, {GB}")
        srd(SA, pWS, sT, 5120)
        e(f"v_mul_u32_u24 v{vT0}, 160, v{vLane}")
        e(f"v_mul_u32_u24 v{vT1}, 160, v{vR}")
        e(f"v_lshl_add_u32 v{vT1}, v{vC}, 4, v{vT1}")
        e(f"s_mov_b32 s{sSpin}, 0")
        e(f"s_mov_b32 s{sTmp}, 2560")
        G = 64
        A.label("L_poll1"); A.hist = []
        e(f"buffer_load_dwordx4 v[{G}:{G+3}], v{vT0}, s[{SA}:{SA+3}], 0 offen sc0 sc1")
        e(f"s_add_u32 s{sSpin}, s{sSpin}, 1")
        e(f"s_waitcnt vmcnt(0)")
        e(f"v_xor_b32 v{G}, s{sNonce}, v{G+1}")
        e(f"v_xor_b32 v{G+2}, s{sNonce}, v{G+3}")
        e(f"v_or_b32 v{G}, v{G}, v{G+2}")
        e(f"v_cmp_eq_u32 vcc, 0, v{G}")
        e(f"s_cmp_gt_u32 s{sSpin}, 200000")
        e(f"s_cbranch_scc1 L_fin")
        e(f"s_cmp_eq_u32 vcc_lo, -1")
        e(f"s_cbranch_scc0 L_poll1")
        A.label("L_poll2"); A.hist = []
        for i in range(8):
            so = "0" if i < 4 else f"s{sTmp}"
            e(f"buffer_load_dwordx4 v[{G+4*i}:{G+4*i+3}], v{vT1}, s[{SA}:{SA+3}], {so} offen offset:{(i%4)*640} sc0 sc1")
        e(f"s_add_u32 s{sSpin}, s{sSpin}, 1")
        e(f"s_waitcnt vmcnt(0)")
        e(f"v_xor_b32 v{vT2}, s{sNonce}, v{G+1}")
        for i in range(8):
            for k in (1, 3):
                if i == 0 and k == 1: continue
                e(f"v_xor_b32 v{vT3}, s{sNonce}, v{G+4*i+k}")
                e(f"v_or_b32 v{vT2}, v{vT2}, v{vT3}")
        e(f"v_cmp_gt_u32 vcc, 10, v{vC}")
        e(f"v_cndmask_b32 v{vT2}, 0, v{vT2}, vcc")
        e(f"v_cmp_ne_u32 vcc, 0, v{vT2}")
        e(f"s_cmp_gt_u32 s{sSpin}, 200000")
        e(f"s_cbranch_scc1 L_fin")
        e(f"s_cmp_eq_u64 vcc, 0")
        e(f"s_cbranch_scc0 L_poll2")
        for i in range(1, 8):
            e(f"v_add_f32 v{G}, v{G}, v{G+4*i}")
            e(f"v_add_f32 v{G+2}, v{G+2}, v{G+4*i+2}")
        for r in (G, G+2):
            e(f"v_mov_b32 v{vT2}, v{r}")
            e(f"v_permlane16_swap_b32 v{r}, v{vT2}")
            e(f"v_add_f32 v{r}, v{r}, v{vT2}")
            e(f"v_mov_b32 v{vT2}, v{r}")
            e(f"v_permlane32_swap_b32 v{r}, v{vT2}")
            e(f"v_add_f32 v{r}, v{r}, v{vT2}")
        e(f"v_lshlrev_b32 v{vT2}, 16, v{vXB+1}")
        e(f"v_and_b32 v{vT3}, 0xffff0000, v{vXB+1}")
        e(f"v_add_f32 v{G}, v{G}, v{vT2}")
        e(f"v_add_f32 v{G+2}, v{G+2}, v{vT3}")
        e(f"v_lshlrev_b32 v{vT2}, 16, v{vXB}")
        e(f"v_and_b32 v{vT3}, 0xffff0000, v{vXB}")
        e(f"v_add_f32 v{G}, v{G}, v{vT2}")
        e(f"v_add_f32 v{G+2}, v{G+2}, v{vT3}")
        e(f"v_cvt_pk_bf16_f32 v{G}, v{G}, v{G+2}")
        e(f"s_mul_i32 s{sT}, s{sB}, 1280")
        e(f"s_mul_i32 s{sTmp}, s{sH}, 40")
        e(f"s_add_u32 s{sT}, s{sT}, s{sTmp}")
        srd(SD, pOUT, sT, 40)
        e(f"v_lshlrev_b32 v{vT0}, 2, v{vLane}")
        e(f"buffer_store_dword v{G}, v{vT0}, s[{SD}:{SD+3}], 0 offen")
        e(f"s_cmp_lg_u32 s{sH}, 0")
        e(f"s_cbranch_scc1 L_fin")
        e(f"s_lshl_b32 s{sT}, s{sB}, 8")
        srd(SC, pWS, sT, 4)
        e(f"v_mov_b32 v{vT2}, s{sNonce}")
        e(f"buffer_store_dword v{vT2}, v{vT0}, s[{SC}:{SC+3}], 0 offen sc0 sc1")
        e(f"s_branch L_fin")
    else:
        e(f"s_cmp_ge_u32 s{sW}, 3")
        e(f"s_cbranch_scc1 L_fin")
        e(f"v_cmp_gt_u32 vcc, 160, v0")
        e(f"s_and_saveexec_b64 s[{SAVE}:{SAVE+1}], vcc")
        e(f"v_lshlrev_b32 v{vT0}, 4, v0")
        Pp = 64
        for w in range(4):
            e(f"ds_read_b128 v[{Pp+4*w}:{Pp+4*w+3}], v{vT0} offset:{L_OUT + w*2560}")
        e(f"s_mul_i32 s{sT}, s2, 2560")
        srd(SA, pWS, sT, 2560)
        e(f"s_waitcnt lgkmcnt(0)")
        for k in range(4):
            e(f"v_add_f32 v{Pp+k}, v{Pp+k}, v{Pp+4+k}")
            e(f"v_add_f32 v{Pp+8+k}, v{Pp+8+k}, v{Pp+12+k}")
        for k in range(4):
            e(f"v_add_f32 v{Pp+k}, v{Pp+k}, v{Pp+8+k}")
        e(f"buffer_store_dwordx4 v[{Pp}:{Pp+3}], v{vT0}, s[{SA}:{SA+3}], 0 offen sc0 sc1")
        e(f"s_mul_i32 s{sT}, s{sB}, 3")
        e(f"s_add_u32 s{sT}, s{sT}, s{sW}")
        e(f"s_lshl_b32 s{sT}, s{sT}, 2")
        e(f"s_mov_b64 s[{SAVE+2}:{SAVE+3}], exec")
        e(f"s_waitcnt vmcnt(0)")
        e(f"s_mov_b64 exec, 1")
        e(f"v_mov_b32 v{vT1}, s{sT}")
        e(f"v_mov_b32 v{vT2}, 1")
        e(f"global_atomic_add v{vT3}, v{vT1}, v{vT2}, s[{pDBG}:{pDBG+1}] sc0 sc1")
        e(f"s_waitcnt vmcnt(0)")
        e(f"v_readfirstlane_b32 s{sT}, v{vT3}")
        e(f"s_mov_b64 exec, s[{SAVE+2}:{SAVE+3}]")
        e(f"s_cmp_lg_u32 s{sT}, 31")
        e(f"s_cbranch_scc1 L_fin")
        e(f"s_mul_i32 s{sT}, s{sB}, {32*2560}")
        srd(SA, pWS, sT, 32*2560)
        for hh in range(32):
            r = 96 + 4*hh
            e(f"s_mov_b32 s{sT}, {hh*2560}")
            e(f"buffer_load_dwordx4 v[{r}:{r+3}], v{vT0}, s[{SA}:{SA+3}], s{sT} offen sc0 sc1")
        e(f"s_mul_i32 s{sT}, s{sB}, 1280")
        srd(SBq, pX, sT, 1280)
        srd(SC, pB2, None, 1280)
        srd(SD, pOUT, sT, 1280)
        e(f"v_lshlrev_b32 v{vT1}, 3, v0")
        e(f"buffer_load_dwordx2 v[{Pp}:{Pp+1}], v{vT1}, s[{SBq}:{SBq+3}], 0 offen")
        e(f"buffer_load_dwordx2 v[{Pp+2}:{Pp+3}], v{vT1}, s[{SC}:{SC+3}], 0 offen")
        for hh in range(1, 32):
            e(f"s_waitcnt vmcnt({2 + 31 - hh})")
            for k in range(4):
                e(f"v_add_f32 v{96+k}, v{96+k}, v{96+4*hh+k}")
        e(f"s_waitcnt vmcnt(0)")
        for k in range(4):
            src = Pp + k//2; src2 = Pp + 2 + k//2
            if k % 2 == 0:
                e(f"v_lshlrev_b32 v{vT2}, 16, v{src}")
                e(f"v_lshlrev_b32 v{vT3}, 16, v{src2}")
            else:
                e(f"v_and_b32 v{vT2}, 0xffff0000, v{src}")
                e(f"v_and_b32 v{vT3}, 0xffff0000, v{src2}")
            e(f"v_add_f32 v{96+k}, v{96+k}, v{vT3}")
            e(f"v_add_f32 v{96+k}, v{96+k}, v{vT2}")
        e(f"v_cvt_pk_bf16_f32 v{Pp+4}, v96, v97")
        e(f"v_cvt_pk_bf16_f32 v{Pp+5}, v98, v99")
        e(f"buffer_store_dwordx2 v[{Pp+4}:{Pp+5}], v{vT1}, s[{SD}:{SD+3}], 0 offen")
        e(f"s_branch L_fin")


    A.hist = []
    A.label("L_stream")
    L = cfg.L; P = cfg.P
    Q = 12; ACC = 16; vM = 24; vSc = 25; S = 26
    vU0, vU1, vTt = 30, 31, 32
    vLs = 33; E2 = 34
    E2n = 36
    vPL, vPH, vE = 38, 39, 40
    RING = 44
    BIG = 76
    assert BIG + 4*P <= 256
    e(f"s_mov_b32 s{sScale}, {f32(128**-0.5)}")
    e(f"s_lshl_b32 s{sIss}, s{sHw}, 12")
    e(f"v_lshrrev_b32 v{vT0}, 2, v{vC}")
    e(f"v_lshl_add_u32 v{vT0}, v{vR}, 2, v{vT0}")
    e(f"s_lshl_b32 s{sT}, s{sHw}, 9")
    e(f"v_add_u32 v{vT0}, s{sT}, v{vT0}")
    e(f"v_lshlrev_b32 v{vSc}, 3, v{vT0}")
    e(f"v_add_u32 v{vSc}, {L_SC}, v{vSc}")
    e(f"s_waitcnt lgkmcnt(0)")
    e(f"s_lshl_b32 s{sT}, s2, 20")
    srd(SK, pK, sT, 1 << 20)
    srd(SV, pV, sT, 1 << 20)
    slot = {}
    def issue(n, reg):
        isV = n >= 256
        j = n % 4
        if n == 256: e(f"s_lshl_b32 s{sIss}, s{sHw}, 12")
        srdr = SV if isV else SK
        fl = cfg.vflag if isV else cfg.kflag
        e(f"buffer_load_dwordx4 v[{reg}:{reg+3}], v{vL16}, s[{srdr}:{srdr+3}], s{sIss} offen offset:{j*1024} {fl}")
        if j == 3: e(f"s_add_u32 s{sIss}, s{sIss}, 16384")
        slot[n] = reg
    m_ = "row_mask:0xf"
    def consumeK(n, scoff=None):
        j = n % 4; reg = slot[n]; i = n // 4
        for d in range(4):
            src2 = "0" if d == 0 else f"v{S+j}"
            e(f"v_dot2_f32_bf16 v{S+j}, v{reg+d}, v{Q+d}, {src2}")
        if j == 3:
            e(f"v_add_f32_dpp v{vU0}, v{S}, v{S} row_mirror {m_} bank_mask:0x3")
            e(f"v_add_f32_dpp v{vU1}, v{S+1}, v{S+1} row_mirror {m_} bank_mask:0x3")
            e(f"v_add_f32_dpp v{vU0}, v{S+2}, v{S+2} row_mirror {m_} bank_mask:0xc")
            e(f"v_add_f32_dpp v{vU1}, v{S+3}, v{S+3} row_mirror {m_} bank_mask:0xc")
            e(f"v_add_f32_dpp v{vTt}, v{vU0}, v{vU0} row_half_mirror {m_} bank_mask:0x5")
            e(f"v_add_f32_dpp v{vTt}, v{vU1}, v{vU1} row_half_mirror {m_} bank_mask:0xa")
            e(f"v_add_f32_dpp v{vTt}, v{vTt}, v{vTt} quad_perm:[1,0,3,2] {m_} bank_mask:0xf")
            e(f"v_add_f32_dpp v{vTt}, v{vTt}, v{vTt} quad_perm:[2,3,0,1] {m_} bank_mask:0xf")
            e(f"v_cvt_pk_bf16_f32 v{vTt}, 0, v{vTt}")
            e(f"v_mul_f32 v{vTt}, s{sScale}, v{vTt}")
            e(f"v_cvt_pk_bf16_f32 v{vTt}, 0, v{vTt}")
            e(f"ds_write_b32 v{vSc}, v{vTt} offset:{4*(i % 2)}")
            e(f"v_max_f32 v{vM}, v{vM}, v{vTt}")
            if i % 2 == 1: e(f"v_add_u32 v{vSc}, 128, v{vSc}")
    def consumeV(n):
        j = n % 4; reg = slot[n]; i = (n - 256) // 4
        if j == 0:
            if i % 2 == 0:
                e(f"s_waitcnt lgkmcnt(0)")
                e(f"v_sub_f32 v{E2}, v{E2n}, v{vM}")
                e(f"v_sub_f32 v{E2+1}, v{E2n+1}, v{vM}")
                e(f"ds_read_b64 v[{E2n}:{E2n+1}], v{vSc}")
                e(f"v_add_u32 v{vSc}, 128, v{vSc}")
                e(f"v_mul_f32 v{E2}, s{sL2E}, v{E2}")
                e(f"v_mul_f32 v{E2+1}, s{sL2E}, v{E2+1}")
                e(f"v_exp_f32 v{E2}, v{E2}")
                e(f"v_exp_f32 v{E2+1}, v{E2+1}")
                e(f"v_add_f32 v{vLs}, v{vLs}, v{E2}")
                e(f"v_add_f32 v{vLs}, v{vLs}, v{E2+1}")
            e(f"v_cvt_pk_bf16_f32 v{vPL}, v{E2 + i % 2}, 0")
            e(f"v_cvt_pk_bf16_f32 v{vPH}, 0, v{E2 + i % 2}")
        for d in range(4):
            e(f"v_dot2c_f32_bf16_dpp v{ACC+2*d}, v{vPL}, v{reg+d} {bc(4*j)}")
            e(f"v_dot2c_f32_bf16_dpp v{ACC+2*d+1}, v{vPH}, v{reg+d} {bc(4*j)}")
    Lp = cfg.Lp or L
    for n in range(P):
        if n == Lp: e(f"s_barrier")
        if n >= Lp: e(f"s_waitcnt vmcnt({Lp-1})")
        issue(n, BIG + 4*n)
    if P <= Lp: e("s_barrier")
    stamp(1)
    e(f"s_barrier")
    e(f"v_lshlrev_b32 v{vT0}, 4, v{vC}")
    e(f"ds_read_b128 v[{Q}:{Q+3}], v{vT0} offset:{L_QB}")
    for i in range(8): e(f"v_mov_b32 v{ACC+i}, 0")
    e(f"v_mov_b32 v{vM}, 0xff800000")
    e(f"v_mov_b32 v{vLs}, 0")
    e(f"s_waitcnt lgkmcnt(0)")
    stamp(2)
    I = P; C = 0
    free = []
    def alloc(n):
        return None
    while I - C > L:
        e(f"s_waitcnt vmcnt({L-1})")
        prev = I - 8
        ringreg = RING + 4*(I % 8)
        tenant = [n for n, r in slot.items() if r == ringreg and n >= C]
        if not tenant and (I - C) <= 16:
            reg = ringreg
        else:
            reg = free.pop(0) if free else None
            if reg is None:
                assert not tenant
                reg = ringreg
        issue(I, reg); I += 1
        for _ in range(2):
            if I - C > L:
                consumeK(C)
                if BIG <= slot[C] : free.append(slot[C])
                C += 1
    Kpat = cfg.Kpat or [L]*8
    Vpat = cfg.Vpat or [L]*8
    def target(n):
        if n >= 512: return 0
        t = Kpat[n % 8] if n < 256 else Vpat[n % 8]
        if n >= 512 - cfg.tailN: t = cfg.Ltail
        return min(t, 512 - n)
    def steady(nsteps_end):
        nonlocal I, C
        while C < nsteps_end:
            e(f"s_waitcnt vmcnt({I - C - 1})")
            while I < 512 and I - (C + 1) < target(C + 1):
                ringreg = RING + 4*(I % 8)
                assert not [n for n, r in slot.items() if r == ringreg and C <= n < I], (I, C)
                issue(I, ringreg); I += 1
            if C < 256: consumeK(C)
            else: consumeV(C)
            C += 1
    while not (C % 8 == 0 and I - C == target(C) and all(slot[n] == RING + 4*(n % 8) for n in range(C, I))):
        steady(C + 1)
    c0 = C
    niterK = (248 - c0) // 8
    assert niterK >= 1 and c0 + 8*niterK == 248, (c0, niterK)
    if cfg.exp2 == 'kstart': stamp(5)
    e(f"s_mov_b32 s{sCnt}, {niterK}")
    A.fence()
    A.label("L_kloop")
    steady(C + 8)
    e(f"s_sub_u32 s{sCnt}, s{sCnt}, 1")
    e(f"s_cmp_lg_u32 s{sCnt}, 0")
    A.fence()
    e(f"s_cbranch_scc1 L_kloop")
    shift = 248 - C
    for n in range(C, I): slot[n + shift] = slot[n]
    C += shift; I += shift
    steady(256)
    stamp(3)
    wave_red(vM, vT1, "v_max_f32")
    e(f"v_subrev_u32 v{vSc}, {32*128}, v{vSc}")
    e(f"s_waitcnt lgkmcnt(0)")
    e(f"ds_read_b64 v[{E2n}:{E2n+1}], v{vSc}")
    e(f"v_add_u32 v{vSc}, 128, v{vSc}")
    steady(264)
    vend = 512 - 8 - cfg.tailN - (8 if cfg.tailN else 0)
    niterV = (vend - 264) // 8
    e(f"s_mov_b32 s{sCnt}, {niterV}")
    A.fence()
    A.label("L_vloop")
    steady(C + 8)
    e(f"s_sub_u32 s{sCnt}, s{sCnt}, 1")
    e(f"s_cmp_lg_u32 s{sCnt}, 0")
    A.fence()
    e(f"s_cbranch_scc1 L_vloop")
    shift = vend - C
    for n in range(C, I): slot[n + shift] = slot[n]
    C += shift; I += shift
    if cfg.tailN:
        steady(512 - cfg.tailN + 8)
        nt_ = (504 - C) // 8
        if nt_ > 0:
            e(f"s_mov_b32 s{sCnt}, {nt_}")
            A.fence()
            A.label("L_tloop")
            c_ = C
            steady(C + 8)
            e(f"s_sub_u32 s{sCnt}, s{sCnt}, 1")
            e(f"s_cmp_lg_u32 s{sCnt}, 0")
            A.fence()
            e(f"s_cbranch_scc1 L_tloop")
            shift = 504 - C
            for n in range(C, I): slot[n + shift] = slot[n]
            C += shift; I += shift
    steady(512)
    stamp(4)
    m = "row_mask:0xf bank_mask:0xf"
    e(f"v_add_f32_dpp v{vLs}, v{vLs}, v{vLs} row_half_mirror {m}")
    e(f"v_add_f32_dpp v{vLs}, v{vLs}, v{vLs} row_mirror {m}")
    e(f"v_mov_b32 v{vT1}, v{vLs}")
    e(f"v_permlane16_swap_b32 v{vLs}, v{vT1}")
    e(f"v_add_f32 v{vLs}, v{vLs}, v{vT1}")
    e(f"v_mov_b32 v{vT1}, v{vLs}")
    e(f"v_permlane32_swap_b32 v{vLs}, v{vT1}")
    e(f"v_add_f32 v35, v{vLs}, v{vT1}")
    e(f"v_mov_b32 v34, v{vM}")
    reduce8(ACC, vT2, vT3)
    e(f"s_lshl_b32 s{sT}, s{sHw}, 9")
    e(f"v_add_u32 v{vT0}, s{sT}, v{vColAddr}")
    e(f"v_add_u32 v{vT0}, {L_OP}, v{vT0}")
    e(f"ds_write2_b32 v{vT0}, v{vT2}, v{vT3} offset0:0 offset1:4")
    e(f"s_lshl_b32 s{sT}, s{sHw}, 3")
    e(f"v_mov_b32 v{vT0}, s{sT}")
    e(f"ds_write_b64 v{vT0}, v[34:35] offset:{L_ML}")
    e(f"s_waitcnt lgkmcnt(0)")
    e(f"s_barrier")
    if cfg.exp2 != 'kstart': stamp(5)
    A.label("L_fin"); A.hist = []
    if cfg.stamps:
        e("s_mov_b64 exec, -1")
        stamp(6)
        e("s_waitcnt lgkmcnt(0)")
        if cfg.dbgstamps:
            e(f"s_cmp_eq_u32 s{sW}, 3")
            e(f"s_cbranch_scc1 L_dbg3")
            e(f"s_cmp_eq_u32 s{sW}, 4")
            e(f"s_cbranch_scc0 L_end")
            e("s_mov_b64 exec, 1")
            for k, i in enumerate((1, 2, 3, 4)):
                e(f"v_mov_b32 v64, s{80+2*i}")
                e(f"v_not_b32 v65, v64")
                e(f"v_mov_b32 v66, {32 + 8*k}")
                e(f"global_atomic_umax v66, v64, s[{pDBG}:{pDBG+1}] sc1")
                e(f"global_atomic_umax v66, v65, s[{pDBG}:{pDBG+1}] offset:4 sc1")
            e("s_waitcnt vmcnt(0)")
            e("s_branch L_end")
            A.label("L_dbg3")
            e("s_mov_b64 exec, 1")
            for k, i in enumerate((0, 2, 5, 6)):
                e(f"v_mov_b32 v64, s{80+2*i}")
                e(f"v_not_b32 v65, v64")
                e(f"v_mov_b32 v66, {8*k}")
                e(f"global_atomic_umax v66, v64, s[{pDBG}:{pDBG+1}] sc1")
                e(f"global_atomic_umax v66, v65, s[{pDBG}:{pDBG+1}] offset:4 sc1")
            e("s_waitcnt vmcnt(0)")
            e("s_branch L_end")
        e(f"s_lshl_b32 s{sT}, s2, 3")
        e(f"s_add_u32 s{sT}, s{sT}, s{sW}")
        e(f"s_lshl_b32 s{sT}, s{sT}, 6")
        e(f"s_add_u32 s{sT}, s{sT}, {1<<20}")
        for i in range(14): e(f"v_mov_b32 v{64+i}, s{80+i}")
        e(f"s_getreg_b32 s{sTmp}, hwreg(HW_REG_XCC_ID)")
        e(f"v_mov_b32 v78, s{sTmp}")
        e(f"v_mov_b32 v79, 0")
        e(f"v_mov_b32 v{vT0}, s{sT}")
        e("s_mov_b64 exec, 1")
        for i in range(4):
            e(f"global_store_dwordx4 v{vT0}, v[{64+4*i}:{67+4*i}], s[{pWS}:{pWS+1}] offset:{16*i}")
        e("s_waitcnt vmcnt(0)")
    A.label("L_end")
    e("s_endpgm")
    body = A.text()
    hdr = HDR + f"; @launch grid=(256,1,1) block=(512,1,1) lds={LDS_BYTES}\n"
    pre = f""".amdgcn_target "amdgcn-amd-amdhsa--gfx950"
.text
.globl {KN}
.p2align 8
.type {KN},@function
{KN}:
"""
    post = f""".section .rodata,"a"
.p2align 6
.amdhsa_kernel {KN}
  .amdhsa_next_free_vgpr 256
  .amdhsa_next_free_sgpr 102
  .amdhsa_accum_offset 256
  .amdhsa_group_segment_fixed_size 0
  .amdhsa_kernarg_size 104
  .amdhsa_user_sgpr_count 2
  .amdhsa_user_sgpr_kernarg_segment_ptr 1
  .amdhsa_system_sgpr_workgroup_id_x 1
  .amdhsa_float_denorm_mode_32 3
.end_amdhsa_kernel
"""
    return hdr + pre + body + post

if __name__ == "__main__":
    class C(Cfg): pass
    for a in sys.argv[2:]:
        k, v = a.split("=")
        setattr(C, k, eval(v))
    open(sys.argv[1], "w").write(gen(C))
```

```python
import sys, math, struct
from asmlib import Asm

KN = "parallel_sum__gqa_block_cached__mixer_channel_mlp__decode_kernel"
HDR = open("parallel_sum__gqa_block_cached__mixer_channel_mlp__decode.s.ref").read().split("; Override launch")[0]

def f32(x):
    return "0x%08x" % struct.unpack("<I", struct.pack("<f", x))[0]

class Cfg:
    kflag = "nt"
    vflag = "nt"
    wflag = ""
    stamps = False
    rot = True
    L = 5
    P = 44
    Dh = 6
    Dw = 2
    Lp = None
    Kpat = None
    Vpat = None
    tailN = 0
    Ltail = 7
    exp = ''
    exp2 = ''
    dbgstamps = False
    P2 = 0
    rank = None
    coop = False
    fin = 'tag8'

class VQ:
    def __init__(self, A):
        self.q = []; self.A = A
    def issue(self, tag, text):
        self.A(text); self.q.append(tag)
        assert len(self.q) <= 63, len(self.q)
    def wait(self, tag):
        idx = [i for i, t in enumerate(self.q) if t == tag]
        if not idx: return
        i = idx[-1]
        n = len(self.q) - 1 - i
        self.A(f"s_waitcnt vmcnt({n})")
        self.q = self.q[i+1:]
    def limit(self, n):
        if len(self.q) > n:
            self.A(f"s_waitcnt vmcnt({n})")
            self.q = self.q[len(self.q)-n:] if n else []
    def drain(self):
        self.A("s_waitcnt vmcnt(0)"); self.q = []

def gen(cfg=Cfg):
    A = Asm(); e = A
    vLane = 1; vL16 = 2; vR = 3; vC = 4
    vT0, vT1, vT2, vT3, vT4, vT5 = 5, 6, 7, 8, 9, 10
    vColAddr = 11
    sW = 3; sB = 4; sH = 5; sS = 6; sT = 7
    pX, pK, pV, pWQ, pWO, pBX, pW1, pB1 = 16, 18, 20, 22, 24, 26, 28, 30
    pW2, pB2, pOUT, pDBG = 32, 34, 36, 38
    pWS = 40
    SK, SV, SA, SBq, SC, SD, SE = 44, 48, 52, 56, 60, 64, 68
    sIss = 72; sCnt = 73; sScale = 74; sL2E = 75; sTmp = 76; sTmp2 = 77; sWr = 78; sHw = 79
    SAVE = 96
    sNonce = 100; sSpin = 101
    L_QP = 0
    L_HP = 2048
    L_QB = 3072
    L_HB = 3328
    L_ML = 3456
    L_CNT = 3488
    L_OP = 3584
    L_OUT = 5632
    L_ST = 3520
    L_SC = 15872
    LDS_BYTES = L_SC + 16384 + 256
    L_PF = 32768
    if cfg.P2: LDS_BYTES = L_PF + 4*cfg.P2*1024

    def srd(dst, ptr, off, size, size_sub=None):
        if off is None:
            e(f"s_mov_b32 s{dst}, s{ptr}")
            e(f"s_and_b32 s{dst+1}, s{ptr+1}, 0xffff")
        else:
            e(f"s_add_u32 s{dst}, s{ptr}, s{off}")
            e(f"s_addc_u32 s{dst+1}, s{ptr+1}, 0")
            e(f"s_and_b32 s{dst+1}, s{dst+1}, 0xffff")
        if size_sub is None: e(f"s_mov_b32 s{dst+2}, {size}")
        else: e(f"s_sub_u32 s{dst+2}, {size}, s{size_sub}")
        e(f"s_mov_b32 s{dst+3}, 0x20000")
    def stamp(i):
        if cfg.stamps: e(f"s_memrealtime s[{80+2*i}:{81+2*i}]")
    def bc(j): return f"row_newbcast:{j} row_mask:0xf bank_mask:0xf"
    def wave_red(v, t1, op):
        e(f"{op}_dpp v{v}, v{v}, v{v} quad_perm:[1,0,3,2] row_mask:0xf bank_mask:0xf")
        e(f"{op}_dpp v{v}, v{v}, v{v} quad_perm:[2,3,0,1] row_mask:0xf bank_mask:0xf")
        e(f"{op}_dpp v{v}, v{v}, v{v} row_half_mirror row_mask:0xf bank_mask:0xf")
        e(f"{op}_dpp v{v}, v{v}, v{v} row_mirror row_mask:0xf bank_mask:0xf")
        e(f"v_mov_b32 v{t1}, v{v}")
        e(f"v_permlane16_swap_b32 v{v}, v{t1}")
        e(f"{op} v{v}, v{v}, v{t1}")
        e(f"v_mov_b32 v{t1}, v{v}")
        e(f"v_permlane32_swap_b32 v{v}, v{t1}")
        e(f"{op} v{v}, v{v}, v{t1}")
    def reduce8(a, out0, out1):
        for p in range(4): e(f"v_permlane32_swap_b32 v{a+2*p}, v{a+2*p+1}")
        for p in range(4): e(f"v_add_f32 v{a+2*p}, v{a+2*p}, v{a+2*p+1}")
        e(f"v_permlane16_swap_b32 v{a}, v{a+2}")
        e(f"v_permlane16_swap_b32 v{a+4}, v{a+6}")
        e(f"v_add_f32 v{out0}, v{a}, v{a+2}")
        e(f"v_add_f32 v{out1}, v{a+4}, v{a+6}")
    def perm_reg(dst, t):
        e(f"v_and_b32 v{dst}, 1, v{vR}")
        e(f"v_lshlrev_b32 v{dst}, 1, v{dst}")
        e(f"v_lshrrev_b32 v{t}, 1, v{vR}")
        e(f"v_or_b32 v{dst}, v{dst}, v{t}")

    e(f"s_cmp_ge_u32 s2, 256")
    e(f"s_cbranch_scc1 L_end")
    stamp(0)
    e(f"s_load_dwordx16 s[16:31], s[0:1], 0")
    e(f"s_load_dwordx8 s[32:39], s[0:1], 64")
    e(f"s_load_dwordx2 s[40:41], s[0:1], 96")
    e(f"v_and_b32 v{vLane}, 63, v0")
    e(f"v_lshrrev_b32 v{vT0}, 6, v0")
    e(f"v_readfirstlane_b32 s{sW}, v{vT0}")
    e(f"s_lshr_b32 s{sB}, s2, 5")
    e(f"s_and_b32 s{sH}, s2, 31")
    e(f"v_lshlrev_b32 v{vL16}, 4, v{vLane}")
    e(f"v_lshrrev_b32 v{vR}, 4, v{vLane}")
    e(f"v_and_b32 v{vC}, 15, v{vLane}")
    e(f"s_and_b32 s{sHw}, s{sW}, 3")
    e(f"s_mov_b32 s{sL2E}, {f32(1.4426950408889634)}")
    perm_reg(vT4, vT1)
    e(f"v_lshl_add_u32 v{vT0}, v{vC}, 3, v{vT4}")
    e(f"v_lshlrev_b32 v{vColAddr}, 2, v{vT0}")
    e(f"s_cmp_ge_u32 s{sW}, 4")
    e(f"s_cbranch_scc1 L_stream")

    vq = VQ(A)
    XR = 224
    XU = 230
    OWN = 240
    XL = [12, 14, 16]; XH = [13, 15, 17]
    YL = [18, 20, 22]; YH = [19, 21, 23]
    ACCQ = 24
    ACCH = 32
    vB1 = 36; vHL = 37; vHH = 38; vOff = 39
    MLPS = 40
    ACC2 = 50
    W = 64
    W1R = 244
    if cfg.rot:
        e(f"s_add_u32 s{sWr}, s{sHw}, s{sB}")
        e(f"s_and_b32 s{sWr}, s{sWr}, 3")
    else:
        e(f"s_mov_b32 s{sWr}, s{sHw}")
    e(f"s_and_b32 s{sS}, s{sH}, 7")
    e(f"s_lshl_b32 s{sS}, s{sS}, 2")
    e(f"s_lshr_b32 s{sT}, s{sH}, 3")
    e(f"s_add_u32 s{sS}, s{sS}, s{sT}")
    e(f"s_mul_i32 s{sTmp}, s{sWr}, 160")
    e(f"v_add_u32 v{vT0}, s{sTmp}, v{vR}")
    e(f"v_lshlrev_b32 v{vOff}, 13, v{vT0}")
    e(f"v_lshl_add_u32 v{vOff}, v{vC}, 4, v{vOff}")
    e(f"v_lshl_add_u32 v{vT1}, v{vC}, 2, v{vR}")
    e(f"v_add_u32 v{vT2}, s{sTmp}, v{vT1}")
    e(f"v_lshlrev_b32 v{vT2}, 1, v{vT2}")
    e(f"v_lshlrev_b32 v{vT3}, 2, v{vLane}")
    if cfg.fin in ('tag', 'tag8'):
        if cfg.coop: e(f"s_mov_b32 s{sTmp}, 0")
        else: e(f"s_lshl_b32 s{sTmp}, s{sB}, 8")
        e(f"s_waitcnt lgkmcnt(0)")
        e(f"s_load_dword s{sNonce}, s[{pWS}:{pWS+1}], s{sTmp}")
    e(f"v_mov_b32 v{vT5}, 0")
    e(f"ds_write_b32 v{vT5}, v{vT5} offset:{L_CNT}")
    e(f"ds_write_b32 v{vT5}, v{vT5} offset:{L_CNT+4}")
    e(f"ds_write_b32 v{vT5}, v{vT5} offset:{L_CNT+8}")
    e(f"ds_write_b32 v{vT5}, v{vT5} offset:{L_CNT+12}")
    e(f"ds_write_b32 v{vT5}, v{vT5} offset:{L_CNT+16}")
    e(f"s_waitcnt lgkmcnt(0)")
    if cfg.fin in ('tag', 'tag8'): e(f"s_add_u32 s{sNonce}, s{sNonce}, 1")
    if cfg.exp == 'noq':
        e(f"s_mul_i32 s{sTmp}, s{sB}, 1280")
        srd(SA, pX, sTmp, 1280)
        e(f"v_mov_b32 v{vT2}, 0"); e(f"v_mov_b32 v{vT3}, 0")
        e("s_barrier")
        e("s_branch L_qdone")
    if cfg.coop:
        XRc = 64; XUc = 74; OWN8 = 94; ST = 104; X8 = 120; Wq = 136; ACC8 = 160; RES8 = 74
        QGB = 1 << 20
        srd(SA, pX, None, 8*1280)
        e(f"v_lshrrev_b32 v{vT0}, 5, v{vLane}")
        e(f"s_lshl_b32 s{sTmp}, s{sHw}, 1")
        e(f"v_add_u32 v{vT0}, s{sTmp}, v{vT0}")
        e(f"v_mul_u32_u24 v{vT1}, 1280, v{vT0}")
        e(f"v_and_b32 v{vT2}, 31, v{vLane}")
        e(f"v_lshl_add_u32 v{vT3}, v{vT2}, 4, v{vT1}")
        e(f"v_lshl_add_u32 v{vT4}, v{vT2}, 3, v{vT1}")
        vq.issue("X", f"buffer_load_dwordx4 v[{XRc}:{XRc+3}], v{vT3}, s[{SA}:{SA+3}], 0 offen")
        vq.issue("X", f"buffer_load_dwordx4 v[{XRc+4}:{XRc+7}], v{vT3}, s[{SA}:{SA+3}], 0 offen offset:512")
        vq.issue("X", f"buffer_load_dwordx2 v[{XRc+8}:{XRc+9}], v{vT4}, s[{SA}:{SA+3}], 0 offen offset:1024")
        e(f"v_lshlrev_b32 v{vOff}, 3, v{vT0}")
        e(f"s_mul_i32 s{sTmp}, s{sB}, 80")
        e(f"s_mul_i32 s{sTmp2}, s{sHw}, 20")
        e(f"s_add_u32 s{sTmp}, s{sTmp}, s{sTmp2}")
        e(f"v_lshl_add_u32 v{vT1}, v{vC}, 2, v{vR}")
        e(f"v_add_u32 v{vT1}, s{sTmp}, v{vT1}")
        e(f"v_lshlrev_b32 v{vT1}, 1, v{vT1}")
        for bb in range(8):
            e(f"s_mov_b32 s{sT}, {bb*1280}")
            vq.issue("O", f"buffer_load_ushort v{OWN8+bb}, v{vT1}, s[{SA}:{SA+3}], s{sT} offen")
        e(f"s_lshl_b32 s{sT}, s{sH}, 8")
        srd(SC, pWQ, sT, 640*8192, size_sub=sT)
        e(f"v_add_u32 v{vT2}, s{sTmp}, v{vR}")
        e(f"v_lshlrev_b32 v{vT2}, 13, v{vT2}")
        e(f"v_lshl_add_u32 v{vT2}, v{vC}, 4, v{vT2}")
        for j in range(5):
            e(f"s_mov_b32 s{sT}, {j*32768}")
            vq.issue(("WQ", j), f"buffer_load_dwordx4 v[{Wq+4*j}:{Wq+4*j+3}], v{vT2}, s[{SC}:{SC+3}], s{sT} offen {cfg.wflag}")
        e(f"s_barrier")
    else:
        e(f"s_mul_i32 s{sTmp}, s{sB}, 1280")
        srd(SA, pX, sTmp, 1280)
        e(f"s_lshl_b32 s{sT}, s{sH}, 8")
        srd(SC, pWQ, sT, 640*8192, size_sub=sT)
        vq.issue("X", f"buffer_load_dwordx4 v[{XR}:{XR+3}], v{vL16}, s[{SA}:{SA+3}], 0 offen")
        vq.issue("X", f"buffer_load_dword v{XR+4}, v{vT3}, s[{SA}:{SA+3}], 0 offen offset:1024")
        for m in range(3):
            vq.issue("X", f"buffer_load_ushort v{OWN+m}, v{vT2}, s[{SA}:{SA+3}], 0 offen offset:{128*m}")
        def wq_load(j):
            e(f"s_mov_b32 s{sT}, {j*32768}")
            vq.issue(("WQ", j), f"buffer_load_dwordx4 v[{W+4*j}:{W+4*j+3}], v{vOff}, s[{SC}:{SC+3}], s{sT} offen {cfg.wflag}")
        nq = 0
        for j in range(cfg.Dh): wq_load(j); nq += 1
        e(f"s_barrier")
    def unpack_xr():
        for i in range(5):
            e(f"v_lshlrev_b32 v{XU+2*i}, 16, v{XR+i}")
            e(f"v_and_b32 v{XU+2*i+1}, 0xffff0000, v{XR+i}")
    def layernorm(norm_regs):
        s_, t1, mean, mb = vT0, vT1, vT2, vT3
        e(f"v_add_f32 v{s_}, v{XU}, v{XU+1}")
        e(f"v_add_f32 v{t1}, v{XU+2}, v{XU+3}")
        e(f"v_add_f32 v{mean}, v{XU+4}, v{XU+5}")
        e(f"v_add_f32 v{mb}, v{XU+6}, v{XU+7}")
        e(f"v_add_f32 v{s_}, v{s_}, v{t1}")
        e(f"v_add_f32 v{t1}, v{XU+8}, v{XU+9}")
        e(f"v_add_f32 v{mean}, v{mean}, v{mb}")
        e(f"v_add_f32 v{s_}, v{s_}, v{t1}")
        e(f"v_add_f32 v{s_}, v{s_}, v{mean}")
        wave_red(s_, t1, "v_add_f32")
        e(f"v_mul_f32 v{mean}, {f32(1.0/640)}, v{s_}")
        e(f"v_cvt_pk_bf16_f32 v{mb}, 0, v{mean}")
        e(f"v_sub_f32 v{t1}, v{XU}, v{mean}")
        e(f"v_mul_f32 v{s_}, v{t1}, v{t1}")
        for i in range(1, 10):
            e(f"v_sub_f32 v{t1}, v{XU+i}, v{mean}")
            e(f"v_fmac_f32 v{s_}, v{t1}, v{t1}")
        wave_red(s_, t1, "v_add_f32")
        e(f"v_mul_f32 v{s_}, {f32(1.0/640)}, v{s_}")
        e(f"v_cvt_pk_bf16_f32 v{s_}, 0, v{s_}")
        e(f"v_add_f32 v{s_}, {f32(1e-5)}, v{s_}")
        e(f"v_cvt_pk_bf16_f32 v{s_}, 0, v{s_}")
        e(f"v_sqrt_f32 v{s_}, v{s_}")
        e(f"v_cvt_pk_bf16_f32 v{s_}, 0, v{s_}")
        e(f"v_rcp_f32 v{s_}, v{s_}")
        for r in norm_regs: e(f"v_sub_f32 v{r}, v{r}, v{mb}")
        for r in norm_regs: e(f"v_cvt_pk_bf16_f32 v{r}, 0, v{r}")
        for r in norm_regs: e(f"v_mul_f32 v{r}, v{r}, v{s_}")
        for r in norm_regs: e(f"v_cvt_pk_bf16_f32 v{r}, 0, v{r}")
    def lds_arrive_and_spin(off, n, name):
        e(f"v_mov_b32 v{vT0}, 0")
        e(f"v_mov_b32 v{vT1}, 1")
        e(f"s_waitcnt lgkmcnt(0)")
        e(f"s_mov_b64 exec, 1")
        e(f"ds_add_u32 v{vT0}, v{vT1} offset:{off}")
        e(f"s_mov_b64 exec, -1")
        A.label(f"L_spin_{name}"); A.hist = []
        e(f"ds_read_b32 v{vT1}, v{vT0} offset:{off}")
        e(f"s_waitcnt lgkmcnt(0)")
        e(f"v_readfirstlane_b32 s{sT}, v{vT1}")
        e(f"s_cmp_lt_u32 s{sT}, {n}")
        e(f"s_cbranch_scc1 L_spin_{name}")
        A.hist = []
    if cfg.coop:
        vq.wait("X")
        for i in range(10):
            e(f"v_lshlrev_b32 v{XUc+2*i}, 16, v{XRc+i}")
            e(f"v_and_b32 v{XUc+2*i+1}, 0xffff0000, v{XRc+i}")
        def red32(v, t1):
            e(f"v_add_f32_dpp v{v}, v{v}, v{v} quad_perm:[1,0,3,2] row_mask:0xf bank_mask:0xf")
            e(f"v_add_f32_dpp v{v}, v{v}, v{v} quad_perm:[2,3,0,1] row_mask:0xf bank_mask:0xf")
            e(f"v_add_f32_dpp v{v}, v{v}, v{v} row_half_mirror row_mask:0xf bank_mask:0xf")
            e(f"v_add_f32_dpp v{v}, v{v}, v{v} row_mirror row_mask:0xf bank_mask:0xf")
            e(f"v_mov_b32 v{t1}, v{v}")
            e(f"v_permlane16_swap_b32 v{v}, v{t1}")
            e(f"v_add_f32 v{v}, v{v}, v{t1}")
        a0, a1, a2, a3 = vT0, vT1, vT2, vT3
        for k, a_ in enumerate((a0, a1, a2, a3)):
            e(f"v_add_f32 v{a_}, v{XUc+k}, v{XUc+4+k}")
        for base in (8, 12, 16):
            for k, a_ in enumerate((a0, a1, a2, a3)):
                e(f"v_add_f32 v{a_}, v{a_}, v{XUc+base+k}")
        e(f"v_add_f32 v{a0}, v{a0}, v{a1}")
        e(f"v_add_f32 v{a2}, v{a2}, v{a3}")
        e(f"v_add_f32 v{a0}, v{a0}, v{a2}")
        red32(a0, a1)
        e(f"v_mul_f32 v{vT4}, {f32(1.0/640)}, v{a0}")
        e(f"v_cvt_pk_bf16_f32 v{ST}, 0, v{vT4}")
        for i in range(20): e(f"v_sub_f32 v{XUc+i}, v{XUc+i}, v{vT4}")
        for k, a_ in enumerate((a0, a1, a2, a3)):
            e(f"v_mul_f32 v{a_}, v{XUc+k}, v{XUc+k}")
        for base in (4, 8, 12, 16):
            for k, a_ in enumerate((a0, a1, a2, a3)):
                e(f"v_fmac_f32 v{a_}, v{XUc+base+k}, v{XUc+base+k}")
        e(f"v_add_f32 v{a0}, v{a0}, v{a1}")
        e(f"v_add_f32 v{a2}, v{a2}, v{a3}")
        e(f"v_add_f32 v{a0}, v{a0}, v{a2}")
        red32(a0, a1)
        e(f"v_mul_f32 v{a0}, {f32(1.0/640)}, v{a0}")
        e(f"v_cvt_pk_bf16_f32 v{a0}, 0, v{a0}")
        e(f"v_add_f32 v{a0}, {f32(1e-5)}, v{a0}")
        e(f"v_cvt_pk_bf16_f32 v{a0}, 0, v{a0}")
        e(f"v_sqrt_f32 v{a0}, v{a0}")
        e(f"v_cvt_pk_bf16_f32 v{a0}, 0, v{a0}")
        e(f"v_rcp_f32 v{ST+1}, v{a0}")
        e(f"ds_write_b64 v{vOff}, v[{ST}:{ST+1}] offset:{L_ST}")
        lds_arrive_and_spin(L_CNT, 4, "st")
        e(f"v_mov_b32 v{vT0}, 0")
        for i in range(4):
            e(f"ds_read_b128 v[{ST+4*i}:{ST+4*i+3}], v{vT0} offset:{L_ST+16*i}")
        for i in range(64): e(f"v_mov_b32 v{ACC8+i}, 0")
        vq.wait("O")
        for bb in range(8): e(f"v_lshlrev_b32 v{OWN8+bb}, 16, v{OWN8+bb}")
        e(f"s_waitcnt lgkmcnt(0)")
        for bb in range(8): e(f"v_sub_f32 v{OWN8+bb}, v{OWN8+bb}, v{ST+2*bb}")
        for bb in range(8): e(f"v_cvt_pk_bf16_f32 v{OWN8+bb}, 0, v{OWN8+bb}")
        for bb in range(8): e(f"v_mul_f32 v{OWN8+bb}, v{OWN8+bb}, v{ST+2*bb+1}")
        for bb in range(8): e(f"v_cvt_pk_bf16_f32 v{X8+2*bb+1}, 0, v{OWN8+bb}")
        for bb in range(8): e(f"v_lshrrev_b32 v{X8+2*bb}, 16, v{X8+2*bb+1}")
        stamp(1)
        for j in range(5):
            vq.wait(("WQ", j))
            for bb in range(8):
                for d in range(4):
                    e(f"v_dot2c_f32_bf16_dpp v{ACC8+8*bb+2*d}, v{X8+2*bb}, v{Wq+4*j+d} {bc(j)}")
                    e(f"v_dot2c_f32_bf16_dpp v{ACC8+8*bb+2*d+1}, v{X8+2*bb+1}, v{Wq+4*j+d} {bc(j)}")
        e(f"s_lshl_b32 s{sT}, s{sHw}, 12")
        e(f"v_add_u32 v{vT5}, s{sT}, v{vColAddr}")
        e(f"v_add_u32 v{vT5}, {L_SC}, v{vT5}")
        for bb in range(8):
            reduce8(ACC8 + 8*bb, RES8 + 2*bb, RES8 + 2*bb + 1)
            e(f"ds_write_b32 v{vT5}, v{RES8+2*bb} offset:{bb*512}")
            e(f"ds_write_b32 v{vT5}, v{RES8+2*bb+1} offset:{bb*512+16}")
        e(f"s_mul_i32 s{sTmp}, s{sB}, 1280")
        srd(SA, pX, sTmp, 1280)
        e(f"s_mul_i32 s{sTmp}, s{sWr}, 160")
        e(f"v_lshl_add_u32 v{vT1}, v{vC}, 2, v{vR}")
        e(f"v_add_u32 v{vT2}, s{sTmp}, v{vT1}")
        e(f"v_lshlrev_b32 v{vT2}, 1, v{vT2}")
        e(f"v_lshlrev_b32 v{vT3}, 2, v{vLane}")
        lds_arrive_and_spin(L_CNT + 12, 4, "pq")
        e(f"s_lshl_b32 s{sT}, s{sHw}, 10")
        e(f"v_lshlrev_b32 v{vT0}, 3, v{vLane}")
        e(f"v_add_u32 v{vT4}, s{sT}, v{vT0}")
        e(f"v_add_u32 v{vT4}, {L_SC}, v{vT4}")
        PUB = 104
        for k in range(2):
            for w in range(4):
                e(f"ds_read_b64 v[{PUB+8*k+2*w}:{PUB+8*k+2*w+1}], v{vT4} offset:{w*4096 + k*512}")
        e(f"s_lshl_b32 s{sT}, s{sH}, 15")
        e(f"s_add_u32 s{sT}, s{sT}, {QGB}")
        srd(SE, pWS, sT, 32768)
        e(f"s_lshl_b32 s{sT}, s{sHw}, 13")
        e(f"s_lshl_b32 s{sTmp}, s{sB}, 9")
        e(f"s_add_u32 s{sT}, s{sT}, s{sTmp}")
        e(f"s_add_u32 s{sTmp}, s{sT}, 4096")
        e(f"s_and_b32 s{sTmp2}, s{sNonce}, 0xff")
        e(f"v_mov_b32 v{vT1}, 0xffffff00")
        e(f"v_mov_b32 v{vT5}, s{sTmp2}")
        e(f"s_waitcnt lgkmcnt(0)")
        for k in range(2):
            p = PUB + 8*k
            e(f"v_pk_add_f32 v[{p}:{p+1}], v[{p}:{p+1}], v[{p+2}:{p+3}]")
            e(f"v_pk_add_f32 v[{p+4}:{p+5}], v[{p+4}:{p+5}], v[{p+6}:{p+7}]")
        for k in range(2):
            p = PUB + 8*k
            e(f"v_pk_add_f32 v[{p}:{p+1}], v[{p}:{p+1}], v[{p+4}:{p+5}]")
        for k in range(2):
            p = PUB + 8*k
            e(f"v_add_u32 v{p}, 0x80, v{p}")
            e(f"v_add_u32 v{p+1}, 0x80, v{p+1}")
        for k in range(2):
            p = PUB + 8*k
            e(f"v_and_or_b32 v{p}, v{p}, v{vT1}, v{vT5}")
            e(f"v_and_or_b32 v{p+1}, v{p+1}, v{vT1}, v{vT5}")
        vq.issue("PUB", f"buffer_store_dwordx2 v[{PUB}:{PUB+1}], v{vT0}, s[{SE}:{SE+3}], s{sT} offen sc0 sc1")
        vq.issue("PUB", f"buffer_store_dwordx2 v[{PUB+8}:{PUB+9}], v{vT0}, s[{SE}:{SE+3}], s{sTmp} offen sc0 sc1")
        if cfg.exp2 == 'qpoll': stamp(3)
        e(f"s_cmp_lg_u32 s{sHw}, 0")
        e(f"s_cbranch_scc1 L_qdone")
        e(f"s_lshl_b32 s{sTmp}, s{sB}, 12")
        e(f"s_mov_b32 s{sSpin}, 0")
        G = 120; X = 136
        A.label("L_qpoll"); A.hist = []
        for i in range(4):
            e(f"buffer_load_dwordx4 v[{G+4*i}:{G+4*i+3}], v{vL16}, s[{SE}:{SE+3}], s{sTmp} offen offset:{i*1024} sc0 sc1")
        e(f"s_add_u32 s{sSpin}, s{sSpin}, 1")
        e(f"s_waitcnt vmcnt(0)")
        for k in range(16): e(f"v_xor_b32 v{X+k}, v{vT5}, v{G+k}")
        for k in range(0, 15, 3): e(f"v_or3_b32 v{X+k}, v{X+k}, v{X+k+1}, v{X+k+2}")
        e(f"v_or3_b32 v{X}, v{X}, v{X+3}, v{X+6}")
        e(f"v_or3_b32 v{X+9}, v{X+9}, v{X+12}, v{X+15}")
        e(f"v_or_b32 v{X}, v{X}, v{X+9}")
        e(f"v_and_b32 v{X}, 0xff, v{X}")
        e(f"v_cmp_ne_u32 vcc, 0, v{X}")
        e(f"s_cmp_gt_u32 s{sSpin}, 200000")
        e(f"s_cbranch_scc1 L_qgive")
        e(f"s_cmp_eq_u64 vcc, 0")
        e(f"s_cbranch_scc0 L_qpoll")
        A.label("L_qgive"); A.hist = []
        if cfg.exp2 == 'qpoll':
            stamp(4)
            e(f"s_mov_b32 s90, s{sSpin}")
            e(f"s_mov_b32 s91, 0")
        for k in range(16): e(f"v_and_b32 v{G+k}, 0xffffff00, v{G+k}")
        for k in range(4):
            e(f"v_add_f32 v{G+k}, v{G+k}, v{G+4+k}")
            e(f"v_add_f32 v{G+8+k}, v{G+8+k}, v{G+12+k}")
        for k in range(4): e(f"v_add_f32 v{G+k}, v{G+k}, v{G+8+k}")
        for k in range(4): e(f"v_mov_b32 v{G+4+k}, v{G+k}")
        for k in range(4): e(f"v_permlane32_swap_b32 v{G+k}, v{G+4+k}")
        for k in range(4): e(f"v_add_f32 v{G+k}, v{G+k}, v{G+4+k}")
        e(f"v_cvt_pk_bf16_f32 v{G}, v{G}, v{G+1}")
        e(f"v_cvt_pk_bf16_f32 v{G+1}, v{G+2}, v{G+3}")
        e(f"v_and_b32 v{vT0}, 31, v{vLane}")
        e(f"v_lshlrev_b32 v{vT0}, 3, v{vT0}")
        e(f"ds_write_b64 v{vT0}, v[{G}:{G+1}] offset:{L_QB}")
        e(f"s_waitcnt lgkmcnt(0)")
        A.label("L_qdone"); A.hist = []
        vq.q = []
    else:
        vq.wait("X")
        unpack_xr()
        for m in range(3): e(f"v_lshlrev_b32 v{OWN+m}, 16, v{OWN+m}")
        layernorm([XU+i for i in range(10)] + [OWN+m for m in range(3)])
        for m in range(3):
            e(f"v_mov_b32 v{XH[m]}, v{OWN+m}")
            e(f"v_lshrrev_b32 v{XL[m]}, 16, v{OWN+m}")
        for i in range(8): e(f"v_mov_b32 v{ACCQ+i}, 0")
        stamp(1)
        for j in range(40):
            vq.wait(("WQ", j))
            if nq < 40: wq_load(nq); nq += 1
            m, jj = divmod(j, 16)
            for d in range(4):
                e(f"v_dot2c_f32_bf16_dpp v{ACCQ+2*d}, v{XL[m]}, v{W+4*j+d} {bc(jj)}")
                e(f"v_dot2c_f32_bf16_dpp v{ACCQ+2*d+1}, v{XH[m]}, v{W+4*j+d} {bc(jj)}")
        reduce8(ACCQ, vT2, vT3)
        e(f"s_lshl_b32 s{sT}, s{sHw}, 9")
        e(f"v_add_u32 v{vT0}, s{sT}, v{vColAddr}")
        e(f"ds_write2_b32 v{vT0}, v{vT2}, v{vT3} offset0:{L_QP//4} offset1:{L_QP//4+4}")
        e(f"v_mov_b32 v{vT0}, 0")
        e(f"v_mov_b32 v{vT1}, 1")
        e(f"s_waitcnt lgkmcnt(0)")
        e(f"s_mov_b64 exec, 1")
        e(f"ds_add_rtn_u32 v{vT2}, v{vT0}, v{vT1} offset:{L_CNT}")
        e(f"s_waitcnt lgkmcnt(0)")
        e(f"v_readfirstlane_b32 s{sT}, v{vT2}")
        e(f"s_mov_b64 exec, -1")
        e(f"s_cmp_lg_u32 s{sT}, 3")
        e(f"s_cbranch_scc1 L_qdone")
        e(f"v_lshlrev_b32 v{vT0}, 3, v{vLane}")
        for w in range(4):
            e(f"ds_read_b64 v[{XU+2*w}:{XU+2*w+1}], v{vT0} offset:{L_QP + w*512}")
        e(f"s_waitcnt lgkmcnt(0)")
        e(f"v_pk_add_f32 v[{XU}:{XU+1}], v[{XU}:{XU+1}], v[{XU+2}:{XU+3}]")
        e(f"v_pk_add_f32 v[{XU+4}:{XU+5}], v[{XU+4}:{XU+5}], v[{XU+6}:{XU+7}]")
        e(f"v_pk_add_f32 v[{XU}:{XU+1}], v[{XU}:{XU+1}], v[{XU+4}:{XU+5}]")
        e(f"v_cvt_pk_bf16_f32 v{XU}, v{XU}, v{XU+1}")
        e(f"v_lshlrev_b32 v{vT0}, 2, v{vLane}")
        e(f"ds_write_b32 v{vT0}, v{XU} offset:{L_QB}")
        e(f"s_waitcnt lgkmcnt(0)")
        A.label("L_qdone"); A.hist = []
    e(f"s_barrier")
    stamp(2)
    if cfg.coop:
        vq.issue("X2", f"buffer_load_dwordx4 v[{XR}:{XR+3}], v{vL16}, s[{SA}:{SA+3}], 0 offen")
        vq.issue("X2", f"buffer_load_dword v{XR+4}, v{vT3}, s[{SA}:{SA+3}], 0 offen offset:1024")
        for m in range(3):
            vq.issue("X2", f"buffer_load_ushort v{OWN+m}, v{vT2}, s[{SA}:{SA+3}], 0 offen offset:{128*m}")
        vq.wait("X2")
        unpack_xr()
        for m in range(3): e(f"v_lshlrev_b32 v{OWN+m}, 16, v{OWN+m}")
        layernorm([XU+i for i in range(10)] + [OWN+m for m in range(3)])
        layernorm([OWN+m for m in range(3)])
    else:
        unpack_xr()
        layernorm([XU+i for i in range(10)])
        for m in range(3): e(f"v_mov_b32 v{OWN+m}, v{XH[m]}")
        layernorm([OWN+m for m in range(3)])
    for m in range(3):
        e(f"v_mov_b32 v{YH[m]}, v{OWN+m}")
        e(f"v_lshrrev_b32 v{YL[m]}, 16, v{OWN+m}")
    for i in range(4): e(f"v_mov_b32 v{ACCH+i}, 0")
    e(f"s_mul_i32 s{sTmp2}, s{sS}, {0 if cfg.exp == 'hot' else 108}")
    srd(SD, pW1, sTmp2, 640*3456, size_sub=sTmp2)
    srd(SBq, pB1, sTmp2, 3456, size_sub=sTmp2)
    e(f"s_mul_i32 s{sTmp}, s{sWr}, 160")
    e(f"v_add_u32 v{vT0}, s{sTmp}, v{vR}")
    e(f"s_mov_b32 s{sT}, 3456")
    e(f"v_mul_lo_u32 v{vOff}, v{vT0}, s{sT}")
    e(f"v_lshl_add_u32 v{vOff}, v{vC}, 3, v{vOff}")
    e(f"v_lshlrev_b32 v{vT4}, 1, v{vLane}")
    vq.issue("B1", f"buffer_load_ushort v{vB1}, v{vT4}, s[{SBq}:{SBq+3}], 0 offen")
    NS1 = 6
    def w1_load(j):
        if cfg.exp == 'skip': return
        e(f"s_mov_b32 s{sT}, {j*13824}")
        r = W1R + 2*(j % NS1)
        vq.issue(("W1", j), f"buffer_load_dwordx2 v[{r}:{r+1}], v{vOff}, s[{SD}:{SD+3}], s{sT} offen {cfg.wflag}")
    d1 = min(2*cfg.Dw, NS1 - 1)
    n1 = 0
    for j in range(d1): w1_load(j); n1 += 1
    for j in range(40):
        vq.wait(("W1", j))
        if n1 < 40: w1_load(n1); n1 += 1
        m, jj = divmod(j, 16)
        r = W1R + 2*(j % NS1)
        for d in range(2):
            e(f"v_dot2c_f32_bf16_dpp v{ACCH+2*d}, v{YL[m]}, v{r+d} {bc(jj)}")
            e(f"v_dot2c_f32_bf16_dpp v{ACCH+2*d+1}, v{YH[m]}, v{r+d} {bc(jj)}")
    e(f"s_mul_i32 s{sT}, s{sS}, {0 if cfg.exp == 'hot' else 54*1280}")
    srd(SE, pW2, sT, 1728*1280, size_sub=sT)
    e(f"s_mul_i32 s{sTmp}, s{sHw}, 14")
    e(f"v_add_u32 v{vT0}, s{sTmp}, v{vR}")
    e(f"s_mov_b32 s{sT}, 1280")
    e(f"v_mul_lo_u32 v{vOff}, v{vT0}, s{sT}")
    e(f"v_lshl_add_u32 v{vOff}, v{vC}, 4, v{vOff}")
    for blk in range(5):
        for g in range(4):
            n = blk*4 + g
            if cfg.exp == 'skip': continue
            vq.limit(cfg.Dw - 1)
            e(f"s_mov_b32 s{sT}, {g*5120}")
            vq.issue(("W2", blk), f"buffer_load_dwordx4 v[{W+4*n}:{W+4*n+3}], v{vOff}, s[{SE}:{SE+3}], s{sT} offen offset:{blk*256} {cfg.wflag}")
    e(f"v_permlane32_swap_b32 v{ACCH}, v{ACCH+1}")
    e(f"v_permlane32_swap_b32 v{ACCH+2}, v{ACCH+3}")
    e(f"v_add_f32 v{ACCH}, v{ACCH}, v{ACCH+1}")
    e(f"v_add_f32 v{ACCH+2}, v{ACCH+2}, v{ACCH+3}")
    e(f"v_permlane16_swap_b32 v{ACCH}, v{ACCH+2}")
    e(f"v_add_f32 v{ACCH}, v{ACCH}, v{ACCH+2}")
    perm_reg(vT4, vT1)
    e(f"v_lshl_add_u32 v{vT0}, v{vC}, 2, v{vT4}")
    e(f"v_lshlrev_b32 v{vT0}, 2, v{vT0}")
    e(f"s_lshl_b32 s{sT}, s{sHw}, 8")
    e(f"v_add_u32 v{vT0}, s{sT}, v{vT0}")
    e(f"ds_write_b32 v{vT0}, v{ACCH} offset:{L_HP}")
    e(f"v_mov_b32 v{vT0}, 0")
    e(f"v_mov_b32 v{vT1}, 1")
    e(f"s_waitcnt lgkmcnt(0)")
    e(f"s_mov_b64 exec, 1")
    e(f"ds_add_rtn_u32 v{vT2}, v{vT0}, v{vT1} offset:{L_CNT+4}")
    e(f"s_waitcnt lgkmcnt(0)")
    e(f"v_readfirstlane_b32 s{sT}, v{vT2}")
    e(f"s_mov_b64 exec, -1")
    vq.wait("B1")
    e(f"s_cmp_lg_u32 s{sT}, 3")
    e(f"s_cbranch_scc1 L_hwait")
    T = 230
    e(f"v_lshlrev_b32 v{vT0}, 2, v{vLane}")
    for w in range(4):
        e(f"ds_read_b32 v{T+w}, v{vT0} offset:{L_HP + w*256}")
    e(f"s_waitcnt lgkmcnt(0)")
    e(f"v_add_f32 v{T}, v{T}, v{T+1}")
    e(f"v_add_f32 v{T+2}, v{T+2}, v{T+3}")
    e(f"v_add_f32 v{T}, v{T}, v{T+2}")
    x_ = T
    e(f"v_cvt_pk_bf16_f32 v{x_}, 0, v{x_}")
    e(f"v_lshlrev_b32 v{vB1}, 16, v{vB1}")
    e(f"v_add_f32 v{x_}, v{x_}, v{vB1}")
    e(f"v_cvt_pk_bf16_f32 v{x_}, 0, v{x_}")
    e(f"v_mul_f32 v{vT1}, v{x_}, v{x_}")
    e(f"v_mul_f32 v{vT1}, v{vT1}, v{x_}")
    e(f"v_mov_b32 v{vT2}, {f32(0.044715)}")
    e(f"v_fma_f32 v{vT1}, v{vT1}, v{vT2}, v{x_}")
    e(f"v_mul_f32 v{vT1}, {f32(-2.0*math.sqrt(2.0/math.pi)*1.4426950408889634)}, v{vT1}")
    e(f"v_exp_f32 v{vT1}, v{vT1}")
    e(f"v_add_f32 v{vT1}, 1.0, v{vT1}")
    e(f"v_rcp_f32 v{vT1}, v{vT1}")
    e(f"v_mul_f32 v{x_}, v{x_}, v{vT1}")
    e(f"v_cvt_pk_bf16_f32 v{x_}, v{x_}, 0")
    e(f"v_cmp_gt_u32 vcc, 54, v{vLane}")
    e(f"v_cndmask_b32 v{x_}, 0, v{x_}, vcc")
    e(f"v_lshlrev_b32 v{vT0}, 1, v{vLane}")
    e(f"ds_write_b16 v{vT0}, v{x_} offset:{L_HB}")
    e(f"v_mov_b32 v{vT0}, 0")
    e(f"v_mov_b32 v{vT1}, 1")
    e(f"s_waitcnt lgkmcnt(0)")
    e(f"ds_write_b32 v{vT0}, v{vT1} offset:{L_CNT+8}")
    e(f"s_waitcnt lgkmcnt(0)")
    A.label("L_hwait"); A.hist = []
    e(f"v_mov_b32 v{vT0}, 0")
    A.label("L_hspin")
    e(f"ds_read_b32 v{vT1}, v{vT0} offset:{L_CNT+8}")
    e(f"s_waitcnt lgkmcnt(0)")
    e(f"v_readfirstlane_b32 s{sT}, v{vT1}")
    e(f"s_cmp_eq_u32 s{sT}, 0")
    e(f"s_cbranch_scc0 L_hgo")
    e(f"s_sleep 2")
    e(f"s_branch L_hspin")
    A.label("L_hgo"); A.hist = []
    e(f"s_mul_i32 s{sTmp}, s{sHw}, 14")
    e(f"v_lshl_add_u32 v{vT1}, v{vC}, 2, v{vR}")
    e(f"v_add_u32 v{vT2}, s{sTmp}, v{vT1}")
    e(f"v_and_b32 v{vT2}, 63, v{vT2}")
    e(f"v_lshlrev_b32 v{vT2}, 1, v{vT2}")
    e(f"ds_read_u16 v{vHL}, v{vT2} offset:{L_HB}")
    e(f"v_cmp_gt_u32 vcc, 14, v{vT1}")
    e(f"s_waitcnt lgkmcnt(0)")
    e(f"v_cndmask_b32 v{vHL}, 0, v{vHL}, vcc")
    e(f"v_lshlrev_b32 v{vHH}, 16, v{vHL}")
    for blk in range(5):
        for i in range(8): e(f"v_mov_b32 v{ACC2+i}, 0")
        vq.wait(("W2", blk))
        for g in range(4):
            r = W + 4*(blk*4 + g)
            for d in range(4):
                e(f"v_dot2c_f32_bf16_dpp v{ACC2+2*d}, v{vHL}, v{r+d} {bc(g)}")
                e(f"v_dot2c_f32_bf16_dpp v{ACC2+2*d+1}, v{vHH}, v{r+d} {bc(g)}")
        reduce8(ACC2, MLPS + 2*blk, MLPS + 2*blk + 1)
    e(f"s_mul_i32 s{sT}, s{sH}, {0 if cfg.exp == 'hot' else 128*1280}")
    srd(SC, pWO, sT, 4096*1280, size_sub=sT)
    e(f"s_lshl_b32 s{sTmp}, s{sHw}, 5")
    e(f"v_add_u32 v{vT0}, s{sTmp}, v{vR}")
    e(f"s_mov_b32 s{sT}, 1280")
    e(f"v_mul_lo_u32 v{vOff}, v{vT0}, s{sT}")
    e(f"v_lshl_add_u32 v{vOff}, v{vC}, 4, v{vOff}")
    for g in range(8):
        for blk in range(5):
            n = g*5 + blk
            if cfg.exp == 'skip': continue
            vq.limit(cfg.Dw - 1)
            e(f"s_mov_b32 s{sT}, {g*5120}")
            vq.issue(("WO", n), f"buffer_load_dwordx4 v[{W+4*n}:{W+4*n+3}], v{vOff}, s[{SC}:{SC+3}], s{sT} offen offset:{blk*256} {cfg.wflag}")
    vXB = 62
    vXB2 = 58
    if cfg.fin == 'tag8':
        e(f"s_mul_i32 s{sT}, s{sB}, 1280")
        e(f"s_mul_i32 s{sTmp}, s{sH}, 40")
        e(f"s_add_u32 s{sT}, s{sT}, s{sTmp}")
        srd(SBq, pX, sT, 40)
        srd(SD, pB2, sTmp, 40)
        e(f"v_and_b32 v{vT0}, 7, v{vLane}")
        e(f"v_lshlrev_b32 v{vT0}, 3, v{vT0}")
        vq.issue("XB", f"buffer_load_dwordx2 v[{vXB2}:{vXB2+1}], v{vT0}, s[{SBq}:{SBq+3}], 0 offen")
        vq.issue("XB", f"buffer_load_dwordx2 v[{vXB2+2}:{vXB2+3}], v{vT0}, s[{SD}:{SD+3}], 0 offen")
    if cfg.fin == 'tag':
        e(f"s_mul_i32 s{sT}, s{sB}, 1280")
        e(f"s_mul_i32 s{sTmp}, s{sH}, 40")
        e(f"s_add_u32 s{sT}, s{sT}, s{sTmp}")
        srd(SBq, pX, sT, 40)
        srd(SD, pB2, sTmp, 40)
        e(f"v_lshlrev_b32 v{vT0}, 2, v{vC}")
        vq.issue("XB", f"buffer_load_dword v{vXB}, v{vT0}, s[{SBq}:{SBq+3}], 0 offen")
        vq.issue("XB", f"buffer_load_dword v{vXB+1}, v{vT0}, s[{SD}:{SD+3}], 0 offen")
    ACCO = 224 - 0
    ACCO = 12
    acco = list(range(12, 40)) + list(range(50, 62))
    ACB = [12, 20, 28, 50, 224]
    for b_ in ACB:
        for i in range(8): e(f"v_mov_b32 v{b_+i}, 0")
    e(f"s_lshl_b32 s{sT}, s{sHw}, 5")
    e(f"v_lshl_add_u32 v{vT1}, v{vC}, 2, v{vR}")
    e(f"v_add_u32 v{vT1}, s{sT}, v{vT1}")
    e(f"v_and_b32 v{vT1}, 127, v{vT1}")
    e(f"v_lshlrev_b32 v{vT1}, 2, v{vT1}")
    e(f"v_mov_b32 v{vT0}, 0")
    vq.drain()
    if cfg.exp2 != 'qpoll': stamp(3)
    e(f"s_barrier")
    if cfg.exp2 != 'qpoll': stamp(4)
    ML = 232; OP = 240
    e(f"ds_read_b128 v[{ML}:{ML+3}], v{vT0} offset:{L_ML}")
    e(f"ds_read_b128 v[{ML+4}:{ML+7}], v{vT0} offset:{L_ML+16}")
    for w in range(4):
        e(f"ds_read_b32 v{OP+w}, v{vT1} offset:{L_OP + w*512}")
    e(f"s_waitcnt lgkmcnt(4)")
    vMn, vL, vE, vPL, vPH = 244, 245, 246, 247, 248
    e(f"v_max3_f32 v{vMn}, v{ML}, v{ML+2}, v{ML+4}")
    e(f"v_max_f32 v{vMn}, v{vMn}, v{ML+6}")
    for w in range(4): e(f"v_sub_f32 v{ML+2*w}, v{ML+2*w}, v{vMn}")
    for w in range(4): e(f"v_mul_f32 v{ML+2*w}, s{sL2E}, v{ML+2*w}")
    for w in range(4): e(f"v_exp_f32 v{ML+2*w}, v{ML+2*w}")
    e(f"s_waitcnt lgkmcnt(0)")
    e(f"v_mul_f32 v{vL}, v{ML}, v{ML+1}")
    e(f"v_mul_f32 v{vE}, v{ML}, v{OP}")
    for w in range(1, 4):
        e(f"v_fmac_f32 v{vL}, v{ML+2*w}, v{ML+2*w+1}")
        e(f"v_fmac_f32 v{vE}, v{ML+2*w}, v{OP+w}")
    e(f"v_rcp_f32 v{vL}, v{vL}")
    e(f"v_mul_f32 v{vE}, v{vE}, v{vL}")
    e(f"v_cvt_pk_bf16_f32 v{vPL}, v{vE}, 0")
    e(f"v_cvt_pk_bf16_f32 v{vPH}, 0, v{vE}")
    RES = 232
    for blk in range(5):
        for g in range(8):
            r = W + (g*5 + blk)*4
            for d in range(4):
                e(f"v_dot2c_f32_bf16_dpp v{ACB[blk]+2*d}, v{vPL}, v{r+d} {bc(g)}")
                e(f"v_dot2c_f32_bf16_dpp v{ACB[blk]+2*d+1}, v{vPH}, v{r+d} {bc(g)}")
        if blk > 0:
            reduce8(ACB[blk-1], RES + 2*(blk-1), RES + 2*(blk-1) + 1)
    reduce8(ACB[4], RES + 8, RES + 9)
    for i in range(10): e(f"v_add_f32 v{RES+i}, v{RES+i}, v{MLPS+i}")
    e(f"s_mul_i32 s{sT}, s{sHw}, 2560")
    e(f"v_add_u32 v{vT0}, s{sT}, v{vColAddr}")
    e(f"v_add_u32 v{vT0}, {L_OUT}, v{vT0}")
    for blk in range(5):
        e(f"ds_write_b32 v{vT0}, v{RES+2*blk} offset:{blk*512}")
        e(f"ds_write_b32 v{vT0}, v{RES+2*blk+1} offset:{blk*512+16}")
    e(f"s_waitcnt lgkmcnt(0)")
    e(f"s_barrier")
    if cfg.exp2 != 'qpoll': stamp(5)
    if cfg.fin == 'tag8':
        GB = 4096
        e(f"s_and_b32 s{sTmp2}, s{sNonce}, 0xff")
        e(f"s_cmp_eq_u32 s{sW}, 3")
        e(f"s_cbranch_scc1 L_cons")
        e(f"v_cmp_gt_u32 vcc, 160, v0")
        e(f"s_and_saveexec_b64 s[{SAVE}:{SAVE+1}], vcc")
        e(f"v_lshlrev_b32 v{vT0}, 4, v0")
        Pp = 64
        for w in range(4):
            e(f"ds_read_b128 v[{Pp+4*w}:{Pp+4*w+3}], v{vT0} offset:{L_OUT + w*2560}")
        e(f"s_mul_i32 s{sT}, s{sB}, {32*2560}")
        e(f"s_add_u32 s{sT}, s{sT}, {GB}")
        srd(SA, pWS, sT, 32*2560)
        e(f"v_mul_u32_u24 v{vT1}, 205, v0")
        e(f"v_lshrrev_b32 v{vT1}, 10, v{vT1}")
        e(f"v_mul_u32_u24 v{vT2}, 5, v{vT1}")
        e(f"v_sub_u32 v{vT2}, v0, v{vT2}")
        e(f"v_mul_u32_u24 v{vT1}, 2560, v{vT1}")
        e(f"v_lshl_add_u32 v{vT1}, v{vT2}, 4, v{vT1}")
        e(f"s_mul_i32 s{sT}, s{sH}, 80")
        e(f"v_mov_b32 v{vT3}, 0xffffff00")
        e(f"v_mov_b32 v{vT4}, s{sTmp2}")
        e(f"s_waitcnt lgkmcnt(0)")
        for k in range(4):
            e(f"v_add_f32 v{Pp+k}, v{Pp+k}, v{Pp+4+k}")
            e(f"v_add_f32 v{Pp+8+k}, v{Pp+8+k}, v{Pp+12+k}")
        for k in range(4):
            e(f"v_add_f32 v{Pp+k}, v{Pp+k}, v{Pp+8+k}")
        for k in range(4):
            e(f"v_add_u32 v{Pp+k}, 0x80, v{Pp+k}")
        for k in range(4):
            e(f"v_and_or_b32 v{Pp+k}, v{Pp+k}, v{vT3}, v{vT4}")
        e(f"buffer_store_dwordx4 v[{Pp}:{Pp+3}], v{vT1}, s[{SA}:{SA+3}], s{sT} offen sc0 sc1")
        e(f"s_branch L_fin")
        A.label("L_cons"); A.hist = []
        e(f"s_mul_i32 s{sT}, s2, 2560")
        e(f"s_add_u32 s{sT}, s{sT}, {GB}")
        srd(SA, pWS, sT, 2560)
        e(f"v_lshrrev_b32 v{vT0}, 3, v{vLane}")
        e(f"v_and_b32 v{vT4}, 7, v{vLane}")
        e(f"v_mul_u32_u24 v{vT1}, 80, v{vT0}")
        e(f"v_lshl_add_u32 v{vT1}, v{vT4}, 4, v{vT1}")
        e(f"s_mov_b32 s{sSpin}, 0")
        e(f"v_mov_b32 v{vT5}, s{sTmp2}")
        G = 64
        A.label("L_poll2"); A.hist = []
        for i in range(4):
            e(f"buffer_load_dwordx4 v[{G+4*i}:{G+4*i+3}], v{vT1}, s[{SA}:{SA+3}], 0 offen offset:{i*640} sc0 sc1")
        e(f"s_add_u32 s{sSpin}, s{sSpin}, 1")
        e(f"s_waitcnt vmcnt(0)")
        X = 84
        for k in range(16):
            e(f"v_xor_b32 v{X+k}, v{vT5}, v{G+k}")
        for k in range(0, 15, 3):
            e(f"v_or3_b32 v{X+k}, v{X+k}, v{X+k+1}, v{X+k+2}")
        e(f"v_or3_b32 v{X}, v{X}, v{X+3}, v{X+6}")
        e(f"v_or3_b32 v{X+9}, v{X+9}, v{X+12}, v{X+15}")
        e(f"v_or_b32 v{X}, v{X}, v{X+9}")
        e(f"v_and_b32 v{X}, 0xff, v{X}")
        e(f"v_cmp_gt_u32 vcc, 5, v{vT4}")
        e(f"v_cndmask_b32 v{X}, 0, v{X}, vcc")
        e(f"v_cmp_ne_u32 vcc, 0, v{X}")
        e(f"s_cmp_gt_u32 s{sSpin}, 200000")
        e(f"s_cbranch_scc1 L_fin")
        e(f"s_cmp_eq_u64 vcc, 0")
        e(f"s_cbranch_scc0 L_poll2")
        for k in range(16):
            e(f"v_and_b32 v{G+k}, 0xffffff00, v{G+k}")
        for k in range(4):
            e(f"v_add_f32 v{G+k}, v{G+k}, v{G+4+k}")
            e(f"v_add_f32 v{G+8+k}, v{G+8+k}, v{G+12+k}")
        for k in range(4):
            e(f"v_add_f32 v{G+k}, v{G+k}, v{G+8+k}")
        for k in range(4):
            e(f"v_add_f32_dpp v{G+k}, v{G+k}, v{G+k} row_ror:8 row_mask:0xf bank_mask:0xf")
        for k in range(4):
            e(f"v_mov_b32 v{G+4+k}, v{G+k}")
        for k in range(4):
            e(f"v_permlane16_swap_b32 v{G+k}, v{G+4+k}")
        for k in range(4):
            e(f"v_add_f32 v{G+k}, v{G+k}, v{G+4+k}")
        for k in range(4):
            e(f"v_mov_b32 v{G+4+k}, v{G+k}")
        for k in range(4):
            e(f"v_permlane32_swap_b32 v{G+k}, v{G+4+k}")
        for k in range(4):
            e(f"v_add_f32 v{G+k}, v{G+k}, v{G+4+k}")
        for k in range(4):
            for src in (vXB2 + 2 + k//2, vXB2 + k//2):
                if k % 2 == 0: e(f"v_lshlrev_b32 v{vT2}, 16, v{src}")
                else: e(f"v_and_b32 v{vT2}, 0xffff0000, v{src}")
                e(f"v_add_f32 v{G+k}, v{G+k}, v{vT2}")
        e(f"v_cvt_pk_bf16_f32 v{G+4}, v{G}, v{G+1}")
        e(f"v_cvt_pk_bf16_f32 v{G+5}, v{G+2}, v{G+3}")
        e(f"s_mul_i32 s{sT}, s{sB}, 1280")
        e(f"s_mul_i32 s{sTmp}, s{sH}, 40")
        e(f"s_add_u32 s{sT}, s{sT}, s{sTmp}")
        srd(SD, pOUT, sT, 40)
        e(f"v_lshlrev_b32 v{vT0}, 3, v{vLane}")
        e(f"buffer_store_dwordx2 v[{G+4}:{G+5}], v{vT0}, s[{SD}:{SD+3}], 0 offen")
        if cfg.coop:
            e(f"s_cmp_lg_u32 s2, 0")
            e(f"s_cbranch_scc1 L_fin")
            srd(SC, pWS, None, 4)
        else:
            e(f"s_cmp_lg_u32 s{sH}, 0")
            e(f"s_cbranch_scc1 L_fin")
            e(f"s_lshl_b32 s{sT}, s{sB}, 8")
            srd(SC, pWS, sT, 4)
        e(f"v_mov_b32 v{vT2}, s{sNonce}")
        e(f"buffer_store_dword v{vT2}, v{vT0}, s[{SC}:{SC+3}], 0 offen sc0 sc1")
        e(f"s_branch L_fin")
    elif cfg.fin == 'tag':
        GB = 4096
        e(f"s_cmp_eq_u32 s{sW}, 3")
        e(f"s_cbranch_scc1 L_cons")
        e(f"v_cmp_gt_u32 vcc, 160, v0")
        e(f"s_and_saveexec_b64 s[{SAVE}:{SAVE+1}], vcc")
        e(f"v_lshlrev_b32 v{vT0}, 4, v0")
        Pp = 64
        for w in range(4):
            e(f"ds_read_b128 v[{Pp+4*w}:{Pp+4*w+3}], v{vT0} offset:{L_OUT + w*2560}")
        e(f"s_mul_i32 s{sT}, s{sB}, {32*5120}")
        e(f"s_add_u32 s{sT}, s{sT}, {GB}")
        srd(SA, pWS, sT, 32*5120)
        e(f"v_mul_u32_u24 v{vT1}, 205, v0")
        e(f"v_lshrrev_b32 v{vT1}, 10, v{vT1}")
        e(f"v_mul_u32_u24 v{vT2}, 5, v{vT1}")
        e(f"v_sub_u32 v{vT2}, v0, v{vT2}")
        e(f"v_mul_u32_u24 v{vT1}, 5120, v{vT1}")
        e(f"v_lshl_add_u32 v{vT1}, v{vT2}, 5, v{vT1}")
        e(f"s_mul_i32 s{sT}, s{sH}, 160")
        e(f"v_mov_b32 v{Pp+17}, s{sNonce}")
        e(f"v_mov_b32 v{Pp+19}, s{sNonce}")
        e(f"v_mov_b32 v{Pp+21}, s{sNonce}")
        e(f"v_mov_b32 v{Pp+23}, s{sNonce}")
        e(f"s_waitcnt lgkmcnt(0)")
        for k in range(4):
            e(f"v_add_f32 v{Pp+k}, v{Pp+k}, v{Pp+4+k}")
            e(f"v_add_f32 v{Pp+8+k}, v{Pp+8+k}, v{Pp+12+k}")
        for k in range(4):
            e(f"v_add_f32 v{Pp+16+2*k}, v{Pp+k}, v{Pp+8+k}")
        e(f"buffer_store_dwordx4 v[{Pp+16}:{Pp+19}], v{vT1}, s[{SA}:{SA+3}], s{sT} offen sc0 sc1")
        e(f"buffer_store_dwordx4 v[{Pp+20}:{Pp+23}], v{vT1}, s[{SA}:{SA+3}], s{sT} offen offset:16 sc0 sc1")
        e(f"s_branch L_fin")
        A.label("L_cons"); A.hist = []
        e(f"s_mul_i32 s{sT}, s2, 5120")
        e(f"s_add_u32 s{sT}, s{sT}, {GB}")
        srd(SA, pWS, sT, 5120)
        e(f"v_mul_u32_u24 v{vT0}, 160, v{vLane}")
        e(f"v_mul_u32_u24 v{vT1}, 160, v{vR}")
        e(f"v_lshl_add_u32 v{vT1}, v{vC}, 4, v{vT1}")
        e(f"s_mov_b32 s{sSpin}, 0")
        e(f"s_mov_b32 s{sTmp}, 2560")
        G = 64
        A.label("L_poll1"); A.hist = []
        e(f"buffer_load_dwordx4 v[{G}:{G+3}], v{vT0}, s[{SA}:{SA+3}], 0 offen sc0 sc1")
        e(f"s_add_u32 s{sSpin}, s{sSpin}, 1")
        e(f"s_waitcnt vmcnt(0)")
        e(f"v_xor_b32 v{G}, s{sNonce}, v{G+1}")
        e(f"v_xor_b32 v{G+2}, s{sNonce}, v{G+3}")
        e(f"v_or_b32 v{G}, v{G}, v{G+2}")
        e(f"v_cmp_eq_u32 vcc, 0, v{G}")
        e(f"s_cmp_gt_u32 s{sSpin}, 200000")
        e(f"s_cbranch_scc1 L_fin")
        e(f"s_cmp_eq_u32 vcc_lo, -1")
        e(f"s_cbranch_scc0 L_poll1")
        A.label("L_poll2"); A.hist = []
        for i in range(8):
            so = "0" if i < 4 else f"s{sTmp}"
            e(f"buffer_load_dwordx4 v[{G+4*i}:{G+4*i+3}], v{vT1}, s[{SA}:{SA+3}], {so} offen offset:{(i%4)*640} sc0 sc1")
        e(f"s_add_u32 s{sSpin}, s{sSpin}, 1")
        e(f"s_waitcnt vmcnt(0)")
        e(f"v_xor_b32 v{vT2}, s{sNonce}, v{G+1}")
        for i in range(8):
            for k in (1, 3):
                if i == 0 and k == 1: continue
                e(f"v_xor_b32 v{vT3}, s{sNonce}, v{G+4*i+k}")
                e(f"v_or_b32 v{vT2}, v{vT2}, v{vT3}")
        e(f"v_cmp_gt_u32 vcc, 10, v{vC}")
        e(f"v_cndmask_b32 v{vT2}, 0, v{vT2}, vcc")
        e(f"v_cmp_ne_u32 vcc, 0, v{vT2}")
        e(f"s_cmp_gt_u32 s{sSpin}, 200000")
        e(f"s_cbranch_scc1 L_fin")
        e(f"s_cmp_eq_u64 vcc, 0")
        e(f"s_cbranch_scc0 L_poll2")
        for i in range(1, 8):
            e(f"v_add_f32 v{G}, v{G}, v{G+4*i}")
            e(f"v_add_f32 v{G+2}, v{G+2}, v{G+4*i+2}")
        for r in (G, G+2):
            e(f"v_mov_b32 v{vT2}, v{r}")
            e(f"v_permlane16_swap_b32 v{r}, v{vT2}")
            e(f"v_add_f32 v{r}, v{r}, v{vT2}")
            e(f"v_mov_b32 v{vT2}, v{r}")
            e(f"v_permlane32_swap_b32 v{r}, v{vT2}")
            e(f"v_add_f32 v{r}, v{r}, v{vT2}")
        e(f"v_lshlrev_b32 v{vT2}, 16, v{vXB+1}")
        e(f"v_and_b32 v{vT3}, 0xffff0000, v{vXB+1}")
        e(f"v_add_f32 v{G}, v{G}, v{vT2}")
        e(f"v_add_f32 v{G+2}, v{G+2}, v{vT3}")
        e(f"v_lshlrev_b32 v{vT2}, 16, v{vXB}")
        e(f"v_and_b32 v{vT3}, 0xffff0000, v{vXB}")
        e(f"v_add_f32 v{G}, v{G}, v{vT2}")
        e(f"v_add_f32 v{G+2}, v{G+2}, v{vT3}")
        e(f"v_cvt_pk_bf16_f32 v{G}, v{G}, v{G+2}")
        e(f"s_mul_i32 s{sT}, s{sB}, 1280")
        e(f"s_mul_i32 s{sTmp}, s{sH}, 40")
        e(f"s_add_u32 s{sT}, s{sT}, s{sTmp}")
        srd(SD, pOUT, sT, 40)
        e(f"v_lshlrev_b32 v{vT0}, 2, v{vLane}")
        e(f"buffer_store_dword v{G}, v{vT0}, s[{SD}:{SD+3}], 0 offen")
        e(f"s_cmp_lg_u32 s{sH}, 0")
        e(f"s_cbranch_scc1 L_fin")
        e(f"s_lshl_b32 s{sT}, s{sB}, 8")
        srd(SC, pWS, sT, 4)
        e(f"v_mov_b32 v{vT2}, s{sNonce}")
        e(f"buffer_store_dword v{vT2}, v{vT0}, s[{SC}:{SC+3}], 0 offen sc0 sc1")
        e(f"s_branch L_fin")
    else:
        e(f"s_cmp_ge_u32 s{sW}, 3")
        e(f"s_cbranch_scc1 L_fin")
        e(f"v_cmp_gt_u32 vcc, 160, v0")
        e(f"s_and_saveexec_b64 s[{SAVE}:{SAVE+1}], vcc")
        e(f"v_lshlrev_b32 v{vT0}, 4, v0")
        Pp = 64
        for w in range(4):
            e(f"ds_read_b128 v[{Pp+4*w}:{Pp+4*w+3}], v{vT0} offset:{L_OUT + w*2560}")
        e(f"s_mul_i32 s{sT}, s2, 2560")
        srd(SA, pWS, sT, 2560)
        e(f"s_waitcnt lgkmcnt(0)")
        for k in range(4):
            e(f"v_add_f32 v{Pp+k}, v{Pp+k}, v{Pp+4+k}")
            e(f"v_add_f32 v{Pp+8+k}, v{Pp+8+k}, v{Pp+12+k}")
        for k in range(4):
            e(f"v_add_f32 v{Pp+k}, v{Pp+k}, v{Pp+8+k}")
        e(f"buffer_store_dwordx4 v[{Pp}:{Pp+3}], v{vT0}, s[{SA}:{SA+3}], 0 offen sc0 sc1")
        e(f"s_mul_i32 s{sT}, s{sB}, 3")
        e(f"s_add_u32 s{sT}, s{sT}, s{sW}")
        e(f"s_lshl_b32 s{sT}, s{sT}, 2")
        e(f"s_mov_b64 s[{SAVE+2}:{SAVE+3}], exec")
        e(f"s_waitcnt vmcnt(0)")
        e(f"s_mov_b64 exec, 1")
        e(f"v_mov_b32 v{vT1}, s{sT}")
        e(f"v_mov_b32 v{vT2}, 1")
        e(f"global_atomic_add v{vT3}, v{vT1}, v{vT2}, s[{pDBG}:{pDBG+1}] sc0 sc1")
        e(f"s_waitcnt vmcnt(0)")
        e(f"v_readfirstlane_b32 s{sT}, v{vT3}")
        e(f"s_mov_b64 exec, s[{SAVE+2}:{SAVE+3}]")
        e(f"s_cmp_lg_u32 s{sT}, 31")
        e(f"s_cbranch_scc1 L_fin")
        e(f"s_mul_i32 s{sT}, s{sB}, {32*2560}")
        srd(SA, pWS, sT, 32*2560)
        for hh in range(32):
            r = 96 + 4*hh
            e(f"s_mov_b32 s{sT}, {hh*2560}")
            e(f"buffer_load_dwordx4 v[{r}:{r+3}], v{vT0}, s[{SA}:{SA+3}], s{sT} offen sc0 sc1")
        e(f"s_mul_i32 s{sT}, s{sB}, 1280")
        srd(SBq, pX, sT, 1280)
        srd(SC, pB2, None, 1280)
        srd(SD, pOUT, sT, 1280)
        e(f"v_lshlrev_b32 v{vT1}, 3, v0")
        e(f"buffer_load_dwordx2 v[{Pp}:{Pp+1}], v{vT1}, s[{SBq}:{SBq+3}], 0 offen")
        e(f"buffer_load_dwordx2 v[{Pp+2}:{Pp+3}], v{vT1}, s[{SC}:{SC+3}], 0 offen")
        for hh in range(1, 32):
            e(f"s_waitcnt vmcnt({2 + 31 - hh})")
            for k in range(4):
                e(f"v_add_f32 v{96+k}, v{96+k}, v{96+4*hh+k}")
        e(f"s_waitcnt vmcnt(0)")
        for k in range(4):
            src = Pp + k//2; src2 = Pp + 2 + k//2
            if k % 2 == 0:
                e(f"v_lshlrev_b32 v{vT2}, 16, v{src}")
                e(f"v_lshlrev_b32 v{vT3}, 16, v{src2}")
            else:
                e(f"v_and_b32 v{vT2}, 0xffff0000, v{src}")
                e(f"v_and_b32 v{vT3}, 0xffff0000, v{src2}")
            e(f"v_add_f32 v{96+k}, v{96+k}, v{vT3}")
            e(f"v_add_f32 v{96+k}, v{96+k}, v{vT2}")
        e(f"v_cvt_pk_bf16_f32 v{Pp+4}, v96, v97")
        e(f"v_cvt_pk_bf16_f32 v{Pp+5}, v98, v99")
        e(f"buffer_store_dwordx2 v[{Pp+4}:{Pp+5}], v{vT1}, s[{SD}:{SD+3}], 0 offen")
        e(f"s_branch L_fin")


    A.hist = []
    A.label("L_stream")
    L = cfg.L; P = cfg.P
    Q = 12; ACC = 16; vM = 24; vSc = 25; S = 26
    vU0, vU1, vTt = 30, 31, 32
    vLs = 33; E2 = 34
    E2n = 36
    vPL, vPH, vE = 38, 39, 40
    RING = 44
    BIG = 76
    P2 = cfg.P2
    TMPR = BIG + 4*P
    assert BIG + 4*P + (16 if P2 else 0) <= 256 and P2 % 4 == 0 and (not P2 or P % 4 == 0)
    sPF = 8; vPF = 42
    e(f"s_mov_b32 s{sScale}, {f32(128**-0.5)}")
    e(f"s_lshl_b32 s{sIss}, s{sHw}, 12")
    e(f"v_lshrrev_b32 v{vT0}, 2, v{vC}")
    e(f"v_lshl_add_u32 v{vT0}, v{vR}, 2, v{vT0}")
    e(f"s_lshl_b32 s{sT}, s{sHw}, 9")
    e(f"v_add_u32 v{vT0}, s{sT}, v{vT0}")
    e(f"v_lshlrev_b32 v{vSc}, 3, v{vT0}")
    e(f"v_add_u32 v{vSc}, {L_SC}, v{vSc}")
    e(f"s_waitcnt lgkmcnt(0)")
    e(f"s_lshl_b32 s{sT}, s2, 20")
    srd(SK, pK, sT, 1 << 20)
    srd(SV, pV, sT, 1 << 20)
    if P2:
        e(f"s_mul_i32 s{sPF}, s{sHw}, {P2*1024}")
        e(f"s_add_u32 s{sPF}, s{sPF}, {L_PF}")
        e(f"v_add_u32 v{vPF}, s{sPF}, v{vL16}")
    slot = {}
    def issue_lds(n):
        k = n - P; j = n % 4
        e(f"s_add_u32 m0, s{sPF}, {(k - j)*1024}")
        e(f"s_nop 0")
        e(f"buffer_load_dwordx4 v{vL16}, s[{SK}:{SK+3}], s{sIss} offen offset:{j*1024} {cfg.kflag} lds")
        if j == 3: e(f"s_add_u32 s{sIss}, s{sIss}, 16384")
        slot[n] = ("L", k)
    def issue(n, reg):
        isV = n >= 256
        j = n % 4
        if n == 256: e(f"s_lshl_b32 s{sIss}, s{sHw}, 12")
        srdr = SV if isV else SK
        fl = cfg.vflag if isV else cfg.kflag
        e(f"buffer_load_dwordx4 v[{reg}:{reg+3}], v{vL16}, s[{srdr}:{srdr+3}], s{sIss} offen offset:{j*1024} {fl}")
        if j == 3: e(f"s_add_u32 s{sIss}, s{sIss}, 16384")
        slot[n] = reg
    m_ = "row_mask:0xf"
    def consumeK(n, scoff=None):
        j = n % 4; reg = slot[n]; i = n // 4
        if isinstance(reg, tuple):
            k = reg[1]
            if j == 0:
                for jj in range(4):
                    e(f"ds_read_b128 v[{TMPR+4*jj}:{TMPR+4*jj+3}], v{vPF} offset:{(k+jj)*1024}")
                e(f"s_waitcnt lgkmcnt(0)")
            reg = TMPR + 4*j
        for d in range(4):
            src2 = "0" if d == 0 else f"v{S+j}"
            e(f"v_dot2_f32_bf16 v{S+j}, v{reg+d}, v{Q+d}, {src2}")
        if j == 3:
            e(f"v_add_f32_dpp v{vU0}, v{S}, v{S} row_mirror {m_} bank_mask:0x3")
            e(f"v_add_f32_dpp v{vU1}, v{S+1}, v{S+1} row_mirror {m_} bank_mask:0x3")
            e(f"v_add_f32_dpp v{vU0}, v{S+2}, v{S+2} row_mirror {m_} bank_mask:0xc")
            e(f"v_add_f32_dpp v{vU1}, v{S+3}, v{S+3} row_mirror {m_} bank_mask:0xc")
            e(f"v_add_f32_dpp v{vTt}, v{vU0}, v{vU0} row_half_mirror {m_} bank_mask:0x5")
            e(f"v_add_f32_dpp v{vTt}, v{vU1}, v{vU1} row_half_mirror {m_} bank_mask:0xa")
            e(f"v_add_f32_dpp v{vTt}, v{vTt}, v{vTt} quad_perm:[1,0,3,2] {m_} bank_mask:0xf")
            e(f"v_add_f32_dpp v{vTt}, v{vTt}, v{vTt} quad_perm:[2,3,0,1] {m_} bank_mask:0xf")
            e(f"v_cvt_pk_bf16_f32 v{vTt}, 0, v{vTt}")
            e(f"v_mul_f32 v{vTt}, s{sScale}, v{vTt}")
            e(f"v_cvt_pk_bf16_f32 v{vTt}, 0, v{vTt}")
            e(f"ds_write_b32 v{vSc}, v{vTt} offset:{4*(i % 2)}")
            e(f"v_max_f32 v{vM}, v{vM}, v{vTt}")
            if i % 2 == 1: e(f"v_add_u32 v{vSc}, 128, v{vSc}")
    def consumeV(n):
        j = n % 4; reg = slot[n]; i = (n - 256) // 4
        if j == 0:
            if i % 2 == 0:
                e(f"s_waitcnt lgkmcnt(0)")
                e(f"v_sub_f32 v{E2}, v{E2n}, v{vM}")
                e(f"v_sub_f32 v{E2+1}, v{E2n+1}, v{vM}")
                e(f"ds_read_b64 v[{E2n}:{E2n+1}], v{vSc}")
                e(f"v_add_u32 v{vSc}, 128, v{vSc}")
                e(f"v_mul_f32 v{E2}, s{sL2E}, v{E2}")
                e(f"v_mul_f32 v{E2+1}, s{sL2E}, v{E2+1}")
                e(f"v_exp_f32 v{E2}, v{E2}")
                e(f"v_exp_f32 v{E2+1}, v{E2+1}")
                e(f"v_add_f32 v{vLs}, v{vLs}, v{E2}")
                e(f"v_add_f32 v{vLs}, v{vLs}, v{E2+1}")
            e(f"v_cvt_pk_bf16_f32 v{vPL}, v{E2 + i % 2}, 0")
            e(f"v_cvt_pk_bf16_f32 v{vPH}, 0, v{E2 + i % 2}")
        for d in range(4):
            e(f"v_dot2c_f32_bf16_dpp v{ACC+2*d}, v{vPL}, v{reg+d} {bc(4*j)}")
            e(f"v_dot2c_f32_bf16_dpp v{ACC+2*d+1}, v{vPH}, v{reg+d} {bc(4*j)}")
    Lp = cfg.Lp or L
    for n in range(P):
        if n == Lp: e(f"s_barrier")
        if n >= Lp: e(f"s_waitcnt vmcnt({Lp-1})")
        if cfg.exp2 == 'early' and n in (Lp, Lp+10, Lp+20, Lp+30):
            stamp({Lp: 3, Lp+10: 4, Lp+20: 5, Lp+30: 6}[n])
        issue(n, BIG + 4*n)
    for n in range(P, P + P2):
        e(f"s_waitcnt vmcnt({Lp-1})")
        issue_lds(n)
    if P <= Lp: e("s_barrier")
    stamp(1)
    e(f"s_barrier")
    e(f"v_lshlrev_b32 v{vT0}, 4, v{vC}")
    e(f"ds_read_b128 v[{Q}:{Q+3}], v{vT0} offset:{L_QB}")
    for i in range(8): e(f"v_mov_b32 v{ACC+i}, 0")
    e(f"v_mov_b32 v{vM}, 0xff800000")
    e(f"v_mov_b32 v{vLs}, 0")
    e(f"s_waitcnt lgkmcnt(0)")
    stamp(2)
    I = P + P2; C = 0
    free = []
    def alloc(n):
        return None
    while I - C > L:
        e(f"s_waitcnt vmcnt({L-1})")
        prev = I - 8
        ringreg = RING + 4*(I % 8)
        tenant = [n for n, r in slot.items() if r == ringreg and n >= C]
        if not tenant and (I - C) <= 16:
            reg = ringreg
        else:
            reg = free.pop(0) if free else None
            if reg is None:
                assert not tenant
                reg = ringreg
        issue(I, reg); I += 1
        for _ in range(2):
            if I - C > L:
                consumeK(C)
                if not isinstance(slot[C], tuple) and BIG <= slot[C]: free.append(slot[C])
                C += 1
    Kpat = cfg.Kpat or [L]*8
    Vpat = cfg.Vpat or [L]*8
    def target(n):
        if n >= 512: return 0
        t = Kpat[n % 8] if n < 256 else Vpat[n % 8]
        if n >= 512 - cfg.tailN: t = cfg.Ltail
        return min(t, 512 - n)
    def steady(nsteps_end):
        nonlocal I, C
        while C < nsteps_end:
            e(f"s_waitcnt vmcnt({I - C - 1})")
            while I < 512 and I - (C + 1) < target(C + 1):
                ringreg = RING + 4*(I % 8)
                assert not [n for n, r in slot.items() if r == ringreg and C <= n < I], (I, C)
                issue(I, ringreg); I += 1
            if C < 256: consumeK(C)
            else: consumeV(C)
            C += 1
    while not (C % 8 == 0 and I - C == target(C) and all(slot[n] == RING + 4*(n % 8) for n in range(C, I))):
        steady(C + 1)
    c0 = C
    niterK = (248 - c0) // 8
    assert niterK >= 1 and c0 + 8*niterK == 248, (c0, niterK)
    if cfg.exp2 == 'kstart': stamp(5)
    e(f"s_mov_b32 s{sCnt}, {niterK}")
    A.fence()
    A.label("L_kloop")
    steady(C + 8)
    e(f"s_sub_u32 s{sCnt}, s{sCnt}, 1")
    e(f"s_cmp_lg_u32 s{sCnt}, 0")
    A.fence()
    e(f"s_cbranch_scc1 L_kloop")
    shift = 248 - C
    for n in range(C, I): slot[n + shift] = slot[n]
    C += shift; I += shift
    vRank = 41
    if cfg.rank:
        e(f"s_cmp_lg_u32 s{sHw}, 0")
        e(f"s_cbranch_scc1 L_norank")
        e(f"s_mov_b64 exec, 1")
        e(f"v_mov_b32 v{vT0}, 0")
        e(f"v_mov_b32 v{vT1}, 1")
        e(f"global_atomic_add v{vRank}, v{vT0}, v{vT1}, s[{pDBG}:{pDBG+1}] sc0 sc1")
        e(f"s_mov_b64 exec, -1")
        A.label("L_norank"); A.hist = []
        Ia = I
        steady(Ia + 1)
        e(f"s_cmp_lg_u32 s{sHw}, 0")
        e(f"s_cbranch_scc1 L_norank2")
        e(f"v_readfirstlane_b32 s{sT}, v{vRank}")
        e(f"s_mov_b32 s{sTmp}, 0")
        for k, (thr, pat) in enumerate(cfg.rank):
            e(f"s_cmp_ge_u32 s{sT}, {thr}")
            e(f"s_cselect_b32 s{sTmp}, {k+1}, s{sTmp}")
        e(f"v_mov_b32 v{vT0}, 0")
        e(f"v_mov_b32 v{vT1}, s{sTmp}")
        e(f"ds_write_b32 v{vT0}, v{vT1} offset:{L_CNT+16}")
        A.label("L_norank2"); A.hist = []
    steady(256)
    if cfg.exp2 != 'early': stamp(3)
    wave_red(vM, vT1, "v_max_f32")
    e(f"v_subrev_u32 v{vSc}, {32*128}, v{vSc}")
    e(f"s_waitcnt lgkmcnt(0)")
    e(f"ds_read_b64 v[{E2n}:{E2n+1}], v{vSc}")
    e(f"v_add_u32 v{vSc}, 128, v{vSc}")
    steady(264)
    def vsection(pat, sfx):
        nonlocal I, C, Vpat
        Vpat = pat
        steady(272)
        vend = 512 - 8 - cfg.tailN - (8 if cfg.tailN else 0)
        niterV = (vend - 272) // 8
        e(f"s_mov_b32 s{sCnt}, {niterV}")
        A.fence()
        A.label(f"L_vloop{sfx}")
        steady(C + 8)
        e(f"s_sub_u32 s{sCnt}, s{sCnt}, 1")
        e(f"s_cmp_lg_u32 s{sCnt}, 0")
        A.fence()
        e(f"s_cbranch_scc1 L_vloop{sfx}")
        shift = vend - C
        for n in range(C, I): slot[n + shift] = slot[n]
        C += shift; I += shift
        if cfg.tailN:
            steady(512 - cfg.tailN + 8)
            nt_ = (504 - C) // 8
            if nt_ > 0:
                e(f"s_mov_b32 s{sCnt}, {nt_}")
                A.fence()
                A.label(f"L_tloop{sfx}")
                steady(C + 8)
                e(f"s_sub_u32 s{sCnt}, s{sCnt}, 1")
                e(f"s_cmp_lg_u32 s{sCnt}, 0")
                A.fence()
                e(f"s_cbranch_scc1 L_tloop{sfx}")
                shift = 504 - C
                for n in range(C, I): slot[n + shift] = slot[n]
                C += shift; I += shift
        steady(512)
    if cfg.rank:
        e(f"v_mov_b32 v{vT0}, 0")
        e(f"ds_read_b32 v{vT1}, v{vT0} offset:{L_CNT+16}")
        e(f"s_waitcnt lgkmcnt(0)")
        e(f"v_readfirstlane_b32 s{sT}, v{vT1}")
        for k in range(len(cfg.rank)):
            e(f"s_cmp_eq_u32 s{sT}, {k+1}")
            e(f"s_cbranch_scc1 L_vsec{k+1}")
        base_pat = list(Vpat)
        saved = (I, C, dict(slot))
        pats = [base_pat] + [p for _, p in cfg.rank]
        for k, pat in enumerate(pats):
            I, C = saved[0], saved[1]
            slot.clear(); slot.update(saved[2])
            if k > 0:
                A.label(f"L_vsec{k}"); A.hist = []
            vsection(pat, f"_{k}")
            if k < len(pats) - 1:
                A.fence()
                e(f"s_branch L_vdone")
        A.label("L_vdone"); A.hist = []
    else:
        vsection(Vpat, "")
    if cfg.exp2 != 'early': stamp(4)
    m = "row_mask:0xf bank_mask:0xf"
    e(f"v_add_f32_dpp v{vLs}, v{vLs}, v{vLs} row_half_mirror {m}")
    e(f"v_add_f32_dpp v{vLs}, v{vLs}, v{vLs} row_mirror {m}")
    e(f"v_mov_b32 v{vT1}, v{vLs}")
    e(f"v_permlane16_swap_b32 v{vLs}, v{vT1}")
    e(f"v_add_f32 v{vLs}, v{vLs}, v{vT1}")
    e(f"v_mov_b32 v{vT1}, v{vLs}")
    e(f"v_permlane32_swap_b32 v{vLs}, v{vT1}")
    e(f"v_add_f32 v35, v{vLs}, v{vT1}")
    e(f"v_mov_b32 v34, v{vM}")
    reduce8(ACC, vT2, vT3)
    e(f"s_lshl_b32 s{sT}, s{sHw}, 9")
    e(f"v_add_u32 v{vT0}, s{sT}, v{vColAddr}")
    e(f"v_add_u32 v{vT0}, {L_OP}, v{vT0}")
    e(f"ds_write2_b32 v{vT0}, v{vT2}, v{vT3} offset0:0 offset1:4")
    e(f"s_lshl_b32 s{sT}, s{sHw}, 3")
    e(f"v_mov_b32 v{vT0}, s{sT}")
    e(f"ds_write_b64 v{vT0}, v[34:35] offset:{L_ML}")
    e(f"s_waitcnt lgkmcnt(0)")
    e(f"s_barrier")
    if cfg.exp2 not in ('kstart', 'early'): stamp(5)
    A.label("L_fin"); A.hist = []
    if cfg.stamps:
        e("s_mov_b64 exec, -1")
        if cfg.exp2 == 'early':
            e(f"s_cmp_ge_u32 s{sW}, 4")
            e(f"s_cbranch_scc1 L_nost6")
        stamp(6)
        if cfg.exp2 == 'early': A.label("L_nost6")
        e("s_waitcnt lgkmcnt(0)")
        if cfg.dbgstamps:
            e(f"s_cmp_eq_u32 s{sW}, 3")
            e(f"s_cbranch_scc1 L_dbg3")
            e(f"s_cmp_eq_u32 s{sW}, 4")
            e(f"s_cbranch_scc0 L_end")
            e("s_mov_b64 exec, 1")
            for k, i in enumerate((1, 2, 3, 4)):
                e(f"v_mov_b32 v64, s{80+2*i}")
                e(f"v_not_b32 v65, v64")
                e(f"v_mov_b32 v66, {32 + 8*k}")
                e(f"global_atomic_umax v66, v64, s[{pDBG}:{pDBG+1}] sc1")
                e(f"global_atomic_umax v66, v65, s[{pDBG}:{pDBG+1}] offset:4 sc1")
            e("s_waitcnt vmcnt(0)")
            e("s_branch L_end")
            A.label("L_dbg3")
            e("s_mov_b64 exec, 1")
            for k, i in enumerate((0, 2, 5, 6)):
                e(f"v_mov_b32 v64, s{80+2*i}")
                e(f"v_not_b32 v65, v64")
                e(f"v_mov_b32 v66, {8*k}")
                e(f"global_atomic_umax v66, v64, s[{pDBG}:{pDBG+1}] sc1")
                e(f"global_atomic_umax v66, v65, s[{pDBG}:{pDBG+1}] offset:4 sc1")
            e("s_waitcnt vmcnt(0)")
            e("s_branch L_end")
        e(f"s_lshl_b32 s{sT}, s2, 3")
        e(f"s_add_u32 s{sT}, s{sT}, s{sW}")
        e(f"s_lshl_b32 s{sT}, s{sT}, 6")
        e(f"s_add_u32 s{sT}, s{sT}, {1<<20}")
        for i in range(14): e(f"v_mov_b32 v{64+i}, s{80+i}")
        e(f"s_getreg_b32 s{sTmp}, hwreg(HW_REG_XCC_ID)")
        e(f"v_mov_b32 v78, s{sTmp}")
        e(f"v_mov_b32 v79, 0")
        e(f"v_mov_b32 v{vT0}, s{sT}")
        e("s_mov_b64 exec, 1")
        for i in range(4):
            e(f"global_store_dwordx4 v{vT0}, v[{64+4*i}:{67+4*i}], s[{pWS}:{pWS+1}] offset:{16*i}")
        e("s_waitcnt vmcnt(0)")
    A.label("L_end")
    e("s_endpgm")
    body = A.text()
    hdr = HDR + f"; @launch grid=(256,1,1) block=(512,1,1) lds={LDS_BYTES}\n"
    pre = f""".amdgcn_target "amdgcn-amd-amdhsa--gfx950"
.text
.globl {KN}
.p2align 8
.type {KN},@function
{KN}:
"""
    post = f""".section .rodata,"a"
.p2align 6
.amdhsa_kernel {KN}
  .amdhsa_next_free_vgpr 256
  .amdhsa_next_free_sgpr 102
  .amdhsa_accum_offset 256
  .amdhsa_group_segment_fixed_size 0
  .amdhsa_kernarg_size 104
  .amdhsa_user_sgpr_count 2
  .amdhsa_user_sgpr_kernarg_segment_ptr 1
  .amdhsa_system_sgpr_workgroup_id_x 1
  .amdhsa_float_denorm_mode_32 3
.end_amdhsa_kernel
"""
    return hdr + pre + body + post

if __name__ == "__main__":
    class C(Cfg): pass
    for a in sys.argv[2:]:
        k, v = a.split("=")
        setattr(C, k, eval(v))
    open(sys.argv[1], "w").write(gen(C))
```

```python
import re
TRANS = ("v_exp_f32", "v_log_f32", "v_rcp_f32", "v_rsq_f32", "v_sqrt_f32", "v_sin_f32", "v_cos_f32")
def _regs(tok):
    tok = tok.strip().lstrip("-").strip("|")
    m = re.fullmatch(r"([vsa])(\d+)", tok)
    if m: return [(m.group(1), int(m.group(2)))]
    m = re.fullmatch(r"([vsa])\[(\d+):(\d+)\]", tok)
    if m: return [(m.group(1), i) for i in range(int(m.group(2)), int(m.group(3)) + 1)]
    if tok == "vcc": return [("s", 106), ("s", 107)]
    if tok == "exec": return [("s", 126), ("s", 127)]
    if tok == "m0": return [("s", 124)]
    return []
class Asm:
    def __init__(self):
        self.lines = []
        self.hist = []
        self.count = 0
    def raw(self, text):
        self.lines.append(text)
    def comment(self, text):
        self.lines.append("  ; " + text)
    def label(self, name):
        self.lines.append(name + ":")
    def nop(self, n):
        while n > 0:
            k = min(n, 16)
            self.lines.append(f"  s_nop {k-1}")
            self._age(k)
            n -= k
    def _age(self, k):
        for h in self.hist: h["age"] += k
        self.hist = [h for h in self.hist if h["age"] < 20]
    def __call__(self, text):
        t = text.split(";")[0].strip()
        mn = t.split()[0]
        rest = t[len(mn):].strip()
        ops = [o.strip() for o in rest.split(",")] if rest else []
        if ops:
            last = ops[-1].split()
        rest2 = re.sub(r"quad_perm:\[[^\]]*\]", "quad_perm", rest)
        rest2 = re.sub(r"op_sel(_hi)?:\[[^\]]*\]", "opsel", rest2)
        ops = [o.strip() for o in rest2.split(",")] if rest2 else []
        opregs = []
        for i, o in enumerate(ops):
            first = o.split()[0] if o.split() else ""
            opregs.append(_regs(first))
        valu = mn.startswith("v_")
        dpp = ("row_" in t) or ("quad_perm" in t) or mn.endswith("_dpp")
        base = mn.replace("_dpp", "").replace("_e32", "").replace("_e64", "")
        trans = base in TRANS
        dot = base.startswith("v_dot")
        perml = base.startswith("v_permlane")
        rdl = base.startswith("v_readlane") or base.startswith("v_readfirstlane")
        vmem = mn.startswith("buffer_") or mn.startswith("global_") or mn.startswith("flat_")
        ds = mn.startswith("ds_")
        store = vmem and ("store" in mn or "atomic" in mn)
        mfma = base.startswith("v_mfma")
        dst, src = [], []
        if valu:
            if base.startswith("v_cmp"):
                dst = opregs[0]; src = sum(opregs[1:], [])
            elif perml:
                dst = opregs[0] + opregs[1]; src = opregs[0] + opregs[1]
            else:
                dst = opregs[0]; src = sum(opregs[1:], [])
                if base in ("v_fmac_f32", "v_dot2c_f32_bf16") : src = src + dst
                if base.startswith("v_add_co") or base.startswith("v_addc_co"):
                    dst = opregs[0] + opregs[1]; src = sum(opregs[2:], [])
                if base == "v_cndmask_b32" and len(ops) == 3:
                    src = src + [("s",106),("s",107)]
                if base == "v_cndmask_b32" and len(ops) == 4 and False:
                    pass
        elif vmem or ds:
            src = sum(opregs, [])
        else:
            src = sum(opregs[1:], []) if opregs else []
            dst = opregs[0] if opregs else []
        need = 0
        for h in self.hist:
            hd = set(h["dst"])
            if not hd and not h.get("stdata"): continue
            req = 0
            vsrc = [r for r in src if r[0] in "va"]
            ssrc = [r for r in src if r[0] == "s"]
            if h.get("mfma"):
                touched = any(r in hd for r in vsrc) or any(r in hd for r in dst)
                if touched:
                    if mfma:
                        ab = sum(opregs[1:3], [])
                        if any(r in hd for r in ab): req = max(req, 8)
                        elif set(opregs[3]) != hd and any(r in hd for r in opregs[3]): req = max(req, 6)
                    else:
                        req = max(req, 8)
            if h["valu"] and not h.get("mfma") and mfma and any(r in hd for r in vsrc): req = max(req, 2)
            if h.get("mfma") and valu and not mfma and any(r in h.get("srcc", []) for r in dst): req = max(req, 3)
            if h["valu"] and not h.get("mfma"):
                hv = hd
                if valu and dpp and any(r in hv for r in vsrc): req = max(req, 2)
                if valu and perml and any(r in hv for r in vsrc): req = max(req, 2)
                if valu and rdl and any(r in hv for r in vsrc): req = max(req, 1)
                if h["trans"] and valu and not trans and any(r in hv for r in vsrc): req = max(req, 1)
                if h["trans"] and (vmem or ds) and any(r in hv for r in vsrc): req = max(req, 1)
                if h["dot"]:
                    touched = any(r in hv for r in vsrc) or (valu and any(r in hv for r in dst))
                    if touched:
                        same = (base == h["base"])
                        if same:
                            ab = sum(opregs[1:3], [])
                            if any(r in hv for r in ab): req = max(req, 3)
                        else:
                            req = max(req, 3)
                hs = [r for r in hv if r[0] == "s"]
                if hs:
                    if valu and any(r in hs for r in ssrc): req = max(req, 2 if not rdl else 4)
                    if vmem and any(r in hs for r in ssrc): req = max(req, 5)
                    if (not valu) and (not vmem) and (not ds) and any(r in hs for r in ssrc): req = max(req, 4)
            if h.get("stdata") and valu and any(r in h["stdata"] for r in dst): req = max(req, 2)
            if req > h["age"]:
                need = max(need, req - h["age"])
        if need: self.nop(need)
        self.lines.append("  " + text)
        self._age(1)
        ent = dict(age=0, dst=dst if (valu) else [], valu=valu, trans=trans, dot=dot, base=base)
        if mfma:
            ent["mfma"] = True
            ent["srcc"] = opregs[3] if len(opregs) > 3 else []
        if store and ("x3" in mn or "x4" in mn):
            ent["stdata"] = set(sum(opregs, []))
        if mn.startswith("s_nop"):
            k = int(t.split()[1]) & 15
            self._age(k)
        self.hist.append(ent)
        self.count += 1
    def fence(self):
        self.nop(5)
        self.hist = []
    def text(self):
        return "\n".join(self.lines) + "\n"
```

```python
import sys, math, struct
from asmlib import Asm

KN = "parallel_sum__gqa_block_cached__mixer_channel_mlp__decode_kernel"
HDR = open("parallel_sum__gqa_block_cached__mixer_channel_mlp__decode.s.ref").read().split("; Override launch")[0]

def f32(x):
    return "0x%08x" % struct.unpack("<I", struct.pack("<f", x))[0]

class Cfg:
    kflag = "nt"
    vflag = "nt"
    wflag = ""
    stamps = False
    rot = True
    L = 5
    P = 44
    Dh = 6
    Dw = 2
    Lp = None
    Kpat = None
    Vpat = None
    tailN = 0
    Ltail = 7
    exp = ''
    exp2 = ''
    dbgstamps = False
    Dw2 = None
    Dwo = None
    mfma = False
    P2 = 0
    rank = None
    coop = False
    fin = 'tag8'

class VQ:
    def __init__(self, A):
        self.q = []; self.A = A
    def issue(self, tag, text):
        self.A(text); self.q.append(tag)
        assert len(self.q) <= 63, len(self.q)
    def wait(self, tag):
        idx = [i for i, t in enumerate(self.q) if t == tag]
        if not idx: return
        i = idx[-1]
        n = len(self.q) - 1 - i
        self.A(f"s_waitcnt vmcnt({n})")
        self.q = self.q[i+1:]
    def limit(self, n):
        if len(self.q) > n:
            self.A(f"s_waitcnt vmcnt({n})")
            self.q = self.q[len(self.q)-n:] if n else []
    def drain(self):
        self.A("s_waitcnt vmcnt(0)"); self.q = []

def gen(cfg=Cfg):
    A = Asm(); e = A
    vLane = 1; vL16 = 2; vR = 3; vC = 4
    vT0, vT1, vT2, vT3, vT4, vT5 = 5, 6, 7, 8, 9, 10
    vColAddr = 11
    sW = 3; sB = 4; sH = 5; sS = 6; sT = 7
    pX, pK, pV, pWQ, pWO, pBX, pW1, pB1 = 16, 18, 20, 22, 24, 26, 28, 30
    pW2, pB2, pOUT, pDBG = 32, 34, 36, 38
    pWS = 40
    SK, SV, SA, SBq, SC, SD, SE = 44, 48, 52, 56, 60, 64, 68
    sIss = 72; sCnt = 73; sScale = 74; sL2E = 75; sTmp = 76; sTmp2 = 77; sWr = 78; sHw = 79
    SAVE = 96
    sNonce = 100; sSpin = 101
    L_QP = 0
    L_HP = 2048
    L_QB = 3072
    L_HB = 3328
    L_ML = 3456
    L_CNT = 3488
    L_OP = 3584
    L_OUT = 5632
    L_ST = 3520
    L_SC = 15872
    LDS_BYTES = L_SC + 16384 + 256
    L_PF = 32768
    if cfg.P2: LDS_BYTES = L_PF + 4*cfg.P2*1024
    else: LDS_BYTES = L_PF
    L_MLP = LDS_BYTES
    if cfg.mfma: LDS_BYTES += 10240

    def srd(dst, ptr, off, size, size_sub=None):
        if off is None:
            e(f"s_mov_b32 s{dst}, s{ptr}")
            e(f"s_and_b32 s{dst+1}, s{ptr+1}, 0xffff")
        else:
            e(f"s_add_u32 s{dst}, s{ptr}, s{off}")
            e(f"s_addc_u32 s{dst+1}, s{ptr+1}, 0")
            e(f"s_and_b32 s{dst+1}, s{dst+1}, 0xffff")
        if size_sub is None: e(f"s_mov_b32 s{dst+2}, {size}")
        else: e(f"s_sub_u32 s{dst+2}, {size}, s{size_sub}")
        e(f"s_mov_b32 s{dst+3}, 0x20000")
    def stamp(i):
        if cfg.stamps: e(f"s_memrealtime s[{80+2*i}:{81+2*i}]")
    def bc(j): return f"row_newbcast:{j} row_mask:0xf bank_mask:0xf"
    def wave_red(v, t1, op):
        e(f"{op}_dpp v{v}, v{v}, v{v} quad_perm:[1,0,3,2] row_mask:0xf bank_mask:0xf")
        e(f"{op}_dpp v{v}, v{v}, v{v} quad_perm:[2,3,0,1] row_mask:0xf bank_mask:0xf")
        e(f"{op}_dpp v{v}, v{v}, v{v} row_half_mirror row_mask:0xf bank_mask:0xf")
        e(f"{op}_dpp v{v}, v{v}, v{v} row_mirror row_mask:0xf bank_mask:0xf")
        e(f"v_mov_b32 v{t1}, v{v}")
        e(f"v_permlane16_swap_b32 v{v}, v{t1}")
        e(f"{op} v{v}, v{v}, v{t1}")
        e(f"v_mov_b32 v{t1}, v{v}")
        e(f"v_permlane32_swap_b32 v{v}, v{t1}")
        e(f"{op} v{v}, v{v}, v{t1}")
    def reduce8(a, out0, out1):
        for p in range(4): e(f"v_permlane32_swap_b32 v{a+2*p}, v{a+2*p+1}")
        for p in range(4): e(f"v_add_f32 v{a+2*p}, v{a+2*p}, v{a+2*p+1}")
        e(f"v_permlane16_swap_b32 v{a}, v{a+2}")
        e(f"v_permlane16_swap_b32 v{a+4}, v{a+6}")
        e(f"v_add_f32 v{out0}, v{a}, v{a+2}")
        e(f"v_add_f32 v{out1}, v{a+4}, v{a+6}")
    def perm_reg(dst, t):
        e(f"v_and_b32 v{dst}, 1, v{vR}")
        e(f"v_lshlrev_b32 v{dst}, 1, v{dst}")
        e(f"v_lshrrev_b32 v{t}, 1, v{vR}")
        e(f"v_or_b32 v{dst}, v{dst}, v{t}")

    e(f"s_cmp_ge_u32 s2, 256")
    e(f"s_cbranch_scc1 L_end")
    stamp(0)
    e(f"s_load_dwordx16 s[16:31], s[0:1], 0")
    e(f"s_load_dwordx8 s[32:39], s[0:1], 64")
    e(f"s_load_dwordx2 s[40:41], s[0:1], 96")
    e(f"v_and_b32 v{vLane}, 63, v0")
    e(f"v_lshrrev_b32 v{vT0}, 6, v0")
    e(f"v_readfirstlane_b32 s{sW}, v{vT0}")
    e(f"s_lshr_b32 s{sB}, s2, 5")
    e(f"s_and_b32 s{sH}, s2, 31")
    e(f"v_lshlrev_b32 v{vL16}, 4, v{vLane}")
    e(f"v_lshrrev_b32 v{vR}, 4, v{vLane}")
    e(f"v_and_b32 v{vC}, 15, v{vLane}")
    e(f"s_and_b32 s{sHw}, s{sW}, 3")
    e(f"s_mov_b32 s{sL2E}, {f32(1.4426950408889634)}")
    perm_reg(vT4, vT1)
    e(f"v_lshl_add_u32 v{vT0}, v{vC}, 3, v{vT4}")
    e(f"v_lshlrev_b32 v{vColAddr}, 2, v{vT0}")
    e(f"s_cmp_ge_u32 s{sW}, 4")
    e(f"s_cbranch_scc1 L_stream")

    vq = VQ(A)
    XR = 224
    XU = 230
    OWN = 240
    XL = [12, 14, 16]; XH = [13, 15, 17]
    YL = [18, 20, 22]; YH = [19, 21, 23]
    ACCQ = 24
    ACCH = 32
    vB1 = 36; vHL = 37; vHH = 38; vOff = 39
    MLPS = 40
    ACC2 = 50
    W = 64
    W1R = 244
    if cfg.rot:
        e(f"s_add_u32 s{sWr}, s{sHw}, s{sB}")
        e(f"s_and_b32 s{sWr}, s{sWr}, 3")
    else:
        e(f"s_mov_b32 s{sWr}, s{sHw}")
    e(f"s_and_b32 s{sS}, s{sH}, 7")
    e(f"s_lshl_b32 s{sS}, s{sS}, 2")
    e(f"s_lshr_b32 s{sT}, s{sH}, 3")
    e(f"s_add_u32 s{sS}, s{sS}, s{sT}")
    e(f"s_mul_i32 s{sTmp}, s{sWr}, 160")
    e(f"v_add_u32 v{vT0}, s{sTmp}, v{vR}")
    e(f"v_lshlrev_b32 v{vOff}, 13, v{vT0}")
    e(f"v_lshl_add_u32 v{vOff}, v{vC}, 4, v{vOff}")
    e(f"v_lshl_add_u32 v{vT1}, v{vC}, 2, v{vR}")
    e(f"v_add_u32 v{vT2}, s{sTmp}, v{vT1}")
    e(f"v_lshlrev_b32 v{vT2}, 1, v{vT2}")
    e(f"v_lshlrev_b32 v{vT3}, 2, v{vLane}")
    if cfg.fin in ('tag', 'tag8'):
        if cfg.coop: e(f"s_mov_b32 s{sTmp}, 0")
        else: e(f"s_lshl_b32 s{sTmp}, s{sB}, 8")
        e(f"s_waitcnt lgkmcnt(0)")
        e(f"s_load_dword s{sNonce}, s[{pWS}:{pWS+1}], s{sTmp}")
    e(f"v_mov_b32 v{vT5}, 0")
    e(f"ds_write_b32 v{vT5}, v{vT5} offset:{L_CNT}")
    e(f"ds_write_b32 v{vT5}, v{vT5} offset:{L_CNT+4}")
    e(f"ds_write_b32 v{vT5}, v{vT5} offset:{L_CNT+8}")
    e(f"ds_write_b32 v{vT5}, v{vT5} offset:{L_CNT+12}")
    e(f"ds_write_b32 v{vT5}, v{vT5} offset:{L_CNT+16}")
    e(f"s_waitcnt lgkmcnt(0)")
    if cfg.fin in ('tag', 'tag8'): e(f"s_add_u32 s{sNonce}, s{sNonce}, 1")
    if cfg.exp == 'noq':
        e(f"s_mul_i32 s{sTmp}, s{sB}, 1280")
        srd(SA, pX, sTmp, 1280)
        e(f"v_mov_b32 v{vT2}, 0"); e(f"v_mov_b32 v{vT3}, 0")
        e("s_barrier")
        e("s_branch L_qdone")
    if cfg.coop:
        XRc = 64; XUc = 74; OWN8 = 94; ST = 104; X8 = 120; Wq = 136; ACC8 = 160; RES8 = 74
        QGB = 1 << 20
        srd(SA, pX, None, 8*1280)
        e(f"v_lshrrev_b32 v{vT0}, 5, v{vLane}")
        e(f"s_lshl_b32 s{sTmp}, s{sHw}, 1")
        e(f"v_add_u32 v{vT0}, s{sTmp}, v{vT0}")
        e(f"v_mul_u32_u24 v{vT1}, 1280, v{vT0}")
        e(f"v_and_b32 v{vT2}, 31, v{vLane}")
        e(f"v_lshl_add_u32 v{vT3}, v{vT2}, 4, v{vT1}")
        e(f"v_lshl_add_u32 v{vT4}, v{vT2}, 3, v{vT1}")
        vq.issue("X", f"buffer_load_dwordx4 v[{XRc}:{XRc+3}], v{vT3}, s[{SA}:{SA+3}], 0 offen")
        vq.issue("X", f"buffer_load_dwordx4 v[{XRc+4}:{XRc+7}], v{vT3}, s[{SA}:{SA+3}], 0 offen offset:512")
        vq.issue("X", f"buffer_load_dwordx2 v[{XRc+8}:{XRc+9}], v{vT4}, s[{SA}:{SA+3}], 0 offen offset:1024")
        e(f"v_lshlrev_b32 v{vOff}, 3, v{vT0}")
        e(f"s_mul_i32 s{sTmp}, s{sB}, 80")
        e(f"s_mul_i32 s{sTmp2}, s{sHw}, 20")
        e(f"s_add_u32 s{sTmp}, s{sTmp}, s{sTmp2}")
        e(f"v_lshl_add_u32 v{vT1}, v{vC}, 2, v{vR}")
        e(f"v_add_u32 v{vT1}, s{sTmp}, v{vT1}")
        e(f"v_lshlrev_b32 v{vT1}, 1, v{vT1}")
        for bb in range(8):
            e(f"s_mov_b32 s{sT}, {bb*1280}")
            vq.issue("O", f"buffer_load_ushort v{OWN8+bb}, v{vT1}, s[{SA}:{SA+3}], s{sT} offen")
        e(f"s_lshl_b32 s{sT}, s{sH}, 8")
        srd(SC, pWQ, sT, 640*8192, size_sub=sT)
        e(f"v_add_u32 v{vT2}, s{sTmp}, v{vR}")
        e(f"v_lshlrev_b32 v{vT2}, 13, v{vT2}")
        e(f"v_lshl_add_u32 v{vT2}, v{vC}, 4, v{vT2}")
        for j in range(5):
            e(f"s_mov_b32 s{sT}, {j*32768}")
            vq.issue(("WQ", j), f"buffer_load_dwordx4 v[{Wq+4*j}:{Wq+4*j+3}], v{vT2}, s[{SC}:{SC+3}], s{sT} offen {cfg.wflag}")
        e(f"s_barrier")
    else:
        e(f"s_mul_i32 s{sTmp}, s{sB}, 1280")
        srd(SA, pX, sTmp, 1280)
        e(f"s_lshl_b32 s{sT}, s{sH}, 8")
        srd(SC, pWQ, sT, 640*8192, size_sub=sT)
        vq.issue("X", f"buffer_load_dwordx4 v[{XR}:{XR+3}], v{vL16}, s[{SA}:{SA+3}], 0 offen")
        vq.issue("X", f"buffer_load_dword v{XR+4}, v{vT3}, s[{SA}:{SA+3}], 0 offen offset:1024")
        for m in range(3):
            vq.issue("X", f"buffer_load_ushort v{OWN+m}, v{vT2}, s[{SA}:{SA+3}], 0 offen offset:{128*m}")
        def wq_load(j):
            e(f"s_mov_b32 s{sT}, {j*32768}")
            vq.issue(("WQ", j), f"buffer_load_dwordx4 v[{W+4*j}:{W+4*j+3}], v{vOff}, s[{SC}:{SC+3}], s{sT} offen {cfg.wflag}")
        nq = 0
        for j in range(cfg.Dh): wq_load(j); nq += 1
        e(f"s_barrier")
    def unpack_xr():
        for i in range(5):
            e(f"v_lshlrev_b32 v{XU+2*i}, 16, v{XR+i}")
            e(f"v_and_b32 v{XU+2*i+1}, 0xffff0000, v{XR+i}")
    def layernorm(norm_regs):
        s_, t1, mean, mb = vT0, vT1, vT2, vT3
        e(f"v_add_f32 v{s_}, v{XU}, v{XU+1}")
        e(f"v_add_f32 v{t1}, v{XU+2}, v{XU+3}")
        e(f"v_add_f32 v{mean}, v{XU+4}, v{XU+5}")
        e(f"v_add_f32 v{mb}, v{XU+6}, v{XU+7}")
        e(f"v_add_f32 v{s_}, v{s_}, v{t1}")
        e(f"v_add_f32 v{t1}, v{XU+8}, v{XU+9}")
        e(f"v_add_f32 v{mean}, v{mean}, v{mb}")
        e(f"v_add_f32 v{s_}, v{s_}, v{t1}")
        e(f"v_add_f32 v{s_}, v{s_}, v{mean}")
        wave_red(s_, t1, "v_add_f32")
        e(f"v_mul_f32 v{mean}, {f32(1.0/640)}, v{s_}")
        e(f"v_cvt_pk_bf16_f32 v{mb}, 0, v{mean}")
        e(f"v_sub_f32 v{t1}, v{XU}, v{mean}")
        e(f"v_mul_f32 v{s_}, v{t1}, v{t1}")
        for i in range(1, 10):
            e(f"v_sub_f32 v{t1}, v{XU+i}, v{mean}")
            e(f"v_fmac_f32 v{s_}, v{t1}, v{t1}")
        wave_red(s_, t1, "v_add_f32")
        e(f"v_mul_f32 v{s_}, {f32(1.0/640)}, v{s_}")
        e(f"v_cvt_pk_bf16_f32 v{s_}, 0, v{s_}")
        e(f"v_add_f32 v{s_}, {f32(1e-5)}, v{s_}")
        e(f"v_cvt_pk_bf16_f32 v{s_}, 0, v{s_}")
        e(f"v_sqrt_f32 v{s_}, v{s_}")
        e(f"v_cvt_pk_bf16_f32 v{s_}, 0, v{s_}")
        e(f"v_rcp_f32 v{s_}, v{s_}")
        for r in norm_regs: e(f"v_sub_f32 v{r}, v{r}, v{mb}")
        for r in norm_regs: e(f"v_cvt_pk_bf16_f32 v{r}, 0, v{r}")
        for r in norm_regs: e(f"v_mul_f32 v{r}, v{r}, v{s_}")
        for r in norm_regs: e(f"v_cvt_pk_bf16_f32 v{r}, 0, v{r}")
    def lds_arrive_and_spin(off, n, name):
        e(f"v_mov_b32 v{vT0}, 0")
        e(f"v_mov_b32 v{vT1}, 1")
        e(f"s_waitcnt lgkmcnt(0)")
        e(f"s_mov_b64 exec, 1")
        e(f"ds_add_u32 v{vT0}, v{vT1} offset:{off}")
        e(f"s_mov_b64 exec, -1")
        A.label(f"L_spin_{name}"); A.hist = []
        e(f"ds_read_b32 v{vT1}, v{vT0} offset:{off}")
        e(f"s_waitcnt lgkmcnt(0)")
        e(f"v_readfirstlane_b32 s{sT}, v{vT1}")
        e(f"s_cmp_lt_u32 s{sT}, {n}")
        e(f"s_cbranch_scc1 L_spin_{name}")
        A.hist = []
    if cfg.coop:
        vq.wait("X")
        for i in range(10):
            e(f"v_lshlrev_b32 v{XUc+2*i}, 16, v{XRc+i}")
            e(f"v_and_b32 v{XUc+2*i+1}, 0xffff0000, v{XRc+i}")
        def red32(v, t1):
            e(f"v_add_f32_dpp v{v}, v{v}, v{v} quad_perm:[1,0,3,2] row_mask:0xf bank_mask:0xf")
            e(f"v_add_f32_dpp v{v}, v{v}, v{v} quad_perm:[2,3,0,1] row_mask:0xf bank_mask:0xf")
            e(f"v_add_f32_dpp v{v}, v{v}, v{v} row_half_mirror row_mask:0xf bank_mask:0xf")
            e(f"v_add_f32_dpp v{v}, v{v}, v{v} row_mirror row_mask:0xf bank_mask:0xf")
            e(f"v_mov_b32 v{t1}, v{v}")
            e(f"v_permlane16_swap_b32 v{v}, v{t1}")
            e(f"v_add_f32 v{v}, v{v}, v{t1}")
        a0, a1, a2, a3 = vT0, vT1, vT2, vT3
        for k, a_ in enumerate((a0, a1, a2, a3)):
            e(f"v_add_f32 v{a_}, v{XUc+k}, v{XUc+4+k}")
        for base in (8, 12, 16):
            for k, a_ in enumerate((a0, a1, a2, a3)):
                e(f"v_add_f32 v{a_}, v{a_}, v{XUc+base+k}")
        e(f"v_add_f32 v{a0}, v{a0}, v{a1}")
        e(f"v_add_f32 v{a2}, v{a2}, v{a3}")
        e(f"v_add_f32 v{a0}, v{a0}, v{a2}")
        red32(a0, a1)
        e(f"v_mul_f32 v{vT4}, {f32(1.0/640)}, v{a0}")
        e(f"v_cvt_pk_bf16_f32 v{ST}, 0, v{vT4}")
        for i in range(20): e(f"v_sub_f32 v{XUc+i}, v{XUc+i}, v{vT4}")
        for k, a_ in enumerate((a0, a1, a2, a3)):
            e(f"v_mul_f32 v{a_}, v{XUc+k}, v{XUc+k}")
        for base in (4, 8, 12, 16):
            for k, a_ in enumerate((a0, a1, a2, a3)):
                e(f"v_fmac_f32 v{a_}, v{XUc+base+k}, v{XUc+base+k}")
        e(f"v_add_f32 v{a0}, v{a0}, v{a1}")
        e(f"v_add_f32 v{a2}, v{a2}, v{a3}")
        e(f"v_add_f32 v{a0}, v{a0}, v{a2}")
        red32(a0, a1)
        e(f"v_mul_f32 v{a0}, {f32(1.0/640)}, v{a0}")
        e(f"v_cvt_pk_bf16_f32 v{a0}, 0, v{a0}")
        e(f"v_add_f32 v{a0}, {f32(1e-5)}, v{a0}")
        e(f"v_cvt_pk_bf16_f32 v{a0}, 0, v{a0}")
        e(f"v_sqrt_f32 v{a0}, v{a0}")
        e(f"v_cvt_pk_bf16_f32 v{a0}, 0, v{a0}")
        e(f"v_rcp_f32 v{ST+1}, v{a0}")
        e(f"ds_write_b64 v{vOff}, v[{ST}:{ST+1}] offset:{L_ST}")
        lds_arrive_and_spin(L_CNT, 4, "st")
        e(f"v_mov_b32 v{vT0}, 0")
        for i in range(4):
            e(f"ds_read_b128 v[{ST+4*i}:{ST+4*i+3}], v{vT0} offset:{L_ST+16*i}")
        for i in range(64): e(f"v_mov_b32 v{ACC8+i}, 0")
        vq.wait("O")
        for bb in range(8): e(f"v_lshlrev_b32 v{OWN8+bb}, 16, v{OWN8+bb}")
        e(f"s_waitcnt lgkmcnt(0)")
        for bb in range(8): e(f"v_sub_f32 v{OWN8+bb}, v{OWN8+bb}, v{ST+2*bb}")
        for bb in range(8): e(f"v_cvt_pk_bf16_f32 v{OWN8+bb}, 0, v{OWN8+bb}")
        for bb in range(8): e(f"v_mul_f32 v{OWN8+bb}, v{OWN8+bb}, v{ST+2*bb+1}")
        for bb in range(8): e(f"v_cvt_pk_bf16_f32 v{X8+2*bb+1}, 0, v{OWN8+bb}")
        for bb in range(8): e(f"v_lshrrev_b32 v{X8+2*bb}, 16, v{X8+2*bb+1}")
        stamp(1)
        for j in range(5):
            vq.wait(("WQ", j))
            for bb in range(8):
                for d in range(4):
                    e(f"v_dot2c_f32_bf16_dpp v{ACC8+8*bb+2*d}, v{X8+2*bb}, v{Wq+4*j+d} {bc(j)}")
                    e(f"v_dot2c_f32_bf16_dpp v{ACC8+8*bb+2*d+1}, v{X8+2*bb+1}, v{Wq+4*j+d} {bc(j)}")
        e(f"s_lshl_b32 s{sT}, s{sHw}, 12")
        e(f"v_add_u32 v{vT5}, s{sT}, v{vColAddr}")
        e(f"v_add_u32 v{vT5}, {L_SC}, v{vT5}")
        for bb in range(8):
            reduce8(ACC8 + 8*bb, RES8 + 2*bb, RES8 + 2*bb + 1)
            e(f"ds_write_b32 v{vT5}, v{RES8+2*bb} offset:{bb*512}")
            e(f"ds_write_b32 v{vT5}, v{RES8+2*bb+1} offset:{bb*512+16}")
        e(f"s_mul_i32 s{sTmp}, s{sB}, 1280")
        srd(SA, pX, sTmp, 1280)
        e(f"s_mul_i32 s{sTmp}, s{sWr}, 160")
        e(f"v_lshl_add_u32 v{vT1}, v{vC}, 2, v{vR}")
        e(f"v_add_u32 v{vT2}, s{sTmp}, v{vT1}")
        e(f"v_lshlrev_b32 v{vT2}, 1, v{vT2}")
        e(f"v_lshlrev_b32 v{vT3}, 2, v{vLane}")
        lds_arrive_and_spin(L_CNT + 12, 4, "pq")
        e(f"s_lshl_b32 s{sT}, s{sHw}, 10")
        e(f"v_lshlrev_b32 v{vT0}, 3, v{vLane}")
        e(f"v_add_u32 v{vT4}, s{sT}, v{vT0}")
        e(f"v_add_u32 v{vT4}, {L_SC}, v{vT4}")
        PUB = 104
        for k in range(2):
            for w in range(4):
                e(f"ds_read_b64 v[{PUB+8*k+2*w}:{PUB+8*k+2*w+1}], v{vT4} offset:{w*4096 + k*512}")
        e(f"s_lshl_b32 s{sT}, s{sH}, 15")
        e(f"s_add_u32 s{sT}, s{sT}, {QGB}")
        srd(SE, pWS, sT, 32768)
        e(f"s_lshl_b32 s{sT}, s{sHw}, 13")
        e(f"s_lshl_b32 s{sTmp}, s{sB}, 9")
        e(f"s_add_u32 s{sT}, s{sT}, s{sTmp}")
        e(f"s_add_u32 s{sTmp}, s{sT}, 4096")
        e(f"s_and_b32 s{sTmp2}, s{sNonce}, 0xff")
        e(f"v_mov_b32 v{vT1}, 0xffffff00")
        e(f"v_mov_b32 v{vT5}, s{sTmp2}")
        e(f"s_waitcnt lgkmcnt(0)")
        for k in range(2):
            p = PUB + 8*k
            e(f"v_pk_add_f32 v[{p}:{p+1}], v[{p}:{p+1}], v[{p+2}:{p+3}]")
            e(f"v_pk_add_f32 v[{p+4}:{p+5}], v[{p+4}:{p+5}], v[{p+6}:{p+7}]")
        for k in range(2):
            p = PUB + 8*k
            e(f"v_pk_add_f32 v[{p}:{p+1}], v[{p}:{p+1}], v[{p+4}:{p+5}]")
        for k in range(2):
            p = PUB + 8*k
            e(f"v_add_u32 v{p}, 0x80, v{p}")
            e(f"v_add_u32 v{p+1}, 0x80, v{p+1}")
        for k in range(2):
            p = PUB + 8*k
            e(f"v_and_or_b32 v{p}, v{p}, v{vT1}, v{vT5}")
            e(f"v_and_or_b32 v{p+1}, v{p+1}, v{vT1}, v{vT5}")
        vq.issue("PUB", f"buffer_store_dwordx2 v[{PUB}:{PUB+1}], v{vT0}, s[{SE}:{SE+3}], s{sT} offen sc0 sc1")
        vq.issue("PUB", f"buffer_store_dwordx2 v[{PUB+8}:{PUB+9}], v{vT0}, s[{SE}:{SE+3}], s{sTmp} offen sc0 sc1")
        if cfg.exp2 == 'qpoll': stamp(3)
        e(f"s_cmp_lg_u32 s{sHw}, 0")
        e(f"s_cbranch_scc1 L_qdone")
        e(f"s_lshl_b32 s{sTmp}, s{sB}, 12")
        e(f"s_mov_b32 s{sSpin}, 0")
        G = 120; X = 136
        A.label("L_qpoll"); A.hist = []
        for i in range(4):
            e(f"buffer_load_dwordx4 v[{G+4*i}:{G+4*i+3}], v{vL16}, s[{SE}:{SE+3}], s{sTmp} offen offset:{i*1024} sc0 sc1")
        e(f"s_add_u32 s{sSpin}, s{sSpin}, 1")
        e(f"s_waitcnt vmcnt(0)")
        for k in range(16): e(f"v_xor_b32 v{X+k}, v{vT5}, v{G+k}")
        for k in range(0, 15, 3): e(f"v_or3_b32 v{X+k}, v{X+k}, v{X+k+1}, v{X+k+2}")
        e(f"v_or3_b32 v{X}, v{X}, v{X+3}, v{X+6}")
        e(f"v_or3_b32 v{X+9}, v{X+9}, v{X+12}, v{X+15}")
        e(f"v_or_b32 v{X}, v{X}, v{X+9}")
        e(f"v_and_b32 v{X}, 0xff, v{X}")
        e(f"v_cmp_ne_u32 vcc, 0, v{X}")
        e(f"s_cmp_gt_u32 s{sSpin}, 200000")
        e(f"s_cbranch_scc1 L_qgive")
        e(f"s_cmp_eq_u64 vcc, 0")
        e(f"s_cbranch_scc0 L_qpoll")
        A.label("L_qgive"); A.hist = []
        if cfg.exp2 == 'qpoll':
            stamp(4)
            e(f"s_mov_b32 s90, s{sSpin}")
            e(f"s_mov_b32 s91, 0")
        for k in range(16): e(f"v_and_b32 v{G+k}, 0xffffff00, v{G+k}")
        for k in range(4):
            e(f"v_add_f32 v{G+k}, v{G+k}, v{G+4+k}")
            e(f"v_add_f32 v{G+8+k}, v{G+8+k}, v{G+12+k}")
        for k in range(4): e(f"v_add_f32 v{G+k}, v{G+k}, v{G+8+k}")
        for k in range(4): e(f"v_mov_b32 v{G+4+k}, v{G+k}")
        for k in range(4): e(f"v_permlane32_swap_b32 v{G+k}, v{G+4+k}")
        for k in range(4): e(f"v_add_f32 v{G+k}, v{G+k}, v{G+4+k}")
        e(f"v_cvt_pk_bf16_f32 v{G}, v{G}, v{G+1}")
        e(f"v_cvt_pk_bf16_f32 v{G+1}, v{G+2}, v{G+3}")
        e(f"v_and_b32 v{vT0}, 31, v{vLane}")
        e(f"v_lshlrev_b32 v{vT0}, 3, v{vT0}")
        e(f"ds_write_b64 v{vT0}, v[{G}:{G+1}] offset:{L_QB}")
        e(f"s_waitcnt lgkmcnt(0)")
        A.label("L_qdone"); A.hist = []
        vq.q = []
    else:
        vq.wait("X")
        unpack_xr()
        for m in range(3): e(f"v_lshlrev_b32 v{OWN+m}, 16, v{OWN+m}")
        layernorm([XU+i for i in range(10)] + [OWN+m for m in range(3)])
        for m in range(3):
            e(f"v_mov_b32 v{XH[m]}, v{OWN+m}")
            e(f"v_lshrrev_b32 v{XL[m]}, 16, v{OWN+m}")
        for i in range(8): e(f"v_mov_b32 v{ACCQ+i}, 0")
        stamp(1)
        for j in range(40):
            vq.wait(("WQ", j))
            if nq < 40: wq_load(nq); nq += 1
            m, jj = divmod(j, 16)
            for d in range(4):
                e(f"v_dot2c_f32_bf16_dpp v{ACCQ+2*d}, v{XL[m]}, v{W+4*j+d} {bc(jj)}")
                e(f"v_dot2c_f32_bf16_dpp v{ACCQ+2*d+1}, v{XH[m]}, v{W+4*j+d} {bc(jj)}")
        reduce8(ACCQ, vT2, vT3)
        e(f"s_lshl_b32 s{sT}, s{sHw}, 9")
        e(f"v_add_u32 v{vT0}, s{sT}, v{vColAddr}")
        e(f"ds_write2_b32 v{vT0}, v{vT2}, v{vT3} offset0:{L_QP//4} offset1:{L_QP//4+4}")
        e(f"v_mov_b32 v{vT0}, 0")
        e(f"v_mov_b32 v{vT1}, 1")
        e(f"s_waitcnt lgkmcnt(0)")
        e(f"s_mov_b64 exec, 1")
        e(f"ds_add_rtn_u32 v{vT2}, v{vT0}, v{vT1} offset:{L_CNT}")
        e(f"s_waitcnt lgkmcnt(0)")
        e(f"v_readfirstlane_b32 s{sT}, v{vT2}")
        e(f"s_mov_b64 exec, -1")
        e(f"s_cmp_lg_u32 s{sT}, 3")
        e(f"s_cbranch_scc1 L_qdone")
        e(f"v_lshlrev_b32 v{vT0}, 3, v{vLane}")
        for w in range(4):
            e(f"ds_read_b64 v[{XU+2*w}:{XU+2*w+1}], v{vT0} offset:{L_QP + w*512}")
        e(f"s_waitcnt lgkmcnt(0)")
        e(f"v_pk_add_f32 v[{XU}:{XU+1}], v[{XU}:{XU+1}], v[{XU+2}:{XU+3}]")
        e(f"v_pk_add_f32 v[{XU+4}:{XU+5}], v[{XU+4}:{XU+5}], v[{XU+6}:{XU+7}]")
        e(f"v_pk_add_f32 v[{XU}:{XU+1}], v[{XU}:{XU+1}], v[{XU+4}:{XU+5}]")
        e(f"v_cvt_pk_bf16_f32 v{XU}, v{XU}, v{XU+1}")
        e(f"v_lshlrev_b32 v{vT0}, 2, v{vLane}")
        e(f"ds_write_b32 v{vT0}, v{XU} offset:{L_QB}")
        e(f"s_waitcnt lgkmcnt(0)")
        A.label("L_qdone"); A.hist = []
    e(f"s_barrier")
    stamp(2)
    if cfg.coop:
        vq.issue("X2", f"buffer_load_dwordx4 v[{XR}:{XR+3}], v{vL16}, s[{SA}:{SA+3}], 0 offen")
        vq.issue("X2", f"buffer_load_dword v{XR+4}, v{vT3}, s[{SA}:{SA+3}], 0 offen offset:1024")
        for m in range(3):
            vq.issue("X2", f"buffer_load_ushort v{OWN+m}, v{vT2}, s[{SA}:{SA+3}], 0 offen offset:{128*m}")
        vq.wait("X2")
        unpack_xr()
        for m in range(3): e(f"v_lshlrev_b32 v{OWN+m}, 16, v{OWN+m}")
        layernorm([XU+i for i in range(10)] + [OWN+m for m in range(3)])
        layernorm([OWN+m for m in range(3)])
    else:
        unpack_xr()
        layernorm([XU+i for i in range(10)])
        for m in range(3): e(f"v_mov_b32 v{OWN+m}, v{XH[m]}")
        layernorm([OWN+m for m in range(3)])
    for m in range(3):
        e(f"v_mov_b32 v{YH[m]}, v{OWN+m}")
        e(f"v_lshrrev_b32 v{YL[m]}, 16, v{OWN+m}")
    for i in range(4): e(f"v_mov_b32 v{ACCH+i}, 0")
    e(f"s_mul_i32 s{sTmp2}, s{sS}, {0 if cfg.exp == 'hot' else 108}")
    srd(SD, pW1, sTmp2, 640*3456, size_sub=sTmp2)
    srd(SBq, pB1, sTmp2, 3456, size_sub=sTmp2)
    e(f"s_mul_i32 s{sTmp}, s{sWr}, 160")
    e(f"v_add_u32 v{vT0}, s{sTmp}, v{vR}")
    e(f"s_mov_b32 s{sT}, 3456")
    e(f"v_mul_lo_u32 v{vOff}, v{vT0}, s{sT}")
    e(f"v_lshl_add_u32 v{vOff}, v{vC}, 3, v{vOff}")
    e(f"v_lshlrev_b32 v{vT4}, 1, v{vLane}")
    vq.issue("B1", f"buffer_load_ushort v{vB1}, v{vT4}, s[{SBq}:{SBq+3}], 0 offen")
    NS1 = 6
    def w1_load(j):
        if cfg.exp == 'skip': return
        e(f"s_mov_b32 s{sT}, {j*13824}")
        r = W1R + 2*(j % NS1)
        vq.issue(("W1", j), f"buffer_load_dwordx2 v[{r}:{r+1}], v{vOff}, s[{SD}:{SD+3}], s{sT} offen {cfg.wflag}")
    d1 = min(2*cfg.Dw, NS1 - 1)
    n1 = 0
    for j in range(d1): w1_load(j); n1 += 1
    for j in range(40):
        vq.wait(("W1", j))
        if n1 < 40: w1_load(n1); n1 += 1
        m, jj = divmod(j, 16)
        r = W1R + 2*(j % NS1)
        for d in range(2):
            e(f"v_dot2c_f32_bf16_dpp v{ACCH+2*d}, v{YL[m]}, v{r+d} {bc(jj)}")
            e(f"v_dot2c_f32_bf16_dpp v{ACCH+2*d+1}, v{YH[m]}, v{r+d} {bc(jj)}")
    e(f"s_mul_i32 s{sT}, s{sS}, {0 if cfg.exp == 'hot' else 54*1280}")
    srd(SE, pW2, sT, 1728*1280, size_sub=sT)
    e(f"s_mul_i32 s{sTmp}, s{sHw}, 14")
    e(f"v_add_u32 v{vT0}, s{sTmp}, v{vR}")
    e(f"s_mov_b32 s{sT}, 1280")
    e(f"v_mul_lo_u32 v{vOff}, v{vT0}, s{sT}")
    e(f"v_lshl_add_u32 v{vOff}, v{vC}, 4, v{vOff}")
    for blk in range(5):
        for g in range(4):
            n = blk*4 + g
            if cfg.exp == 'skip': continue
            vq.limit((cfg.Dw2 or cfg.Dw) - 1)
            e(f"s_mov_b32 s{sT}, {g*5120}")
            vq.issue(("W2", blk), f"buffer_load_dwordx4 v[{W+4*n}:{W+4*n+3}], v{vOff}, s[{SE}:{SE+3}], s{sT} offen offset:{blk*256} {cfg.wflag}")
    e(f"v_permlane32_swap_b32 v{ACCH}, v{ACCH+1}")
    e(f"v_permlane32_swap_b32 v{ACCH+2}, v{ACCH+3}")
    e(f"v_add_f32 v{ACCH}, v{ACCH}, v{ACCH+1}")
    e(f"v_add_f32 v{ACCH+2}, v{ACCH+2}, v{ACCH+3}")
    e(f"v_permlane16_swap_b32 v{ACCH}, v{ACCH+2}")
    e(f"v_add_f32 v{ACCH}, v{ACCH}, v{ACCH+2}")
    perm_reg(vT4, vT1)
    e(f"v_lshl_add_u32 v{vT0}, v{vC}, 2, v{vT4}")
    e(f"v_lshlrev_b32 v{vT0}, 2, v{vT0}")
    e(f"s_lshl_b32 s{sT}, s{sHw}, 8")
    e(f"v_add_u32 v{vT0}, s{sT}, v{vT0}")
    e(f"ds_write_b32 v{vT0}, v{ACCH} offset:{L_HP}")
    e(f"v_mov_b32 v{vT0}, 0")
    e(f"v_mov_b32 v{vT1}, 1")
    e(f"s_waitcnt lgkmcnt(0)")
    e(f"s_mov_b64 exec, 1")
    e(f"ds_add_rtn_u32 v{vT2}, v{vT0}, v{vT1} offset:{L_CNT+4}")
    e(f"s_waitcnt lgkmcnt(0)")
    e(f"v_readfirstlane_b32 s{sT}, v{vT2}")
    e(f"s_mov_b64 exec, -1")
    vq.wait("B1")
    e(f"s_cmp_lg_u32 s{sT}, 3")
    e(f"s_cbranch_scc1 L_hwait")
    T = 230
    e(f"v_lshlrev_b32 v{vT0}, 2, v{vLane}")
    for w in range(4):
        e(f"ds_read_b32 v{T+w}, v{vT0} offset:{L_HP + w*256}")
    e(f"s_waitcnt lgkmcnt(0)")
    e(f"v_add_f32 v{T}, v{T}, v{T+1}")
    e(f"v_add_f32 v{T+2}, v{T+2}, v{T+3}")
    e(f"v_add_f32 v{T}, v{T}, v{T+2}")
    x_ = T
    e(f"v_cvt_pk_bf16_f32 v{x_}, 0, v{x_}")
    e(f"v_lshlrev_b32 v{vB1}, 16, v{vB1}")
    e(f"v_add_f32 v{x_}, v{x_}, v{vB1}")
    e(f"v_cvt_pk_bf16_f32 v{x_}, 0, v{x_}")
    e(f"v_mul_f32 v{vT1}, v{x_}, v{x_}")
    e(f"v_mul_f32 v{vT1}, v{vT1}, v{x_}")
    e(f"v_mov_b32 v{vT2}, {f32(0.044715)}")
    e(f"v_fma_f32 v{vT1}, v{vT1}, v{vT2}, v{x_}")
    e(f"v_mul_f32 v{vT1}, {f32(-2.0*math.sqrt(2.0/math.pi)*1.4426950408889634)}, v{vT1}")
    e(f"v_exp_f32 v{vT1}, v{vT1}")
    e(f"v_add_f32 v{vT1}, 1.0, v{vT1}")
    e(f"v_rcp_f32 v{vT1}, v{vT1}")
    e(f"v_mul_f32 v{x_}, v{x_}, v{vT1}")
    e(f"v_cvt_pk_bf16_f32 v{x_}, v{x_}, 0")
    e(f"v_cmp_gt_u32 vcc, 54, v{vLane}")
    e(f"v_cndmask_b32 v{x_}, 0, v{x_}, vcc")
    e(f"v_lshlrev_b32 v{vT0}, 1, v{vLane}")
    e(f"ds_write_b16 v{vT0}, v{x_} offset:{L_HB}")
    e(f"v_mov_b32 v{vT0}, 0")
    e(f"v_mov_b32 v{vT1}, 1")
    e(f"s_waitcnt lgkmcnt(0)")
    e(f"ds_write_b32 v{vT0}, v{vT1} offset:{L_CNT+8}")
    e(f"s_waitcnt lgkmcnt(0)")
    A.label("L_hwait"); A.hist = []
    e(f"v_mov_b32 v{vT0}, 0")
    A.label("L_hspin")
    e(f"ds_read_b32 v{vT1}, v{vT0} offset:{L_CNT+8}")
    e(f"s_waitcnt lgkmcnt(0)")
    e(f"v_readfirstlane_b32 s{sT}, v{vT1}")
    e(f"s_cmp_eq_u32 s{sT}, 0")
    e(f"s_cbranch_scc0 L_hgo")
    e(f"s_sleep 2")
    e(f"s_branch L_hspin")
    A.label("L_hgo"); A.hist = []
    e(f"s_mul_i32 s{sTmp}, s{sHw}, 14")
    e(f"v_lshl_add_u32 v{vT1}, v{vC}, 2, v{vR}")
    e(f"v_add_u32 v{vT2}, s{sTmp}, v{vT1}")
    e(f"v_and_b32 v{vT2}, 63, v{vT2}")
    e(f"v_lshlrev_b32 v{vT2}, 1, v{vT2}")
    e(f"ds_read_u16 v{vHL}, v{vT2} offset:{L_HB}")
    e(f"v_cmp_gt_u32 vcc, 14, v{vT1}")
    e(f"s_waitcnt lgkmcnt(0)")
    e(f"v_cndmask_b32 v{vHL}, 0, v{vHL}, vcc")
    e(f"v_lshlrev_b32 v{vHH}, 16, v{vHL}")
    for blk in range(5):
        for i in range(8): e(f"v_mov_b32 v{ACC2+i}, 0")
        vq.wait(("W2", blk))
        for g in range(4):
            r = W + 4*(blk*4 + g)
            for d in range(4):
                e(f"v_dot2c_f32_bf16_dpp v{ACC2+2*d}, v{vHL}, v{r+d} {bc(g)}")
                e(f"v_dot2c_f32_bf16_dpp v{ACC2+2*d+1}, v{vHH}, v{r+d} {bc(g)}")
        reduce8(ACC2, MLPS + 2*blk, MLPS + 2*blk + 1)
    if cfg.mfma:
        e(f"s_mul_i32 s{sT}, s{sHw}, 2560")
        e(f"v_add_u32 v{vT0}, s{sT}, v{vColAddr}")
        e(f"v_add_u32 v{vT0}, {L_MLP}, v{vT0}")
        for blk in range(5):
            e(f"ds_write_b32 v{vT0}, v{MLPS+2*blk} offset:{blk*512}")
            e(f"ds_write_b32 v{vT0}, v{MLPS+2*blk+1} offset:{blk*512+16}")
        STG = 224
        e(f"s_mul_i32 s{sT}, s{sH}, {128*1280}")
        srd(SC, pWO, sT, 4096*1280, size_sub=sT)
        e(f"s_lshl_b32 s{sTmp}, s{sHw}, 5")
        e(f"v_lshlrev_b32 v{vT0}, 3, v{vR}")
        e(f"v_add_u32 v{vT0}, s{sTmp}, v{vT0}")
        e(f"s_mov_b32 s{sT}, 1280")
        e(f"v_mul_lo_u32 v{vOff}, v{vT0}, s{sT}")
        e(f"v_lshl_add_u32 v{vOff}, v{vC}, 4, v{vOff}")
        e(f"s_mov_b32 s9, 0x05040100")
        e(f"s_mov_b32 s10, 0x07060302")
        for blk in range(5):
            for ee_ in range(8):
                vq.limit((cfg.Dwo or cfg.Dw) - 1)
                e(f"s_mov_b32 s{sT}, {ee_*1280}")
                vq.issue(("WO", blk), f"buffer_load_dwordx4 v[{STG+4*ee_}:{STG+4*ee_+3}], v{vOff}, s[{SC}:{SC+3}], s{sT} offen offset:{blk*256} {cfg.wflag}")
            vq.wait(("WO", blk))
            for d in range(4):
                for dd in range(4):
                    lo = STG + 4*(2*dd) + d; hi = STG + 4*(2*dd+1) + d
                    e(f"v_perm_b32 v{W + 32*blk + 4*(2*d) + dd}, v{hi}, v{lo}, s9")
                    e(f"v_perm_b32 v{W + 32*blk + 4*(2*d+1) + dd}, v{hi}, v{lo}, s10")
    else:
        e(f"s_mul_i32 s{sT}, s{sH}, {0 if cfg.exp == 'hot' else 128*1280}")
        srd(SC, pWO, sT, 4096*1280, size_sub=sT)
        e(f"s_lshl_b32 s{sTmp}, s{sHw}, 5")
        e(f"v_add_u32 v{vT0}, s{sTmp}, v{vR}")
        e(f"s_mov_b32 s{sT}, 1280")
        e(f"v_mul_lo_u32 v{vOff}, v{vT0}, s{sT}")
        e(f"v_lshl_add_u32 v{vOff}, v{vC}, 4, v{vOff}")
        for g in range(8):
            for blk in range(5):
                n = g*5 + blk
                if cfg.exp == 'skip': continue
                vq.limit((cfg.Dwo or cfg.Dw) - 1)
                e(f"s_mov_b32 s{sT}, {g*5120}")
                vq.issue(("WO", n), f"buffer_load_dwordx4 v[{W+4*n}:{W+4*n+3}], v{vOff}, s[{SC}:{SC+3}], s{sT} offen offset:{blk*256} {cfg.wflag}")
    vXB = 62
    vXB2 = 58
    if cfg.fin == 'tag8':
        e(f"s_mul_i32 s{sT}, s{sB}, 1280")
        e(f"s_mul_i32 s{sTmp}, s{sH}, 40")
        e(f"s_add_u32 s{sT}, s{sT}, s{sTmp}")
        srd(SBq, pX, sT, 40)
        srd(SD, pB2, sTmp, 40)
        e(f"v_and_b32 v{vT0}, 7, v{vLane}")
        e(f"v_lshlrev_b32 v{vT0}, 3, v{vT0}")
        vq.issue("XB", f"buffer_load_dwordx2 v[{vXB2}:{vXB2+1}], v{vT0}, s[{SBq}:{SBq+3}], 0 offen")
        vq.issue("XB", f"buffer_load_dwordx2 v[{vXB2+2}:{vXB2+3}], v{vT0}, s[{SD}:{SD+3}], 0 offen")
    if cfg.fin == 'tag':
        e(f"s_mul_i32 s{sT}, s{sB}, 1280")
        e(f"s_mul_i32 s{sTmp}, s{sH}, 40")
        e(f"s_add_u32 s{sT}, s{sT}, s{sTmp}")
        srd(SBq, pX, sT, 40)
        srd(SD, pB2, sTmp, 40)
        e(f"v_lshlrev_b32 v{vT0}, 2, v{vC}")
        vq.issue("XB", f"buffer_load_dword v{vXB}, v{vT0}, s[{SBq}:{SBq+3}], 0 offen")
        vq.issue("XB", f"buffer_load_dword v{vXB+1}, v{vT0}, s[{SD}:{SD+3}], 0 offen")
    if cfg.mfma:
        ML = 12; OV = 20; AB = 24; DD = 32; OPX = 224
        vMn, vL = 52, 53
        e(f"s_lshl_b32 s{sT}, s{sHw}, 5")
        e(f"v_lshlrev_b32 v{vT1}, 3, v{vR}")
        e(f"v_add_u32 v{vT1}, s{sT}, v{vT1}")
        e(f"v_lshlrev_b32 v{vT1}, 2, v{vT1}")
        e(f"v_mov_b32 v{vT0}, 0")
        e(f"s_mul_i32 s{sT}, s{sHw}, 2560")
        e(f"v_lshlrev_b32 v{vT5}, 5, v{vC}")
        e(f"v_lshl_add_u32 v{vT5}, v{vR}, 4, v{vT5}")
        e(f"v_add_u32 v{vT5}, s{sT}, v{vT5}")
        e(f"v_add_u32 v{vT5}, {L_OUT}, v{vT5}")
        vq.drain()
        e(f"s_waitcnt lgkmcnt(0)")
        if cfg.exp2 != 'qpoll': stamp(3)
        e(f"s_barrier")
        if cfg.exp2 != 'qpoll': stamp(4)
        e(f"ds_read_b128 v[{ML}:{ML+3}], v{vT0} offset:{L_ML}")
        e(f"ds_read_b128 v[{ML+4}:{ML+7}], v{vT0} offset:{L_ML+16}")
        for w in range(4):
            e(f"ds_read_b128 v[{OPX+8*w}:{OPX+8*w+3}], v{vT1} offset:{L_OP + w*512}")
            e(f"ds_read_b128 v[{OPX+8*w+4}:{OPX+8*w+7}], v{vT1} offset:{L_OP + w*512 + 16}")
        e(f"s_waitcnt lgkmcnt(8)")
        e(f"v_max3_f32 v{vMn}, v{ML}, v{ML+2}, v{ML+4}")
        e(f"v_max_f32 v{vMn}, v{vMn}, v{ML+6}")
        for w in range(4): e(f"v_sub_f32 v{ML+2*w}, v{ML+2*w}, v{vMn}")
        for w in range(4): e(f"v_mul_f32 v{ML+2*w}, s{sL2E}, v{ML+2*w}")
        for w in range(4): e(f"v_exp_f32 v{ML+2*w}, v{ML+2*w}")
        e(f"v_mul_f32 v{vL}, v{ML}, v{ML+1}")
        for w in range(1, 4): e(f"v_fmac_f32 v{vL}, v{ML+2*w}, v{ML+2*w+1}")
        e(f"v_rcp_f32 v{vL}, v{vL}")
        for w in range(4): e(f"v_mul_f32 v{ML+2*w}, v{ML+2*w}, v{vL}")
        e(f"s_waitcnt lgkmcnt(0)")
        for k in range(8): e(f"v_mul_f32 v{OPX+k}, v{ML}, v{OPX+k}")
        for w in range(1, 4):
            for k in range(8): e(f"v_fmac_f32 v{OPX+k}, v{ML+2*w}, v{OPX+8*w+k}")
        for dd in range(4): e(f"v_cvt_pk_bf16_f32 v{OV+dd}, v{OPX+2*dd}, v{OPX+2*dd+1}")
        def build_a(i):
            ab = AB + 4*(i % 2)
            e(f"s_mov_b32 s12, {0x00010001 << i}")
            e(f"s_mov_b32 s13, s12")
            for dd in range(4): e(f"v_cndmask_b32 v{ab+dd}, 0, v{OV+dd}, s[12:13]")
        build_a(0); build_a(1)
        for i in range(8):
            ab = AB + 4*(i % 2)
            for blk in range(5):
                c_ = "0" if i == 0 else f"v[{DD+4*blk}:{DD+4*blk+3}]"
                t_ = W + 32*blk + 4*i
                e(f"v_mfma_f32_16x16x32_bf16 v[{DD+4*blk}:{DD+4*blk+3}], v[{ab}:{ab+3}], v[{t_}:{t_+3}], {c_}")
            if i + 2 < 8: build_a(i + 2)
        e(f"s_mov_b32 exec_hi, 0")
        for blk in range(5):
            e(f"ds_write_b128 v{vT5}, v[{DD+4*blk}:{DD+4*blk+3}] offset:{blk*512}")
        e(f"s_mov_b32 exec_hi, -1")
    else:
        ACCO = 224 - 0
        ACCO = 12
        acco = list(range(12, 40)) + list(range(50, 62))
        ACB = [12, 20, 28, 50, 224]
        for b_ in ACB:
            for i in range(8): e(f"v_mov_b32 v{b_+i}, 0")
        e(f"s_lshl_b32 s{sT}, s{sHw}, 5")
        e(f"v_lshl_add_u32 v{vT1}, v{vC}, 2, v{vR}")
        e(f"v_add_u32 v{vT1}, s{sT}, v{vT1}")
        e(f"v_and_b32 v{vT1}, 127, v{vT1}")
        e(f"v_lshlrev_b32 v{vT1}, 2, v{vT1}")
        e(f"v_mov_b32 v{vT0}, 0")
        vq.drain()
        if cfg.exp2 != 'qpoll': stamp(3)
        e(f"s_barrier")
        if cfg.exp2 != 'qpoll': stamp(4)
        ML = 232; OP = 240
        e(f"ds_read_b128 v[{ML}:{ML+3}], v{vT0} offset:{L_ML}")
        e(f"ds_read_b128 v[{ML+4}:{ML+7}], v{vT0} offset:{L_ML+16}")
        for w in range(4):
            e(f"ds_read_b32 v{OP+w}, v{vT1} offset:{L_OP + w*512}")
        e(f"s_waitcnt lgkmcnt(4)")
        vMn, vL, vE, vPL, vPH = 244, 245, 246, 247, 248
        e(f"v_max3_f32 v{vMn}, v{ML}, v{ML+2}, v{ML+4}")
        e(f"v_max_f32 v{vMn}, v{vMn}, v{ML+6}")
        for w in range(4): e(f"v_sub_f32 v{ML+2*w}, v{ML+2*w}, v{vMn}")
        for w in range(4): e(f"v_mul_f32 v{ML+2*w}, s{sL2E}, v{ML+2*w}")
        for w in range(4): e(f"v_exp_f32 v{ML+2*w}, v{ML+2*w}")
        e(f"s_waitcnt lgkmcnt(0)")
        e(f"v_mul_f32 v{vL}, v{ML}, v{ML+1}")
        e(f"v_mul_f32 v{vE}, v{ML}, v{OP}")
        for w in range(1, 4):
            e(f"v_fmac_f32 v{vL}, v{ML+2*w}, v{ML+2*w+1}")
            e(f"v_fmac_f32 v{vE}, v{ML+2*w}, v{OP+w}")
        e(f"v_rcp_f32 v{vL}, v{vL}")
        e(f"v_mul_f32 v{vE}, v{vE}, v{vL}")
        e(f"v_cvt_pk_bf16_f32 v{vPL}, v{vE}, 0")
        e(f"v_cvt_pk_bf16_f32 v{vPH}, 0, v{vE}")
        RES = 232
        for blk in range(5):
            for g in range(8):
                r = W + (g*5 + blk)*4
                for d in range(4):
                    e(f"v_dot2c_f32_bf16_dpp v{ACB[blk]+2*d}, v{vPL}, v{r+d} {bc(g)}")
                    e(f"v_dot2c_f32_bf16_dpp v{ACB[blk]+2*d+1}, v{vPH}, v{r+d} {bc(g)}")
            if blk > 0:
                reduce8(ACB[blk-1], RES + 2*(blk-1), RES + 2*(blk-1) + 1)
        reduce8(ACB[4], RES + 8, RES + 9)
        for i in range(10): e(f"v_add_f32 v{RES+i}, v{RES+i}, v{MLPS+i}")
        e(f"s_mul_i32 s{sT}, s{sHw}, 2560")
        e(f"v_add_u32 v{vT0}, s{sT}, v{vColAddr}")
        e(f"v_add_u32 v{vT0}, {L_OUT}, v{vT0}")
        for blk in range(5):
            e(f"ds_write_b32 v{vT0}, v{RES+2*blk} offset:{blk*512}")
            e(f"ds_write_b32 v{vT0}, v{RES+2*blk+1} offset:{blk*512+16}")
    e(f"s_waitcnt lgkmcnt(0)")
    e(f"s_barrier")
    if cfg.exp2 != 'qpoll': stamp(5)
    if cfg.fin == 'tag8':
        GB = 4096
        e(f"s_and_b32 s{sTmp2}, s{sNonce}, 0xff")
        e(f"s_cmp_eq_u32 s{sW}, 3")
        e(f"s_cbranch_scc1 L_cons")
        e(f"v_cmp_gt_u32 vcc, 160, v0")
        e(f"s_and_saveexec_b64 s[{SAVE}:{SAVE+1}], vcc")
        e(f"v_lshlrev_b32 v{vT0}, 4, v0")
        Pp = 64
        for w in range(4):
            e(f"ds_read_b128 v[{Pp+4*w}:{Pp+4*w+3}], v{vT0} offset:{L_OUT + w*2560}")
        if cfg.mfma:
            e(f"v_add_u32 v{vT5}, {L_MLP}, v{vT0}")
            for w in range(4):
                e(f"ds_read_b128 v[{Pp+16+4*w}:{Pp+16+4*w+3}], v{vT5} offset:{w*2560}")
        e(f"s_mul_i32 s{sT}, s{sB}, {32*2560}")
        e(f"s_add_u32 s{sT}, s{sT}, {GB}")
        srd(SA, pWS, sT, 32*2560)
        e(f"v_mul_u32_u24 v{vT1}, 205, v0")
        e(f"v_lshrrev_b32 v{vT1}, 10, v{vT1}")
        e(f"v_mul_u32_u24 v{vT2}, 5, v{vT1}")
        e(f"v_sub_u32 v{vT2}, v0, v{vT2}")
        e(f"v_mul_u32_u24 v{vT1}, 2560, v{vT1}")
        e(f"v_lshl_add_u32 v{vT1}, v{vT2}, 4, v{vT1}")
        e(f"s_mul_i32 s{sT}, s{sH}, 80")
        e(f"v_mov_b32 v{vT3}, 0xffffff00")
        e(f"v_mov_b32 v{vT4}, s{sTmp2}")
        e(f"s_waitcnt lgkmcnt(0)")
        if cfg.mfma:
            for k in range(16):
                e(f"v_add_f32 v{Pp+k}, v{Pp+k}, v{Pp+16+k}")
        for k in range(4):
            e(f"v_add_f32 v{Pp+k}, v{Pp+k}, v{Pp+4+k}")
            e(f"v_add_f32 v{Pp+8+k}, v{Pp+8+k}, v{Pp+12+k}")
        for k in range(4):
            e(f"v_add_f32 v{Pp+k}, v{Pp+k}, v{Pp+8+k}")
        for k in range(4):
            e(f"v_add_u32 v{Pp+k}, 0x80, v{Pp+k}")
        for k in range(4):
            e(f"v_and_or_b32 v{Pp+k}, v{Pp+k}, v{vT3}, v{vT4}")
        e(f"buffer_store_dwordx4 v[{Pp}:{Pp+3}], v{vT1}, s[{SA}:{SA+3}], s{sT} offen sc0 sc1")
        e(f"s_branch L_fin")
        A.label("L_cons"); A.hist = []
        e(f"s_mul_i32 s{sT}, s2, 2560")
        e(f"s_add_u32 s{sT}, s{sT}, {GB}")
        srd(SA, pWS, sT, 2560)
        e(f"v_lshrrev_b32 v{vT0}, 3, v{vLane}")
        e(f"v_and_b32 v{vT4}, 7, v{vLane}")
        e(f"v_mul_u32_u24 v{vT1}, 80, v{vT0}")
        e(f"v_lshl_add_u32 v{vT1}, v{vT4}, 4, v{vT1}")
        e(f"s_mov_b32 s{sSpin}, 0")
        e(f"v_mov_b32 v{vT5}, s{sTmp2}")
        G = 64
        A.label("L_poll2"); A.hist = []
        for i in range(4):
            e(f"buffer_load_dwordx4 v[{G+4*i}:{G+4*i+3}], v{vT1}, s[{SA}:{SA+3}], 0 offen offset:{i*640} sc0 sc1")
        e(f"s_add_u32 s{sSpin}, s{sSpin}, 1")
        e(f"s_waitcnt vmcnt(0)")
        X = 84
        for k in range(16):
            e(f"v_xor_b32 v{X+k}, v{vT5}, v{G+k}")
        for k in range(0, 15, 3):
            e(f"v_or3_b32 v{X+k}, v{X+k}, v{X+k+1}, v{X+k+2}")
        e(f"v_or3_b32 v{X}, v{X}, v{X+3}, v{X+6}")
        e(f"v_or3_b32 v{X+9}, v{X+9}, v{X+12}, v{X+15}")
        e(f"v_or_b32 v{X}, v{X}, v{X+9}")
        e(f"v_and_b32 v{X}, 0xff, v{X}")
        e(f"v_cmp_gt_u32 vcc, 5, v{vT4}")
        e(f"v_cndmask_b32 v{X}, 0, v{X}, vcc")
        e(f"v_cmp_ne_u32 vcc, 0, v{X}")
        e(f"s_cmp_gt_u32 s{sSpin}, 200000")
        e(f"s_cbranch_scc1 L_fin")
        e(f"s_cmp_eq_u64 vcc, 0")
        e(f"s_cbranch_scc0 L_poll2")
        for k in range(16):
            e(f"v_and_b32 v{G+k}, 0xffffff00, v{G+k}")
        for k in range(4):
            e(f"v_add_f32 v{G+k}, v{G+k}, v{G+4+k}")
            e(f"v_add_f32 v{G+8+k}, v{G+8+k}, v{G+12+k}")
        for k in range(4):
            e(f"v_add_f32 v{G+k}, v{G+k}, v{G+8+k}")
        for k in range(4):
            e(f"v_add_f32_dpp v{G+k}, v{G+k}, v{G+k} row_ror:8 row_mask:0xf bank_mask:0xf")
        for k in range(4):
            e(f"v_mov_b32 v{G+4+k}, v{G+k}")
        for k in range(4):
            e(f"v_permlane16_swap_b32 v{G+k}, v{G+4+k}")
        for k in range(4):
            e(f"v_add_f32 v{G+k}, v{G+k}, v{G+4+k}")
        for k in range(4):
            e(f"v_mov_b32 v{G+4+k}, v{G+k}")
        for k in range(4):
            e(f"v_permlane32_swap_b32 v{G+k}, v{G+4+k}")
        for k in range(4):
            e(f"v_add_f32 v{G+k}, v{G+k}, v{G+4+k}")
        for k in range(4):
            for src in (vXB2 + 2 + k//2, vXB2 + k//2):
                if k % 2 == 0: e(f"v_lshlrev_b32 v{vT2}, 16, v{src}")
                else: e(f"v_and_b32 v{vT2}, 0xffff0000, v{src}")
                e(f"v_add_f32 v{G+k}, v{G+k}, v{vT2}")
        e(f"v_cvt_pk_bf16_f32 v{G+4}, v{G}, v{G+1}")
        e(f"v_cvt_pk_bf16_f32 v{G+5}, v{G+2}, v{G+3}")
        e(f"s_mul_i32 s{sT}, s{sB}, 1280")
        e(f"s_mul_i32 s{sTmp}, s{sH}, 40")
        e(f"s_add_u32 s{sT}, s{sT}, s{sTmp}")
        srd(SD, pOUT, sT, 40)
        e(f"v_lshlrev_b32 v{vT0}, 3, v{vLane}")
        e(f"buffer_store_dwordx2 v[{G+4}:{G+5}], v{vT0}, s[{SD}:{SD+3}], 0 offen")
        if cfg.coop:
            e(f"s_cmp_lg_u32 s2, 0")
            e(f"s_cbranch_scc1 L_fin")
            srd(SC, pWS, None, 4)
        else:
            e(f"s_cmp_lg_u32 s{sH}, 0")
            e(f"s_cbranch_scc1 L_fin")
            e(f"s_lshl_b32 s{sT}, s{sB}, 8")
            srd(SC, pWS, sT, 4)
        e(f"v_mov_b32 v{vT2}, s{sNonce}")
        e(f"buffer_store_dword v{vT2}, v{vT0}, s[{SC}:{SC+3}], 0 offen sc0 sc1")
        e(f"s_branch L_fin")
    elif cfg.fin == 'tag':
        GB = 4096
        e(f"s_cmp_eq_u32 s{sW}, 3")
        e(f"s_cbranch_scc1 L_cons")
        e(f"v_cmp_gt_u32 vcc, 160, v0")
        e(f"s_and_saveexec_b64 s[{SAVE}:{SAVE+1}], vcc")
        e(f"v_lshlrev_b32 v{vT0}, 4, v0")
        Pp = 64
        for w in range(4):
            e(f"ds_read_b128 v[{Pp+4*w}:{Pp+4*w+3}], v{vT0} offset:{L_OUT + w*2560}")
        e(f"s_mul_i32 s{sT}, s{sB}, {32*5120}")
        e(f"s_add_u32 s{sT}, s{sT}, {GB}")
        srd(SA, pWS, sT, 32*5120)
        e(f"v_mul_u32_u24 v{vT1}, 205, v0")
        e(f"v_lshrrev_b32 v{vT1}, 10, v{vT1}")
        e(f"v_mul_u32_u24 v{vT2}, 5, v{vT1}")
        e(f"v_sub_u32 v{vT2}, v0, v{vT2}")
        e(f"v_mul_u32_u24 v{vT1}, 5120, v{vT1}")
        e(f"v_lshl_add_u32 v{vT1}, v{vT2}, 5, v{vT1}")
        e(f"s_mul_i32 s{sT}, s{sH}, 160")
        e(f"v_mov_b32 v{Pp+17}, s{sNonce}")
        e(f"v_mov_b32 v{Pp+19}, s{sNonce}")
        e(f"v_mov_b32 v{Pp+21}, s{sNonce}")
        e(f"v_mov_b32 v{Pp+23}, s{sNonce}")
        e(f"s_waitcnt lgkmcnt(0)")
        for k in range(4):
            e(f"v_add_f32 v{Pp+k}, v{Pp+k}, v{Pp+4+k}")
            e(f"v_add_f32 v{Pp+8+k}, v{Pp+8+k}, v{Pp+12+k}")
        for k in range(4):
            e(f"v_add_f32 v{Pp+16+2*k}, v{Pp+k}, v{Pp+8+k}")
        e(f"buffer_store_dwordx4 v[{Pp+16}:{Pp+19}], v{vT1}, s[{SA}:{SA+3}], s{sT} offen sc0 sc1")
        e(f"buffer_store_dwordx4 v[{Pp+20}:{Pp+23}], v{vT1}, s[{SA}:{SA+3}], s{sT} offen offset:16 sc0 sc1")
        e(f"s_branch L_fin")
        A.label("L_cons"); A.hist = []
        e(f"s_mul_i32 s{sT}, s2, 5120")
        e(f"s_add_u32 s{sT}, s{sT}, {GB}")
        srd(SA, pWS, sT, 5120)
        e(f"v_mul_u32_u24 v{vT0}, 160, v{vLane}")
        e(f"v_mul_u32_u24 v{vT1}, 160, v{vR}")
        e(f"v_lshl_add_u32 v{vT1}, v{vC}, 4, v{vT1}")
        e(f"s_mov_b32 s{sSpin}, 0")
        e(f"s_mov_b32 s{sTmp}, 2560")
        G = 64
        A.label("L_poll1"); A.hist = []
        e(f"buffer_load_dwordx4 v[{G}:{G+3}], v{vT0}, s[{SA}:{SA+3}], 0 offen sc0 sc1")
        e(f"s_add_u32 s{sSpin}, s{sSpin}, 1")
        e(f"s_waitcnt vmcnt(0)")
        e(f"v_xor_b32 v{G}, s{sNonce}, v{G+1}")
        e(f"v_xor_b32 v{G+2}, s{sNonce}, v{G+3}")
        e(f"v_or_b32 v{G}, v{G}, v{G+2}")
        e(f"v_cmp_eq_u32 vcc, 0, v{G}")
        e(f"s_cmp_gt_u32 s{sSpin}, 200000")
        e(f"s_cbranch_scc1 L_fin")
        e(f"s_cmp_eq_u32 vcc_lo, -1")
        e(f"s_cbranch_scc0 L_poll1")
        A.label("L_poll2"); A.hist = []
        for i in range(8):
            so = "0" if i < 4 else f"s{sTmp}"
            e(f"buffer_load_dwordx4 v[{G+4*i}:{G+4*i+3}], v{vT1}, s[{SA}:{SA+3}], {so} offen offset:{(i%4)*640} sc0 sc1")
        e(f"s_add_u32 s{sSpin}, s{sSpin}, 1")
        e(f"s_waitcnt vmcnt(0)")
        e(f"v_xor_b32 v{vT2}, s{sNonce}, v{G+1}")
        for i in range(8):
            for k in (1, 3):
                if i == 0 and k == 1: continue
                e(f"v_xor_b32 v{vT3}, s{sNonce}, v{G+4*i+k}")
                e(f"v_or_b32 v{vT2}, v{vT2}, v{vT3}")
        e(f"v_cmp_gt_u32 vcc, 10, v{vC}")
        e(f"v_cndmask_b32 v{vT2}, 0, v{vT2}, vcc")
        e(f"v_cmp_ne_u32 vcc, 0, v{vT2}")
        e(f"s_cmp_gt_u32 s{sSpin}, 200000")
        e(f"s_cbranch_scc1 L_fin")
        e(f"s_cmp_eq_u64 vcc, 0")
        e(f"s_cbranch_scc0 L_poll2")
        for i in range(1, 8):
            e(f"v_add_f32 v{G}, v{G}, v{G+4*i}")
            e(f"v_add_f32 v{G+2}, v{G+2}, v{G+4*i+2}")
        for r in (G, G+2):
            e(f"v_mov_b32 v{vT2}, v{r}")
            e(f"v_permlane16_swap_b32 v{r}, v{vT2}")
            e(f"v_add_f32 v{r}, v{r}, v{vT2}")
            e(f"v_mov_b32 v{vT2}, v{r}")
            e(f"v_permlane32_swap_b32 v{r}, v{vT2}")
            e(f"v_add_f32 v{r}, v{r}, v{vT2}")
        e(f"v_lshlrev_b32 v{vT2}, 16, v{vXB+1}")
        e(f"v_and_b32 v{vT3}, 0xffff0000, v{vXB+1}")
        e(f"v_add_f32 v{G}, v{G}, v{vT2}")
        e(f"v_add_f32 v{G+2}, v{G+2}, v{vT3}")
        e(f"v_lshlrev_b32 v{vT2}, 16, v{vXB}")
        e(f"v_and_b32 v{vT3}, 0xffff0000, v{vXB}")
        e(f"v_add_f32 v{G}, v{G}, v{vT2}")
        e(f"v_add_f32 v{G+2}, v{G+2}, v{vT3}")
        e(f"v_cvt_pk_bf16_f32 v{G}, v{G}, v{G+2}")
        e(f"s_mul_i32 s{sT}, s{sB}, 1280")
        e(f"s_mul_i32 s{sTmp}, s{sH}, 40")
        e(f"s_add_u32 s{sT}, s{sT}, s{sTmp}")
        srd(SD, pOUT, sT, 40)
        e(f"v_lshlrev_b32 v{vT0}, 2, v{vLane}")
        e(f"buffer_store_dword v{G}, v{vT0}, s[{SD}:{SD+3}], 0 offen")
        e(f"s_cmp_lg_u32 s{sH}, 0")
        e(f"s_cbranch_scc1 L_fin")
        e(f"s_lshl_b32 s{sT}, s{sB}, 8")
        srd(SC, pWS, sT, 4)
        e(f"v_mov_b32 v{vT2}, s{sNonce}")
        e(f"buffer_store_dword v{vT2}, v{vT0}, s[{SC}:{SC+3}], 0 offen sc0 sc1")
        e(f"s_branch L_fin")
    else:
        e(f"s_cmp_ge_u32 s{sW}, 3")
        e(f"s_cbranch_scc1 L_fin")
        e(f"v_cmp_gt_u32 vcc, 160, v0")
        e(f"s_and_saveexec_b64 s[{SAVE}:{SAVE+1}], vcc")
        e(f"v_lshlrev_b32 v{vT0}, 4, v0")
        Pp = 64
        for w in range(4):
            e(f"ds_read_b128 v[{Pp+4*w}:{Pp+4*w+3}], v{vT0} offset:{L_OUT + w*2560}")
        e(f"s_mul_i32 s{sT}, s2, 2560")
        srd(SA, pWS, sT, 2560)
        e(f"s_waitcnt lgkmcnt(0)")
        for k in range(4):
            e(f"v_add_f32 v{Pp+k}, v{Pp+k}, v{Pp+4+k}")
            e(f"v_add_f32 v{Pp+8+k}, v{Pp+8+k}, v{Pp+12+k}")
        for k in range(4):
            e(f"v_add_f32 v{Pp+k}, v{Pp+k}, v{Pp+8+k}")
        e(f"buffer_store_dwordx4 v[{Pp}:{Pp+3}], v{vT0}, s[{SA}:{SA+3}], 0 offen sc0 sc1")
        e(f"s_mul_i32 s{sT}, s{sB}, 3")
        e(f"s_add_u32 s{sT}, s{sT}, s{sW}")
        e(f"s_lshl_b32 s{sT}, s{sT}, 2")
        e(f"s_mov_b64 s[{SAVE+2}:{SAVE+3}], exec")
        e(f"s_waitcnt vmcnt(0)")
        e(f"s_mov_b64 exec, 1")
        e(f"v_mov_b32 v{vT1}, s{sT}")
        e(f"v_mov_b32 v{vT2}, 1")
        e(f"global_atomic_add v{vT3}, v{vT1}, v{vT2}, s[{pDBG}:{pDBG+1}] sc0 sc1")
        e(f"s_waitcnt vmcnt(0)")
        e(f"v_readfirstlane_b32 s{sT}, v{vT3}")
        e(f"s_mov_b64 exec, s[{SAVE+2}:{SAVE+3}]")
        e(f"s_cmp_lg_u32 s{sT}, 31")
        e(f"s_cbranch_scc1 L_fin")
        e(f"s_mul_i32 s{sT}, s{sB}, {32*2560}")
        srd(SA, pWS, sT, 32*2560)
        for hh in range(32):
            r = 96 + 4*hh
            e(f"s_mov_b32 s{sT}, {hh*2560}")
            e(f"buffer_load_dwordx4 v[{r}:{r+3}], v{vT0}, s[{SA}:{SA+3}], s{sT} offen sc0 sc1")
        e(f"s_mul_i32 s{sT}, s{sB}, 1280")
        srd(SBq, pX, sT, 1280)
        srd(SC, pB2, None, 1280)
        srd(SD, pOUT, sT, 1280)
        e(f"v_lshlrev_b32 v{vT1}, 3, v0")
        e(f"buffer_load_dwordx2 v[{Pp}:{Pp+1}], v{vT1}, s[{SBq}:{SBq+3}], 0 offen")
        e(f"buffer_load_dwordx2 v[{Pp+2}:{Pp+3}], v{vT1}, s[{SC}:{SC+3}], 0 offen")
        for hh in range(1, 32):
            e(f"s_waitcnt vmcnt({2 + 31 - hh})")
            for k in range(4):
                e(f"v_add_f32 v{96+k}, v{96+k}, v{96+4*hh+k}")
        e(f"s_waitcnt vmcnt(0)")
        for k in range(4):
            src = Pp + k//2; src2 = Pp + 2 + k//2
            if k % 2 == 0:
                e(f"v_lshlrev_b32 v{vT2}, 16, v{src}")
                e(f"v_lshlrev_b32 v{vT3}, 16, v{src2}")
            else:
                e(f"v_and_b32 v{vT2}, 0xffff0000, v{src}")
                e(f"v_and_b32 v{vT3}, 0xffff0000, v{src2}")
            e(f"v_add_f32 v{96+k}, v{96+k}, v{vT3}")
            e(f"v_add_f32 v{96+k}, v{96+k}, v{vT2}")
        e(f"v_cvt_pk_bf16_f32 v{Pp+4}, v96, v97")
        e(f"v_cvt_pk_bf16_f32 v{Pp+5}, v98, v99")
        e(f"buffer_store_dwordx2 v[{Pp+4}:{Pp+5}], v{vT1}, s[{SD}:{SD+3}], 0 offen")
        e(f"s_branch L_fin")


    A.hist = []
    A.label("L_stream")
    L = cfg.L; P = cfg.P
    Q = 12; ACC = 16; vM = 24; vSc = 25; S = 26
    vU0, vU1, vTt = 30, 31, 32
    vLs = 33; E2 = 34
    E2n = 36
    vPL, vPH, vE = 38, 39, 40
    RING = 44
    BIG = 76
    P2 = cfg.P2
    TMPR = BIG + 4*P
    assert BIG + 4*P + (16 if P2 else 0) <= 256 and P2 % 4 == 0 and (not P2 or P % 4 == 0)
    sPF = 8; vPF = 42
    e(f"s_mov_b32 s{sScale}, {f32(128**-0.5)}")
    e(f"s_lshl_b32 s{sIss}, s{sHw}, 12")
    e(f"v_lshrrev_b32 v{vT0}, 2, v{vC}")
    e(f"v_lshl_add_u32 v{vT0}, v{vR}, 2, v{vT0}")
    e(f"s_lshl_b32 s{sT}, s{sHw}, 9")
    e(f"v_add_u32 v{vT0}, s{sT}, v{vT0}")
    e(f"v_lshlrev_b32 v{vSc}, 3, v{vT0}")
    e(f"v_add_u32 v{vSc}, {L_SC}, v{vSc}")
    e(f"s_waitcnt lgkmcnt(0)")
    e(f"s_lshl_b32 s{sT}, s2, 20")
    srd(SK, pK, sT, 1 << 20)
    srd(SV, pV, sT, 1 << 20)
    if P2:
        e(f"s_mul_i32 s{sPF}, s{sHw}, {P2*1024}")
        e(f"s_add_u32 s{sPF}, s{sPF}, {L_PF}")
        e(f"v_add_u32 v{vPF}, s{sPF}, v{vL16}")
    slot = {}
    def issue_lds(n):
        k = n - P; j = n % 4
        e(f"s_add_u32 m0, s{sPF}, {(k - j)*1024}")
        e(f"s_nop 0")
        e(f"buffer_load_dwordx4 v{vL16}, s[{SK}:{SK+3}], s{sIss} offen offset:{j*1024} {cfg.kflag} lds")
        if j == 3: e(f"s_add_u32 s{sIss}, s{sIss}, 16384")
        slot[n] = ("L", k)
    def issue(n, reg):
        isV = n >= 256
        j = n % 4
        if n == 256: e(f"s_lshl_b32 s{sIss}, s{sHw}, 12")
        srdr = SV if isV else SK
        fl = cfg.vflag if isV else cfg.kflag
        e(f"buffer_load_dwordx4 v[{reg}:{reg+3}], v{vL16}, s[{srdr}:{srdr+3}], s{sIss} offen offset:{j*1024} {fl}")
        if j == 3: e(f"s_add_u32 s{sIss}, s{sIss}, 16384")
        slot[n] = reg
    m_ = "row_mask:0xf"
    def consumeK(n, scoff=None):
        j = n % 4; reg = slot[n]; i = n // 4
        if isinstance(reg, tuple):
            k = reg[1]
            if j == 0:
                for jj in range(4):
                    e(f"ds_read_b128 v[{TMPR+4*jj}:{TMPR+4*jj+3}], v{vPF} offset:{(k+jj)*1024}")
                e(f"s_waitcnt lgkmcnt(0)")
            reg = TMPR + 4*j
        for d in range(4):
            src2 = "0" if d == 0 else f"v{S+j}"
            e(f"v_dot2_f32_bf16 v{S+j}, v{reg+d}, v{Q+d}, {src2}")
        if j == 3:
            e(f"v_add_f32_dpp v{vU0}, v{S}, v{S} row_mirror {m_} bank_mask:0x3")
            e(f"v_add_f32_dpp v{vU1}, v{S+1}, v{S+1} row_mirror {m_} bank_mask:0x3")
            e(f"v_add_f32_dpp v{vU0}, v{S+2}, v{S+2} row_mirror {m_} bank_mask:0xc")
            e(f"v_add_f32_dpp v{vU1}, v{S+3}, v{S+3} row_mirror {m_} bank_mask:0xc")
            e(f"v_add_f32_dpp v{vTt}, v{vU0}, v{vU0} row_half_mirror {m_} bank_mask:0x5")
            e(f"v_add_f32_dpp v{vTt}, v{vU1}, v{vU1} row_half_mirror {m_} bank_mask:0xa")
            e(f"v_add_f32_dpp v{vTt}, v{vTt}, v{vTt} quad_perm:[1,0,3,2] {m_} bank_mask:0xf")
            e(f"v_add_f32_dpp v{vTt}, v{vTt}, v{vTt} quad_perm:[2,3,0,1] {m_} bank_mask:0xf")
            e(f"v_cvt_pk_bf16_f32 v{vTt}, 0, v{vTt}")
            e(f"v_mul_f32 v{vTt}, s{sScale}, v{vTt}")
            e(f"v_cvt_pk_bf16_f32 v{vTt}, 0, v{vTt}")
            e(f"ds_write_b32 v{vSc}, v{vTt} offset:{4*(i % 2)}")
            e(f"v_max_f32 v{vM}, v{vM}, v{vTt}")
            if i % 2 == 1: e(f"v_add_u32 v{vSc}, 128, v{vSc}")
    def consumeV(n):
        j = n % 4; reg = slot[n]; i = (n - 256) // 4
        if j == 0:
            if i % 2 == 0:
                e(f"s_waitcnt lgkmcnt(0)")
                e(f"v_sub_f32 v{E2}, v{E2n}, v{vM}")
                e(f"v_sub_f32 v{E2+1}, v{E2n+1}, v{vM}")
                e(f"ds_read_b64 v[{E2n}:{E2n+1}], v{vSc}")
                e(f"v_add_u32 v{vSc}, 128, v{vSc}")
                e(f"v_mul_f32 v{E2}, s{sL2E}, v{E2}")
                e(f"v_mul_f32 v{E2+1}, s{sL2E}, v{E2+1}")
                e(f"v_exp_f32 v{E2}, v{E2}")
                e(f"v_exp_f32 v{E2+1}, v{E2+1}")
                e(f"v_add_f32 v{vLs}, v{vLs}, v{E2}")
                e(f"v_add_f32 v{vLs}, v{vLs}, v{E2+1}")
            e(f"v_cvt_pk_bf16_f32 v{vPL}, v{E2 + i % 2}, 0")
            e(f"v_cvt_pk_bf16_f32 v{vPH}, 0, v{E2 + i % 2}")
        for d in range(4):
            e(f"v_dot2c_f32_bf16_dpp v{ACC+2*d}, v{vPL}, v{reg+d} {bc(4*j)}")
            e(f"v_dot2c_f32_bf16_dpp v{ACC+2*d+1}, v{vPH}, v{reg+d} {bc(4*j)}")
    Lp = cfg.Lp or L
    for n in range(P):
        if n == Lp: e(f"s_barrier")
        if n >= Lp: e(f"s_waitcnt vmcnt({Lp-1})")
        if cfg.exp2 == 'early' and n in (Lp, Lp+10, Lp+20, Lp+30):
            stamp({Lp: 3, Lp+10: 4, Lp+20: 5, Lp+30: 6}[n])
        issue(n, BIG + 4*n)
    for n in range(P, P + P2):
        e(f"s_waitcnt vmcnt({Lp-1})")
        issue_lds(n)
    if P <= Lp: e("s_barrier")
    stamp(1)
    e(f"s_barrier")
    e(f"v_lshlrev_b32 v{vT0}, 4, v{vC}")
    e(f"ds_read_b128 v[{Q}:{Q+3}], v{vT0} offset:{L_QB}")
    for i in range(8): e(f"v_mov_b32 v{ACC+i}, 0")
    e(f"v_mov_b32 v{vM}, 0xff800000")
    e(f"v_mov_b32 v{vLs}, 0")
    e(f"s_waitcnt lgkmcnt(0)")
    stamp(2)
    I = P + P2; C = 0
    free = []
    def alloc(n):
        return None
    while I - C > L:
        e(f"s_waitcnt vmcnt({L-1})")
        prev = I - 8
        ringreg = RING + 4*(I % 8)
        tenant = [n for n, r in slot.items() if r == ringreg and n >= C]
        if not tenant and (I - C) <= 16:
            reg = ringreg
        else:
            reg = free.pop(0) if free else None
            if reg is None:
                assert not tenant
                reg = ringreg
        issue(I, reg); I += 1
        for _ in range(2):
            if I - C > L:
                consumeK(C)
                if not isinstance(slot[C], tuple) and BIG <= slot[C]: free.append(slot[C])
                C += 1
    Kpat = cfg.Kpat or [L]*8
    Vpat = cfg.Vpat or [L]*8
    def target(n):
        if n >= 512: return 0
        t = Kpat[n % 8] if n < 256 else Vpat[n % 8]
        if n >= 512 - cfg.tailN: t = cfg.Ltail
        return min(t, 512 - n)
    def steady(nsteps_end):
        nonlocal I, C
        while C < nsteps_end:
            e(f"s_waitcnt vmcnt({I - C - 1})")
            while I < 512 and I - (C + 1) < target(C + 1):
                ringreg = RING + 4*(I % 8)
                assert not [n for n, r in slot.items() if r == ringreg and C <= n < I], (I, C)
                issue(I, ringreg); I += 1
            if C < 256: consumeK(C)
            else: consumeV(C)
            C += 1
    while not (C % 8 == 0 and I - C == target(C) and all(slot[n] == RING + 4*(n % 8) for n in range(C, I))):
        steady(C + 1)
    c0 = C
    niterK = (248 - c0) // 8
    assert niterK >= 1 and c0 + 8*niterK == 248, (c0, niterK)
    if cfg.exp2 == 'kstart': stamp(5)
    e(f"s_mov_b32 s{sCnt}, {niterK}")
    A.fence()
    A.label("L_kloop")
    steady(C + 8)
    e(f"s_sub_u32 s{sCnt}, s{sCnt}, 1")
    e(f"s_cmp_lg_u32 s{sCnt}, 0")
    A.fence()
    e(f"s_cbranch_scc1 L_kloop")
    shift = 248 - C
    for n in range(C, I): slot[n + shift] = slot[n]
    C += shift; I += shift
    vRank = 41
    if cfg.rank:
        e(f"s_cmp_lg_u32 s{sHw}, 0")
        e(f"s_cbranch_scc1 L_norank")
        e(f"s_mov_b64 exec, 1")
        e(f"v_mov_b32 v{vT0}, 0")
        e(f"v_mov_b32 v{vT1}, 1")
        e(f"global_atomic_add v{vRank}, v{vT0}, v{vT1}, s[{pDBG}:{pDBG+1}] sc0 sc1")
        e(f"s_mov_b64 exec, -1")
        A.label("L_norank"); A.hist = []
        Ia = I
        steady(Ia + 1)
        e(f"s_cmp_lg_u32 s{sHw}, 0")
        e(f"s_cbranch_scc1 L_norank2")
        e(f"v_readfirstlane_b32 s{sT}, v{vRank}")
        e(f"s_mov_b32 s{sTmp}, 0")
        for k, (thr, pat) in enumerate(cfg.rank):
            e(f"s_cmp_ge_u32 s{sT}, {thr}")
            e(f"s_cselect_b32 s{sTmp}, {k+1}, s{sTmp}")
        e(f"v_mov_b32 v{vT0}, 0")
        e(f"v_mov_b32 v{vT1}, s{sTmp}")
        e(f"ds_write_b32 v{vT0}, v{vT1} offset:{L_CNT+16}")
        A.label("L_norank2"); A.hist = []
    steady(256)
    if cfg.exp2 != 'early': stamp(3)
    wave_red(vM, vT1, "v_max_f32")
    e(f"v_subrev_u32 v{vSc}, {32*128}, v{vSc}")
    e(f"s_waitcnt lgkmcnt(0)")
    e(f"ds_read_b64 v[{E2n}:{E2n+1}], v{vSc}")
    e(f"v_add_u32 v{vSc}, 128, v{vSc}")
    steady(264)
    def vsection(pat, sfx):
        nonlocal I, C, Vpat
        Vpat = pat
        steady(272)
        vend = 512 - 8 - cfg.tailN - (8 if cfg.tailN else 0)
        niterV = (vend - 272) // 8
        e(f"s_mov_b32 s{sCnt}, {niterV}")
        A.fence()
        A.label(f"L_vloop{sfx}")
        steady(C + 8)
        e(f"s_sub_u32 s{sCnt}, s{sCnt}, 1")
        e(f"s_cmp_lg_u32 s{sCnt}, 0")
        A.fence()
        e(f"s_cbranch_scc1 L_vloop{sfx}")
        shift = vend - C
        for n in range(C, I): slot[n + shift] = slot[n]
        C += shift; I += shift
        if cfg.tailN:
            steady(512 - cfg.tailN + 8)
            nt_ = (504 - C) // 8
            if nt_ > 0:
                e(f"s_mov_b32 s{sCnt}, {nt_}")
                A.fence()
                A.label(f"L_tloop{sfx}")
                steady(C + 8)
                e(f"s_sub_u32 s{sCnt}, s{sCnt}, 1")
                e(f"s_cmp_lg_u32 s{sCnt}, 0")
                A.fence()
                e(f"s_cbranch_scc1 L_tloop{sfx}")
                shift = 504 - C
                for n in range(C, I): slot[n + shift] = slot[n]
                C += shift; I += shift
        steady(512)
    if cfg.rank:
        e(f"v_mov_b32 v{vT0}, 0")
        e(f"ds_read_b32 v{vT1}, v{vT0} offset:{L_CNT+16}")
        e(f"s_waitcnt lgkmcnt(0)")
        e(f"v_readfirstlane_b32 s{sT}, v{vT1}")
        for k in range(len(cfg.rank)):
            e(f"s_cmp_eq_u32 s{sT}, {k+1}")
            e(f"s_cbranch_scc1 L_vsec{k+1}")
        base_pat = list(Vpat)
        saved = (I, C, dict(slot))
        pats = [base_pat] + [p for _, p in cfg.rank]
        for k, pat in enumerate(pats):
            I, C = saved[0], saved[1]
            slot.clear(); slot.update(saved[2])
            if k > 0:
                A.label(f"L_vsec{k}"); A.hist = []
            vsection(pat, f"_{k}")
            if k < len(pats) - 1:
                A.fence()
                e(f"s_branch L_vdone")
        A.label("L_vdone"); A.hist = []
    else:
        vsection(Vpat, "")
    if cfg.exp2 != 'early': stamp(4)
    m = "row_mask:0xf bank_mask:0xf"
    e(f"v_add_f32_dpp v{vLs}, v{vLs}, v{vLs} row_half_mirror {m}")
    e(f"v_add_f32_dpp v{vLs}, v{vLs}, v{vLs} row_mirror {m}")
    e(f"v_mov_b32 v{vT1}, v{vLs}")
    e(f"v_permlane16_swap_b32 v{vLs}, v{vT1}")
    e(f"v_add_f32 v{vLs}, v{vLs}, v{vT1}")
    e(f"v_mov_b32 v{vT1}, v{vLs}")
    e(f"v_permlane32_swap_b32 v{vLs}, v{vT1}")
    e(f"v_add_f32 v35, v{vLs}, v{vT1}")
    e(f"v_mov_b32 v34, v{vM}")
    reduce8(ACC, vT2, vT3)
    e(f"s_lshl_b32 s{sT}, s{sHw}, 9")
    e(f"v_add_u32 v{vT0}, s{sT}, v{vColAddr}")
    e(f"v_add_u32 v{vT0}, {L_OP}, v{vT0}")
    e(f"ds_write2_b32 v{vT0}, v{vT2}, v{vT3} offset0:0 offset1:4")
    e(f"s_lshl_b32 s{sT}, s{sHw}, 3")
    e(f"v_mov_b32 v{vT0}, s{sT}")
    e(f"ds_write_b64 v{vT0}, v[34:35] offset:{L_ML}")
    e(f"s_waitcnt lgkmcnt(0)")
    e(f"s_barrier")
    if cfg.exp2 not in ('kstart', 'early'): stamp(5)
    A.label("L_fin"); A.hist = []
    if cfg.stamps:
        e("s_mov_b64 exec, -1")
        if cfg.exp2 == 'early':
            e(f"s_cmp_ge_u32 s{sW}, 4")
            e(f"s_cbranch_scc1 L_nost6")
        stamp(6)
        if cfg.exp2 == 'early': A.label("L_nost6")
        e("s_waitcnt lgkmcnt(0)")
        if cfg.dbgstamps:
            e(f"s_cmp_eq_u32 s{sW}, 3")
            e(f"s_cbranch_scc1 L_dbg3")
            e(f"s_cmp_eq_u32 s{sW}, 4")
            e(f"s_cbranch_scc0 L_end")
            e("s_mov_b64 exec, 1")
            for k, i in enumerate((1, 2, 3, 4)):
                e(f"v_mov_b32 v64, s{80+2*i}")
                e(f"v_not_b32 v65, v64")
                e(f"v_mov_b32 v66, {32 + 8*k}")
                e(f"global_atomic_umax v66, v64, s[{pDBG}:{pDBG+1}] sc1")
                e(f"global_atomic_umax v66, v65, s[{pDBG}:{pDBG+1}] offset:4 sc1")
            e("s_waitcnt vmcnt(0)")
            e("s_branch L_end")
            A.label("L_dbg3")
            e("s_mov_b64 exec, 1")
            for k, i in enumerate((0, 2, 5, 6)):
                e(f"v_mov_b32 v64, s{80+2*i}")
                e(f"v_not_b32 v65, v64")
                e(f"v_mov_b32 v66, {8*k}")
                e(f"global_atomic_umax v66, v64, s[{pDBG}:{pDBG+1}] sc1")
                e(f"global_atomic_umax v66, v65, s[{pDBG}:{pDBG+1}] offset:4 sc1")
            e("s_waitcnt vmcnt(0)")
            e("s_branch L_end")
        e(f"s_lshl_b32 s{sT}, s2, 3")
        e(f"s_add_u32 s{sT}, s{sT}, s{sW}")
        e(f"s_lshl_b32 s{sT}, s{sT}, 6")
        e(f"s_add_u32 s{sT}, s{sT}, {1<<20}")
        for i in range(14): e(f"v_mov_b32 v{64+i}, s{80+i}")
        e(f"s_getreg_b32 s{sTmp}, hwreg(HW_REG_XCC_ID)")
        e(f"v_mov_b32 v78, s{sTmp}")
        e(f"v_mov_b32 v79, 0")
        e(f"v_mov_b32 v{vT0}, s{sT}")
        e("s_mov_b64 exec, 1")
        for i in range(4):
            e(f"global_store_dwordx4 v{vT0}, v[{64+4*i}:{67+4*i}], s[{pWS}:{pWS+1}] offset:{16*i}")
        e("s_waitcnt vmcnt(0)")
    A.label("L_end")
    e("s_endpgm")
    body = A.text()
    hdr = HDR + f"; @launch grid=(256,1,1) block=(512,1,1) lds={LDS_BYTES}\n"
    pre = f""".amdgcn_target "amdgcn-amd-amdhsa--gfx950"
.text
.globl {KN}
.p2align 8
.type {KN},@function
{KN}:
"""
    post = f""".section .rodata,"a"
.p2align 6
.amdhsa_kernel {KN}
  .amdhsa_next_free_vgpr 256
  .amdhsa_next_free_sgpr 102
  .amdhsa_accum_offset 256
  .amdhsa_group_segment_fixed_size 0
  .amdhsa_kernarg_size 104
  .amdhsa_user_sgpr_count 2
  .amdhsa_user_sgpr_kernarg_segment_ptr 1
  .amdhsa_system_sgpr_workgroup_id_x 1
  .amdhsa_float_denorm_mode_32 3
.end_amdhsa_kernel
"""
    return hdr + pre + body + post

if __name__ == "__main__":
    class C(Cfg): pass
    for a in sys.argv[2:]:
        k, v = a.split("=")
        setattr(C, k, eval(v))
    open(sys.argv[1], "w").write(gen(C))
```

```python
import sys, math, struct
from asmlib import Asm

KN = "parallel_sum__gqa_block_cached__mixer_channel_mlp__decode_kernel"
HDR = open("parallel_sum__gqa_block_cached__mixer_channel_mlp__decode.s.ref").read().split("; Override launch")[0]

def f32(x):
    return "0x%08x" % struct.unpack("<I", struct.pack("<f", x))[0]

DESC = """; One workgroup per (batch b, head h): id = 32*b + h.  8 waves:
;   The 32 per-head partial rows of a batch are exchanged through d_ws as self-tagged words (low 8 bits = launch
"""

class Cfg:
    kflag = "nt"
    vflag = "nt"
    wflag = ""
    stamps = False
    rot = True
    L = 5
    P = 44
    Dh = 6
    Dw = 2
    Lp = None
    Kpat = None
    Vpat = None
    tailN = 0
    Ltail = 7
    exp = ''
    exp2 = ''
    dbgstamps = False
    deeptail = False
    vtouch = 0
    burst0 = 0
    amap = 'A'
    krot = 0
    psleep = 0
    padapt = 0
    xccpat = None
    rankmode = 'flag'
    codepf = False
    streamfirst = False
    Dw2 = None
    Dwo = None
    mfma = False
    P2 = 0
    rank = None
    coop = False
    fin = 'tag8'

class VQ:
    def __init__(self, A):
        self.q = []; self.A = A
    def issue(self, tag, text):
        self.A(text); self.q.append(tag)
        assert len(self.q) <= 63, len(self.q)
    def wait(self, tag):
        idx = [i for i, t in enumerate(self.q) if t == tag]
        if not idx: return
        i = idx[-1]
        n = len(self.q) - 1 - i
        self.A(f"s_waitcnt vmcnt({n})")
        self.q = self.q[i+1:]
    def limit(self, n):
        if len(self.q) > n:
            self.A(f"s_waitcnt vmcnt({n})")
            self.q = self.q[len(self.q)-n:] if n else []
    def drain(self):
        self.A("s_waitcnt vmcnt(0)"); self.q = []

def gen(cfg=Cfg):
    A = Asm(); e = A
    vLane = 1; vL16 = 2; vR = 3; vC = 4
    vT0, vT1, vT2, vT3, vT4, vT5 = 5, 6, 7, 8, 9, 10
    vColAddr = 11
    sW = 3; sB = 4; sH = 5; sS = 6; sT = 7
    pX, pK, pV, pWQ, pWO, pBX, pW1, pB1 = 16, 18, 20, 22, 24, 26, 28, 30
    pW2, pB2, pOUT, pDBG = 32, 34, 36, 38
    pWS = 40
    SK, SV, SA, SBq, SC, SD, SE = 44, 48, 52, 56, 60, 64, 68
    sIss = 72; sCnt = 73; sScale = 74; sL2E = 75; sTmp = 76; sTmp2 = 77; sWr = 78; sHw = 79
    SAVE = 96
    sNonce = 100; sSpin = 101
    L_QP = 0
    L_HP = 2048
    L_QB = 3072
    L_HB = 3328
    L_ML = 3456
    L_CNT = 3488
    L_OP = 3584
    L_OUT = 5632
    L_ST = 3520
    L_SC = 15872
    LDS_BYTES = L_SC + 16384 + 256
    L_PF = 32768
    if cfg.P2: LDS_BYTES = L_PF + 4*cfg.P2*1024
    else: LDS_BYTES = L_PF
    L_MLP = LDS_BYTES
    if cfg.mfma: LDS_BYTES += 10240

    def srd(dst, ptr, off, size, size_sub=None):
        if off is None:
            e(f"s_mov_b32 s{dst}, s{ptr}")
            e(f"s_and_b32 s{dst+1}, s{ptr+1}, 0xffff")
        else:
            e(f"s_add_u32 s{dst}, s{ptr}, s{off}")
            e(f"s_addc_u32 s{dst+1}, s{ptr+1}, 0")
            e(f"s_and_b32 s{dst+1}, s{dst+1}, 0xffff")
        if size_sub is None: e(f"s_mov_b32 s{dst+2}, {size}")
        else: e(f"s_sub_u32 s{dst+2}, {size}, s{size_sub}")
        e(f"s_mov_b32 s{dst+3}, 0x20000")
    def stamp(i):
        if cfg.stamps: e(f"s_memrealtime s[{80+2*i}:{81+2*i}]")
    def bc(j): return f"row_newbcast:{j} row_mask:0xf bank_mask:0xf"
    def wave_red(v, t1, op):
        e(f"{op}_dpp v{v}, v{v}, v{v} quad_perm:[1,0,3,2] row_mask:0xf bank_mask:0xf")
        e(f"{op}_dpp v{v}, v{v}, v{v} quad_perm:[2,3,0,1] row_mask:0xf bank_mask:0xf")
        e(f"{op}_dpp v{v}, v{v}, v{v} row_half_mirror row_mask:0xf bank_mask:0xf")
        e(f"{op}_dpp v{v}, v{v}, v{v} row_mirror row_mask:0xf bank_mask:0xf")
        e(f"v_mov_b32 v{t1}, v{v}")
        e(f"v_permlane16_swap_b32 v{v}, v{t1}")
        e(f"{op} v{v}, v{v}, v{t1}")
        e(f"v_mov_b32 v{t1}, v{v}")
        e(f"v_permlane32_swap_b32 v{v}, v{t1}")
        e(f"{op} v{v}, v{v}, v{t1}")
    def reduce8(a, out0, out1):
        for p in range(4): e(f"v_permlane32_swap_b32 v{a+2*p}, v{a+2*p+1}")
        for p in range(4): e(f"v_add_f32 v{a+2*p}, v{a+2*p}, v{a+2*p+1}")
        e(f"v_permlane16_swap_b32 v{a}, v{a+2}")
        e(f"v_permlane16_swap_b32 v{a+4}, v{a+6}")
        e(f"v_add_f32 v{out0}, v{a}, v{a+2}")
        e(f"v_add_f32 v{out1}, v{a+4}, v{a+6}")
    def perm_reg(dst, t):
        e(f"v_and_b32 v{dst}, 1, v{vR}")
        e(f"v_lshlrev_b32 v{dst}, 1, v{dst}")
        e(f"v_lshrrev_b32 v{t}, 1, v{vR}")
        e(f"v_or_b32 v{dst}, v{dst}, v{t}")

    e(f"s_cmp_ge_u32 s2, 256")
    e(f"s_cbranch_scc1 L_end")
    stamp(0)
    e(f"s_load_dwordx16 s[16:31], s[0:1], 0")
    e(f"s_load_dwordx8 s[32:39], s[0:1], 64")
    e(f"s_load_dwordx2 s[40:41], s[0:1], 96")
    e(f"v_and_b32 v{vLane}, 63, v0")
    e(f"v_lshrrev_b32 v{vT0}, 6, v0")
    e(f"v_readfirstlane_b32 s{sW}, v{vT0}")
    e(f"s_lshr_b32 s{sB}, s2, 5")
    e(f"s_and_b32 s{sH}, s2, 31")
    e(f"v_lshlrev_b32 v{vL16}, 4, v{vLane}")
    e(f"v_lshrrev_b32 v{vR}, 4, v{vLane}")
    e(f"v_and_b32 v{vC}, 15, v{vLane}")
    e(f"s_and_b32 s{sHw}, s{sW}, 3")
    e(f"s_mov_b32 s{sL2E}, {f32(1.4426950408889634)}")
    perm_reg(vT4, vT1)
    e(f"v_lshl_add_u32 v{vT0}, v{vC}, 3, v{vT4}")
    e(f"v_lshlrev_b32 v{vColAddr}, 2, v{vT0}")
    if cfg.streamfirst:
        e(f"s_cmp_lt_u32 s{sW}, 4")
        e(f"s_cbranch_scc1 L_helper")
    else:
        e(f"s_cmp_ge_u32 s{sW}, 4")
        e(f"s_cbranch_scc1 L_stream")

    vq = VQ(A)
    if cfg.streamfirst:
        A.lines.append("@@HELPER_BEGIN@@")
    if cfg.codepf:
        e(f"s_cmp_lg_u32 s{sHw}, 3")
        e(f"s_cbranch_scc1 L_nopf")
        e(f"s_getpc_b64 s[8:9]")
        A.label("L_pcref")
        e(f"s_sub_u32 s8, s8, L_pcref-{KN}")
        e(f"s_subb_u32 s9, s9, 0")
        e(f"s_lshr_b32 s10, s2, 3")
        e(f"s_mul_i32 s10, s10, 1088")
        e(f"s_min_u32 s10, s10, L_end-{KN}-2048")
        e(f"v_add_u32 v{vT0}, s10, v{vL16}")
        e(f"global_load_dwordx4 v[248:251], v{vT0}, s[8:9]")
        e(f"global_load_dwordx4 v[252:255], v{vT0}, s[8:9] offset:1024")
        A.label("L_nopf"); A.hist = []
    XR = 224
    XU = 230
    OWN = 240
    XL = [12, 14, 16]; XH = [13, 15, 17]
    YL = [18, 20, 22]; YH = [19, 21, 23]
    ACCQ = 24
    ACCH = 32
    vB1 = 36; vHL = 37; vHH = 38; vOff = 39
    MLPS = 40
    ACC2 = 50
    W = 64
    W1R = 244
    if cfg.rot:
        e(f"s_add_u32 s{sWr}, s{sHw}, s{sB}")
        e(f"s_and_b32 s{sWr}, s{sWr}, 3")
    else:
        e(f"s_mov_b32 s{sWr}, s{sHw}")
    e(f"s_and_b32 s{sS}, s{sH}, 7")
    e(f"s_lshl_b32 s{sS}, s{sS}, 2")
    e(f"s_lshr_b32 s{sT}, s{sH}, 3")
    e(f"s_add_u32 s{sS}, s{sS}, s{sT}")
    e(f"s_mul_i32 s{sTmp}, s{sWr}, 160")
    e(f"v_add_u32 v{vT0}, s{sTmp}, v{vR}")
    e(f"v_lshlrev_b32 v{vOff}, 13, v{vT0}")
    e(f"v_lshl_add_u32 v{vOff}, v{vC}, 4, v{vOff}")
    e(f"v_lshl_add_u32 v{vT1}, v{vC}, 2, v{vR}")
    e(f"v_add_u32 v{vT2}, s{sTmp}, v{vT1}")
    e(f"v_lshlrev_b32 v{vT2}, 1, v{vT2}")
    e(f"v_lshlrev_b32 v{vT3}, 2, v{vLane}")
    if cfg.fin in ('tag', 'tag8'):
        if cfg.coop: e(f"s_mov_b32 s{sTmp}, 0")
        else: e(f"s_lshl_b32 s{sTmp}, s{sB}, 8")
        e(f"s_waitcnt lgkmcnt(0)")
        e(f"s_load_dword s{sNonce}, s[{pWS}:{pWS+1}], s{sTmp}")
    e(f"v_mov_b32 v{vT5}, 0")
    e(f"ds_write_b32 v{vT5}, v{vT5} offset:{L_CNT}")
    e(f"ds_write_b32 v{vT5}, v{vT5} offset:{L_CNT+4}")
    e(f"ds_write_b32 v{vT5}, v{vT5} offset:{L_CNT+8}")
    e(f"ds_write_b32 v{vT5}, v{vT5} offset:{L_CNT+12}")
    e(f"ds_write_b32 v{vT5}, v{vT5} offset:{L_CNT+16}")
    e(f"s_waitcnt lgkmcnt(0)")
    if cfg.fin in ('tag', 'tag8'): e(f"s_add_u32 s{sNonce}, s{sNonce}, 1")
    if cfg.exp == 'noq':
        e(f"s_mul_i32 s{sTmp}, s{sB}, 1280")
        srd(SA, pX, sTmp, 1280)
        e(f"v_mov_b32 v{vT2}, 0"); e(f"v_mov_b32 v{vT3}, 0")
        e("s_barrier")
        e("s_branch L_qdone")
    if cfg.coop:
        XRc = 64; XUc = 74; OWN8 = 94; ST = 104; X8 = 120; Wq = 136; ACC8 = 160; RES8 = 74
        QGB = 1 << 20
        srd(SA, pX, None, 8*1280)
        e(f"v_lshrrev_b32 v{vT0}, 5, v{vLane}")
        e(f"s_lshl_b32 s{sTmp}, s{sHw}, 1")
        e(f"v_add_u32 v{vT0}, s{sTmp}, v{vT0}")
        e(f"v_mul_u32_u24 v{vT1}, 1280, v{vT0}")
        e(f"v_and_b32 v{vT2}, 31, v{vLane}")
        e(f"v_lshl_add_u32 v{vT3}, v{vT2}, 4, v{vT1}")
        e(f"v_lshl_add_u32 v{vT4}, v{vT2}, 3, v{vT1}")
        vq.issue("X", f"buffer_load_dwordx4 v[{XRc}:{XRc+3}], v{vT3}, s[{SA}:{SA+3}], 0 offen")
        vq.issue("X", f"buffer_load_dwordx4 v[{XRc+4}:{XRc+7}], v{vT3}, s[{SA}:{SA+3}], 0 offen offset:512")
        vq.issue("X", f"buffer_load_dwordx2 v[{XRc+8}:{XRc+9}], v{vT4}, s[{SA}:{SA+3}], 0 offen offset:1024")
        e(f"v_lshlrev_b32 v{vOff}, 3, v{vT0}")
        e(f"s_mul_i32 s{sTmp}, s{sB}, 80")
        e(f"s_mul_i32 s{sTmp2}, s{sHw}, 20")
        e(f"s_add_u32 s{sTmp}, s{sTmp}, s{sTmp2}")
        e(f"v_lshl_add_u32 v{vT1}, v{vC}, 2, v{vR}")
        e(f"v_add_u32 v{vT1}, s{sTmp}, v{vT1}")
        e(f"v_lshlrev_b32 v{vT1}, 1, v{vT1}")
        for bb in range(8):
            e(f"s_mov_b32 s{sT}, {bb*1280}")
            vq.issue("O", f"buffer_load_ushort v{OWN8+bb}, v{vT1}, s[{SA}:{SA+3}], s{sT} offen")
        e(f"s_lshl_b32 s{sT}, s{sH}, 8")
        srd(SC, pWQ, sT, 640*8192, size_sub=sT)
        e(f"v_add_u32 v{vT2}, s{sTmp}, v{vR}")
        e(f"v_lshlrev_b32 v{vT2}, 13, v{vT2}")
        e(f"v_lshl_add_u32 v{vT2}, v{vC}, 4, v{vT2}")
        for j in range(5):
            e(f"s_mov_b32 s{sT}, {j*32768}")
            vq.issue(("WQ", j), f"buffer_load_dwordx4 v[{Wq+4*j}:{Wq+4*j+3}], v{vT2}, s[{SC}:{SC+3}], s{sT} offen {cfg.wflag}")
        e(f"s_barrier")
    else:
        e(f"s_mul_i32 s{sTmp}, s{sB}, 1280")
        srd(SA, pX, sTmp, 1280)
        e(f"s_lshl_b32 s{sT}, s{sH}, 8")
        srd(SC, pWQ, sT, 640*8192, size_sub=sT)
        vq.issue("X", f"buffer_load_dwordx4 v[{XR}:{XR+3}], v{vL16}, s[{SA}:{SA+3}], 0 offen")
        vq.issue("X", f"buffer_load_dword v{XR+4}, v{vT3}, s[{SA}:{SA+3}], 0 offen offset:1024")
        for m in range(3):
            vq.issue("X", f"buffer_load_ushort v{OWN+m}, v{vT2}, s[{SA}:{SA+3}], 0 offen offset:{128*m}")
        def wq_load(j):
            e(f"s_mov_b32 s{sT}, {j*32768}")
            vq.issue(("WQ", j), f"buffer_load_dwordx4 v[{W+4*j}:{W+4*j+3}], v{vOff}, s[{SC}:{SC+3}], s{sT} offen {cfg.wflag}")
        nq = 0
        for j in range(cfg.Dh): wq_load(j); nq += 1
        e(f"s_barrier")
    def unpack_xr():
        for i in range(5):
            e(f"v_lshlrev_b32 v{XU+2*i}, 16, v{XR+i}")
            e(f"v_and_b32 v{XU+2*i+1}, 0xffff0000, v{XR+i}")
    def layernorm(norm_regs):
        s_, t1, mean, mb = vT0, vT1, vT2, vT3
        e(f"v_add_f32 v{s_}, v{XU}, v{XU+1}")
        e(f"v_add_f32 v{t1}, v{XU+2}, v{XU+3}")
        e(f"v_add_f32 v{mean}, v{XU+4}, v{XU+5}")
        e(f"v_add_f32 v{mb}, v{XU+6}, v{XU+7}")
        e(f"v_add_f32 v{s_}, v{s_}, v{t1}")
        e(f"v_add_f32 v{t1}, v{XU+8}, v{XU+9}")
        e(f"v_add_f32 v{mean}, v{mean}, v{mb}")
        e(f"v_add_f32 v{s_}, v{s_}, v{t1}")
        e(f"v_add_f32 v{s_}, v{s_}, v{mean}")
        wave_red(s_, t1, "v_add_f32")
        e(f"v_mul_f32 v{mean}, {f32(1.0/640)}, v{s_}")
        e(f"v_cvt_pk_bf16_f32 v{mb}, 0, v{mean}")
        e(f"v_sub_f32 v{t1}, v{XU}, v{mean}")
        e(f"v_mul_f32 v{s_}, v{t1}, v{t1}")
        for i in range(1, 10):
            e(f"v_sub_f32 v{t1}, v{XU+i}, v{mean}")
            e(f"v_fmac_f32 v{s_}, v{t1}, v{t1}")
        wave_red(s_, t1, "v_add_f32")
        e(f"v_mul_f32 v{s_}, {f32(1.0/640)}, v{s_}")
        e(f"v_cvt_pk_bf16_f32 v{s_}, 0, v{s_}")
        e(f"v_add_f32 v{s_}, {f32(1e-5)}, v{s_}")
        e(f"v_cvt_pk_bf16_f32 v{s_}, 0, v{s_}")
        e(f"v_sqrt_f32 v{s_}, v{s_}")
        e(f"v_cvt_pk_bf16_f32 v{s_}, 0, v{s_}")
        e(f"v_rcp_f32 v{s_}, v{s_}")
        for r in norm_regs: e(f"v_sub_f32 v{r}, v{r}, v{mb}")
        for r in norm_regs: e(f"v_cvt_pk_bf16_f32 v{r}, 0, v{r}")
        for r in norm_regs: e(f"v_mul_f32 v{r}, v{r}, v{s_}")
        for r in norm_regs: e(f"v_cvt_pk_bf16_f32 v{r}, 0, v{r}")
    def lds_arrive_and_spin(off, n, name):
        e(f"v_mov_b32 v{vT0}, 0")
        e(f"v_mov_b32 v{vT1}, 1")
        e(f"s_waitcnt lgkmcnt(0)")
        e(f"s_mov_b64 exec, 1")
        e(f"ds_add_u32 v{vT0}, v{vT1} offset:{off}")
        e(f"s_mov_b64 exec, -1")
        A.label(f"L_spin_{name}"); A.hist = []
        e(f"ds_read_b32 v{vT1}, v{vT0} offset:{off}")
        e(f"s_waitcnt lgkmcnt(0)")
        e(f"v_readfirstlane_b32 s{sT}, v{vT1}")
        e(f"s_cmp_lt_u32 s{sT}, {n}")
        e(f"s_cbranch_scc1 L_spin_{name}")
        A.hist = []
    if cfg.coop:
        vq.wait("X")
        for i in range(10):
            e(f"v_lshlrev_b32 v{XUc+2*i}, 16, v{XRc+i}")
            e(f"v_and_b32 v{XUc+2*i+1}, 0xffff0000, v{XRc+i}")
        def red32(v, t1):
            e(f"v_add_f32_dpp v{v}, v{v}, v{v} quad_perm:[1,0,3,2] row_mask:0xf bank_mask:0xf")
            e(f"v_add_f32_dpp v{v}, v{v}, v{v} quad_perm:[2,3,0,1] row_mask:0xf bank_mask:0xf")
            e(f"v_add_f32_dpp v{v}, v{v}, v{v} row_half_mirror row_mask:0xf bank_mask:0xf")
            e(f"v_add_f32_dpp v{v}, v{v}, v{v} row_mirror row_mask:0xf bank_mask:0xf")
            e(f"v_mov_b32 v{t1}, v{v}")
            e(f"v_permlane16_swap_b32 v{v}, v{t1}")
            e(f"v_add_f32 v{v}, v{v}, v{t1}")
        a0, a1, a2, a3 = vT0, vT1, vT2, vT3
        for k, a_ in enumerate((a0, a1, a2, a3)):
            e(f"v_add_f32 v{a_}, v{XUc+k}, v{XUc+4+k}")
        for base in (8, 12, 16):
            for k, a_ in enumerate((a0, a1, a2, a3)):
                e(f"v_add_f32 v{a_}, v{a_}, v{XUc+base+k}")
        e(f"v_add_f32 v{a0}, v{a0}, v{a1}")
        e(f"v_add_f32 v{a2}, v{a2}, v{a3}")
        e(f"v_add_f32 v{a0}, v{a0}, v{a2}")
        red32(a0, a1)
        e(f"v_mul_f32 v{vT4}, {f32(1.0/640)}, v{a0}")
        e(f"v_cvt_pk_bf16_f32 v{ST}, 0, v{vT4}")
        for i in range(20): e(f"v_sub_f32 v{XUc+i}, v{XUc+i}, v{vT4}")
        for k, a_ in enumerate((a0, a1, a2, a3)):
            e(f"v_mul_f32 v{a_}, v{XUc+k}, v{XUc+k}")
        for base in (4, 8, 12, 16):
            for k, a_ in enumerate((a0, a1, a2, a3)):
                e(f"v_fmac_f32 v{a_}, v{XUc+base+k}, v{XUc+base+k}")
        e(f"v_add_f32 v{a0}, v{a0}, v{a1}")
        e(f"v_add_f32 v{a2}, v{a2}, v{a3}")
        e(f"v_add_f32 v{a0}, v{a0}, v{a2}")
        red32(a0, a1)
        e(f"v_mul_f32 v{a0}, {f32(1.0/640)}, v{a0}")
        e(f"v_cvt_pk_bf16_f32 v{a0}, 0, v{a0}")
        e(f"v_add_f32 v{a0}, {f32(1e-5)}, v{a0}")
        e(f"v_cvt_pk_bf16_f32 v{a0}, 0, v{a0}")
        e(f"v_sqrt_f32 v{a0}, v{a0}")
        e(f"v_cvt_pk_bf16_f32 v{a0}, 0, v{a0}")
        e(f"v_rcp_f32 v{ST+1}, v{a0}")
        e(f"ds_write_b64 v{vOff}, v[{ST}:{ST+1}] offset:{L_ST}")
        lds_arrive_and_spin(L_CNT, 4, "st")
        e(f"v_mov_b32 v{vT0}, 0")
        for i in range(4):
            e(f"ds_read_b128 v[{ST+4*i}:{ST+4*i+3}], v{vT0} offset:{L_ST+16*i}")
        for i in range(64): e(f"v_mov_b32 v{ACC8+i}, 0")
        vq.wait("O")
        for bb in range(8): e(f"v_lshlrev_b32 v{OWN8+bb}, 16, v{OWN8+bb}")
        e(f"s_waitcnt lgkmcnt(0)")
        for bb in range(8): e(f"v_sub_f32 v{OWN8+bb}, v{OWN8+bb}, v{ST+2*bb}")
        for bb in range(8): e(f"v_cvt_pk_bf16_f32 v{OWN8+bb}, 0, v{OWN8+bb}")
        for bb in range(8): e(f"v_mul_f32 v{OWN8+bb}, v{OWN8+bb}, v{ST+2*bb+1}")
        for bb in range(8): e(f"v_cvt_pk_bf16_f32 v{X8+2*bb+1}, 0, v{OWN8+bb}")
        for bb in range(8): e(f"v_lshrrev_b32 v{X8+2*bb}, 16, v{X8+2*bb+1}")
        stamp(1)
        for j in range(5):
            vq.wait(("WQ", j))
            for bb in range(8):
                for d in range(4):
                    e(f"v_dot2c_f32_bf16_dpp v{ACC8+8*bb+2*d}, v{X8+2*bb}, v{Wq+4*j+d} {bc(j)}")
                    e(f"v_dot2c_f32_bf16_dpp v{ACC8+8*bb+2*d+1}, v{X8+2*bb+1}, v{Wq+4*j+d} {bc(j)}")
        e(f"s_lshl_b32 s{sT}, s{sHw}, 12")
        e(f"v_add_u32 v{vT5}, s{sT}, v{vColAddr}")
        e(f"v_add_u32 v{vT5}, {L_SC}, v{vT5}")
        for bb in range(8):
            reduce8(ACC8 + 8*bb, RES8 + 2*bb, RES8 + 2*bb + 1)
            e(f"ds_write_b32 v{vT5}, v{RES8+2*bb} offset:{bb*512}")
            e(f"ds_write_b32 v{vT5}, v{RES8+2*bb+1} offset:{bb*512+16}")
        e(f"s_mul_i32 s{sTmp}, s{sB}, 1280")
        srd(SA, pX, sTmp, 1280)
        e(f"s_mul_i32 s{sTmp}, s{sWr}, 160")
        e(f"v_lshl_add_u32 v{vT1}, v{vC}, 2, v{vR}")
        e(f"v_add_u32 v{vT2}, s{sTmp}, v{vT1}")
        e(f"v_lshlrev_b32 v{vT2}, 1, v{vT2}")
        e(f"v_lshlrev_b32 v{vT3}, 2, v{vLane}")
        lds_arrive_and_spin(L_CNT + 12, 4, "pq")
        e(f"s_lshl_b32 s{sT}, s{sHw}, 10")
        e(f"v_lshlrev_b32 v{vT0}, 3, v{vLane}")
        e(f"v_add_u32 v{vT4}, s{sT}, v{vT0}")
        e(f"v_add_u32 v{vT4}, {L_SC}, v{vT4}")
        PUB = 104
        for k in range(2):
            for w in range(4):
                e(f"ds_read_b64 v[{PUB+8*k+2*w}:{PUB+8*k+2*w+1}], v{vT4} offset:{w*4096 + k*512}")
        e(f"s_lshl_b32 s{sT}, s{sH}, 15")
        e(f"s_add_u32 s{sT}, s{sT}, {QGB}")
        srd(SE, pWS, sT, 32768)
        e(f"s_lshl_b32 s{sT}, s{sHw}, 13")
        e(f"s_lshl_b32 s{sTmp}, s{sB}, 9")
        e(f"s_add_u32 s{sT}, s{sT}, s{sTmp}")
        e(f"s_add_u32 s{sTmp}, s{sT}, 4096")
        e(f"s_and_b32 s{sTmp2}, s{sNonce}, 0xff")
        e(f"v_mov_b32 v{vT1}, 0xffffff00")
        e(f"v_mov_b32 v{vT5}, s{sTmp2}")
        e(f"s_waitcnt lgkmcnt(0)")
        for k in range(2):
            p = PUB + 8*k
            e(f"v_pk_add_f32 v[{p}:{p+1}], v[{p}:{p+1}], v[{p+2}:{p+3}]")
            e(f"v_pk_add_f32 v[{p+4}:{p+5}], v[{p+4}:{p+5}], v[{p+6}:{p+7}]")
        for k in range(2):
            p = PUB + 8*k
            e(f"v_pk_add_f32 v[{p}:{p+1}], v[{p}:{p+1}], v[{p+4}:{p+5}]")
        for k in range(2):
            p = PUB + 8*k
            e(f"v_add_u32 v{p}, 0x80, v{p}")
            e(f"v_add_u32 v{p+1}, 0x80, v{p+1}")
        for k in range(2):
            p = PUB + 8*k
            e(f"v_and_or_b32 v{p}, v{p}, v{vT1}, v{vT5}")
            e(f"v_and_or_b32 v{p+1}, v{p+1}, v{vT1}, v{vT5}")
        vq.issue("PUB", f"buffer_store_dwordx2 v[{PUB}:{PUB+1}], v{vT0}, s[{SE}:{SE+3}], s{sT} offen sc0 sc1")
        vq.issue("PUB", f"buffer_store_dwordx2 v[{PUB+8}:{PUB+9}], v{vT0}, s[{SE}:{SE+3}], s{sTmp} offen sc0 sc1")
        if cfg.exp2 == 'qpoll': stamp(3)
        e(f"s_cmp_lg_u32 s{sHw}, 0")
        e(f"s_cbranch_scc1 L_qdone")
        e(f"s_lshl_b32 s{sTmp}, s{sB}, 12")
        e(f"s_mov_b32 s{sSpin}, 0")
        G = 120; X = 136
        A.label("L_qpoll"); A.hist = []
        for i in range(4):
            e(f"buffer_load_dwordx4 v[{G+4*i}:{G+4*i+3}], v{vL16}, s[{SE}:{SE+3}], s{sTmp} offen offset:{i*1024} sc0 sc1")
        e(f"s_add_u32 s{sSpin}, s{sSpin}, 1")
        e(f"s_waitcnt vmcnt(0)")
        for k in range(16): e(f"v_xor_b32 v{X+k}, v{vT5}, v{G+k}")
        for k in range(0, 15, 3): e(f"v_or3_b32 v{X+k}, v{X+k}, v{X+k+1}, v{X+k+2}")
        e(f"v_or3_b32 v{X}, v{X}, v{X+3}, v{X+6}")
        e(f"v_or3_b32 v{X+9}, v{X+9}, v{X+12}, v{X+15}")
        e(f"v_or_b32 v{X}, v{X}, v{X+9}")
        e(f"v_and_b32 v{X}, 0xff, v{X}")
        e(f"v_cmp_ne_u32 vcc, 0, v{X}")
        e(f"s_cmp_gt_u32 s{sSpin}, 200000")
        e(f"s_cbranch_scc1 L_qgive")
        e(f"s_cmp_eq_u64 vcc, 0")
        e(f"s_cbranch_scc0 L_qpoll")
        A.label("L_qgive"); A.hist = []
        if cfg.exp2 == 'qpoll':
            stamp(4)
            e(f"s_mov_b32 s90, s{sSpin}")
            e(f"s_mov_b32 s91, 0")
        for k in range(16): e(f"v_and_b32 v{G+k}, 0xffffff00, v{G+k}")
        for k in range(4):
            e(f"v_add_f32 v{G+k}, v{G+k}, v{G+4+k}")
            e(f"v_add_f32 v{G+8+k}, v{G+8+k}, v{G+12+k}")
        for k in range(4): e(f"v_add_f32 v{G+k}, v{G+k}, v{G+8+k}")
        for k in range(4): e(f"v_mov_b32 v{G+4+k}, v{G+k}")
        for k in range(4): e(f"v_permlane32_swap_b32 v{G+k}, v{G+4+k}")
        for k in range(4): e(f"v_add_f32 v{G+k}, v{G+k}, v{G+4+k}")
        e(f"v_cvt_pk_bf16_f32 v{G}, v{G}, v{G+1}")
        e(f"v_cvt_pk_bf16_f32 v{G+1}, v{G+2}, v{G+3}")
        e(f"v_and_b32 v{vT0}, 31, v{vLane}")
        e(f"v_lshlrev_b32 v{vT0}, 3, v{vT0}")
        e(f"ds_write_b64 v{vT0}, v[{G}:{G+1}] offset:{L_QB}")
        e(f"s_waitcnt lgkmcnt(0)")
        A.label("L_qdone"); A.hist = []
        vq.q = []
    else:
        vq.wait("X")
        unpack_xr()
        for m in range(3): e(f"v_lshlrev_b32 v{OWN+m}, 16, v{OWN+m}")
        layernorm([XU+i for i in range(10)] + [OWN+m for m in range(3)])
        for m in range(3):
            e(f"v_mov_b32 v{XH[m]}, v{OWN+m}")
            e(f"v_lshrrev_b32 v{XL[m]}, 16, v{OWN+m}")
        for i in range(8): e(f"v_mov_b32 v{ACCQ+i}, 0")
        stamp(1)
        for j in range(40):
            vq.wait(("WQ", j))
            if nq < 40: wq_load(nq); nq += 1
            m, jj = divmod(j, 16)
            for d in range(4):
                e(f"v_dot2c_f32_bf16_dpp v{ACCQ+2*d}, v{XL[m]}, v{W+4*j+d} {bc(jj)}")
                e(f"v_dot2c_f32_bf16_dpp v{ACCQ+2*d+1}, v{XH[m]}, v{W+4*j+d} {bc(jj)}")
        reduce8(ACCQ, vT2, vT3)
        e(f"s_lshl_b32 s{sT}, s{sHw}, 9")
        e(f"v_add_u32 v{vT0}, s{sT}, v{vColAddr}")
        e(f"ds_write2_b32 v{vT0}, v{vT2}, v{vT3} offset0:{L_QP//4} offset1:{L_QP//4+4}")
        e(f"v_mov_b32 v{vT0}, 0")
        e(f"v_mov_b32 v{vT1}, 1")
        e(f"s_waitcnt lgkmcnt(0)")
        e(f"s_mov_b64 exec, 1")
        e(f"ds_add_rtn_u32 v{vT2}, v{vT0}, v{vT1} offset:{L_CNT}")
        e(f"s_waitcnt lgkmcnt(0)")
        e(f"v_readfirstlane_b32 s{sT}, v{vT2}")
        e(f"s_mov_b64 exec, -1")
        e(f"s_cmp_lg_u32 s{sT}, 3")
        e(f"s_cbranch_scc1 L_qdone")
        e(f"v_lshlrev_b32 v{vT0}, 3, v{vLane}")
        for w in range(4):
            e(f"ds_read_b64 v[{XU+2*w}:{XU+2*w+1}], v{vT0} offset:{L_QP + w*512}")
        e(f"s_waitcnt lgkmcnt(0)")
        e(f"v_pk_add_f32 v[{XU}:{XU+1}], v[{XU}:{XU+1}], v[{XU+2}:{XU+3}]")
        e(f"v_pk_add_f32 v[{XU+4}:{XU+5}], v[{XU+4}:{XU+5}], v[{XU+6}:{XU+7}]")
        e(f"v_pk_add_f32 v[{XU}:{XU+1}], v[{XU}:{XU+1}], v[{XU+4}:{XU+5}]")
        e(f"v_cvt_pk_bf16_f32 v{XU}, v{XU}, v{XU+1}")
        e(f"v_lshlrev_b32 v{vT0}, 2, v{vLane}")
        e(f"ds_write_b32 v{vT0}, v{XU} offset:{L_QB}")
        e(f"s_waitcnt lgkmcnt(0)")
        A.label("L_qdone"); A.hist = []
    if cfg.exp2 == 'qready': stamp(5)
    e(f"s_barrier")
    stamp(2)
    if cfg.vtouch:
        e(f"s_lshl_b32 s{sT}, s2, 20")
        srd(SV, pV, sT, 1 << 20)
        if cfg.vtouch == 2: e(f"v_lshlrev_b32 v{vT0}, 14, v{vLane}")
        else: e(f"v_mov_b32 v{vT0}, 0")
        vq.issue("VT", f"buffer_load_dword v{vT5}, v{vT0}, s[{SV}:{SV+3}], 0 offen nt")
        vq.wait("VT")
    if cfg.coop:
        vq.issue("X2", f"buffer_load_dwordx4 v[{XR}:{XR+3}], v{vL16}, s[{SA}:{SA+3}], 0 offen")
        vq.issue("X2", f"buffer_load_dword v{XR+4}, v{vT3}, s[{SA}:{SA+3}], 0 offen offset:1024")
        for m in range(3):
            vq.issue("X2", f"buffer_load_ushort v{OWN+m}, v{vT2}, s[{SA}:{SA+3}], 0 offen offset:{128*m}")
        vq.wait("X2")
        unpack_xr()
        for m in range(3): e(f"v_lshlrev_b32 v{OWN+m}, 16, v{OWN+m}")
        layernorm([XU+i for i in range(10)] + [OWN+m for m in range(3)])
        layernorm([OWN+m for m in range(3)])
    else:
        unpack_xr()
        layernorm([XU+i for i in range(10)])
        for m in range(3): e(f"v_mov_b32 v{OWN+m}, v{XH[m]}")
        layernorm([OWN+m for m in range(3)])
    for m in range(3):
        e(f"v_mov_b32 v{YH[m]}, v{OWN+m}")
        e(f"v_lshrrev_b32 v{YL[m]}, 16, v{OWN+m}")
    for i in range(4): e(f"v_mov_b32 v{ACCH+i}, 0")
    e(f"s_mul_i32 s{sTmp2}, s{sS}, {0 if cfg.exp == 'hot' else 108}")
    srd(SD, pW1, sTmp2, 640*3456, size_sub=sTmp2)
    srd(SBq, pB1, sTmp2, 3456, size_sub=sTmp2)
    e(f"s_mul_i32 s{sTmp}, s{sWr}, 160")
    e(f"v_add_u32 v{vT0}, s{sTmp}, v{vR}")
    e(f"s_mov_b32 s{sT}, 3456")
    e(f"v_mul_lo_u32 v{vOff}, v{vT0}, s{sT}")
    e(f"v_lshl_add_u32 v{vOff}, v{vC}, 3, v{vOff}")
    e(f"v_lshlrev_b32 v{vT4}, 1, v{vLane}")
    vq.issue("B1", f"buffer_load_ushort v{vB1}, v{vT4}, s[{SBq}:{SBq+3}], 0 offen")
    NS1 = 6
    def w1_load(j):
        if cfg.exp == 'skip': return
        e(f"s_mov_b32 s{sT}, {j*13824}")
        r = W1R + 2*(j % NS1)
        vq.issue(("W1", j), f"buffer_load_dwordx2 v[{r}:{r+1}], v{vOff}, s[{SD}:{SD+3}], s{sT} offen {cfg.wflag}")
    d1 = min(2*cfg.Dw, NS1 - 1)
    n1 = 0
    for j in range(d1): w1_load(j); n1 += 1
    for j in range(40):
        vq.wait(("W1", j))
        if n1 < 40: w1_load(n1); n1 += 1
        m, jj = divmod(j, 16)
        r = W1R + 2*(j % NS1)
        for d in range(2):
            e(f"v_dot2c_f32_bf16_dpp v{ACCH+2*d}, v{YL[m]}, v{r+d} {bc(jj)}")
            e(f"v_dot2c_f32_bf16_dpp v{ACCH+2*d+1}, v{YH[m]}, v{r+d} {bc(jj)}")
    e(f"s_mul_i32 s{sT}, s{sS}, {0 if cfg.exp == 'hot' else 54*1280}")
    srd(SE, pW2, sT, 1728*1280, size_sub=sT)
    e(f"s_mul_i32 s{sTmp}, s{sHw}, 14")
    e(f"v_add_u32 v{vT0}, s{sTmp}, v{vR}")
    e(f"s_mov_b32 s{sT}, 1280")
    e(f"v_mul_lo_u32 v{vOff}, v{vT0}, s{sT}")
    e(f"v_lshl_add_u32 v{vOff}, v{vC}, 4, v{vOff}")
    for blk in range(5):
        for g in range(4):
            n = blk*4 + g
            if cfg.exp == 'skip': continue
            vq.limit((cfg.Dw2 or cfg.Dw) - 1)
            e(f"s_mov_b32 s{sT}, {g*5120}")
            vq.issue(("W2", blk), f"buffer_load_dwordx4 v[{W+4*n}:{W+4*n+3}], v{vOff}, s[{SE}:{SE+3}], s{sT} offen offset:{blk*256} {cfg.wflag}")
    e(f"v_permlane32_swap_b32 v{ACCH}, v{ACCH+1}")
    e(f"v_permlane32_swap_b32 v{ACCH+2}, v{ACCH+3}")
    e(f"v_add_f32 v{ACCH}, v{ACCH}, v{ACCH+1}")
    e(f"v_add_f32 v{ACCH+2}, v{ACCH+2}, v{ACCH+3}")
    e(f"v_permlane16_swap_b32 v{ACCH}, v{ACCH+2}")
    e(f"v_add_f32 v{ACCH}, v{ACCH}, v{ACCH+2}")
    perm_reg(vT4, vT1)
    e(f"v_lshl_add_u32 v{vT0}, v{vC}, 2, v{vT4}")
    e(f"v_lshlrev_b32 v{vT0}, 2, v{vT0}")
    e(f"s_lshl_b32 s{sT}, s{sHw}, 8")
    e(f"v_add_u32 v{vT0}, s{sT}, v{vT0}")
    e(f"ds_write_b32 v{vT0}, v{ACCH} offset:{L_HP}")
    e(f"v_mov_b32 v{vT0}, 0")
    e(f"v_mov_b32 v{vT1}, 1")
    e(f"s_waitcnt lgkmcnt(0)")
    e(f"s_mov_b64 exec, 1")
    e(f"ds_add_rtn_u32 v{vT2}, v{vT0}, v{vT1} offset:{L_CNT+4}")
    e(f"s_waitcnt lgkmcnt(0)")
    e(f"v_readfirstlane_b32 s{sT}, v{vT2}")
    e(f"s_mov_b64 exec, -1")
    vq.wait("B1")
    e(f"s_cmp_lg_u32 s{sT}, 3")
    e(f"s_cbranch_scc1 L_hwait")
    T = 230
    e(f"v_lshlrev_b32 v{vT0}, 2, v{vLane}")
    for w in range(4):
        e(f"ds_read_b32 v{T+w}, v{vT0} offset:{L_HP + w*256}")
    e(f"s_waitcnt lgkmcnt(0)")
    e(f"v_add_f32 v{T}, v{T}, v{T+1}")
    e(f"v_add_f32 v{T+2}, v{T+2}, v{T+3}")
    e(f"v_add_f32 v{T}, v{T}, v{T+2}")
    x_ = T
    e(f"v_cvt_pk_bf16_f32 v{x_}, 0, v{x_}")
    e(f"v_lshlrev_b32 v{vB1}, 16, v{vB1}")
    e(f"v_add_f32 v{x_}, v{x_}, v{vB1}")
    e(f"v_cvt_pk_bf16_f32 v{x_}, 0, v{x_}")
    e(f"v_mul_f32 v{vT1}, v{x_}, v{x_}")
    e(f"v_mul_f32 v{vT1}, v{vT1}, v{x_}")
    e(f"v_mov_b32 v{vT2}, {f32(0.044715)}")
    e(f"v_fma_f32 v{vT1}, v{vT1}, v{vT2}, v{x_}")
    e(f"v_mul_f32 v{vT1}, {f32(-2.0*math.sqrt(2.0/math.pi)*1.4426950408889634)}, v{vT1}")
    e(f"v_exp_f32 v{vT1}, v{vT1}")
    e(f"v_add_f32 v{vT1}, 1.0, v{vT1}")
    e(f"v_rcp_f32 v{vT1}, v{vT1}")
    e(f"v_mul_f32 v{x_}, v{x_}, v{vT1}")
    e(f"v_cvt_pk_bf16_f32 v{x_}, v{x_}, 0")
    e(f"v_cmp_gt_u32 vcc, 54, v{vLane}")
    e(f"v_cndmask_b32 v{x_}, 0, v{x_}, vcc")
    e(f"v_lshlrev_b32 v{vT0}, 1, v{vLane}")
    e(f"ds_write_b16 v{vT0}, v{x_} offset:{L_HB}")
    e(f"v_mov_b32 v{vT0}, 0")
    e(f"v_mov_b32 v{vT1}, 1")
    e(f"s_waitcnt lgkmcnt(0)")
    e(f"ds_write_b32 v{vT0}, v{vT1} offset:{L_CNT+8}")
    e(f"s_waitcnt lgkmcnt(0)")
    A.label("L_hwait"); A.hist = []
    e(f"v_mov_b32 v{vT0}, 0")
    A.label("L_hspin")
    e(f"ds_read_b32 v{vT1}, v{vT0} offset:{L_CNT+8}")
    e(f"s_waitcnt lgkmcnt(0)")
    e(f"v_readfirstlane_b32 s{sT}, v{vT1}")
    e(f"s_cmp_eq_u32 s{sT}, 0")
    e(f"s_cbranch_scc0 L_hgo")
    e(f"s_sleep 2")
    e(f"s_branch L_hspin")
    A.label("L_hgo"); A.hist = []
    e(f"s_mul_i32 s{sTmp}, s{sHw}, 14")
    e(f"v_lshl_add_u32 v{vT1}, v{vC}, 2, v{vR}")
    e(f"v_add_u32 v{vT2}, s{sTmp}, v{vT1}")
    e(f"v_and_b32 v{vT2}, 63, v{vT2}")
    e(f"v_lshlrev_b32 v{vT2}, 1, v{vT2}")
    e(f"ds_read_u16 v{vHL}, v{vT2} offset:{L_HB}")
    e(f"v_cmp_gt_u32 vcc, 14, v{vT1}")
    e(f"s_waitcnt lgkmcnt(0)")
    e(f"v_cndmask_b32 v{vHL}, 0, v{vHL}, vcc")
    e(f"v_lshlrev_b32 v{vHH}, 16, v{vHL}")
    for blk in range(5):
        for i in range(8): e(f"v_mov_b32 v{ACC2+i}, 0")
        vq.wait(("W2", blk))
        for g in range(4):
            r = W + 4*(blk*4 + g)
            for d in range(4):
                e(f"v_dot2c_f32_bf16_dpp v{ACC2+2*d}, v{vHL}, v{r+d} {bc(g)}")
                e(f"v_dot2c_f32_bf16_dpp v{ACC2+2*d+1}, v{vHH}, v{r+d} {bc(g)}")
        reduce8(ACC2, MLPS + 2*blk, MLPS + 2*blk + 1)
    if cfg.mfma:
        e(f"s_mul_i32 s{sT}, s{sHw}, 2560")
        e(f"v_add_u32 v{vT0}, s{sT}, v{vColAddr}")
        e(f"v_add_u32 v{vT0}, {L_MLP}, v{vT0}")
        for blk in range(5):
            e(f"ds_write_b32 v{vT0}, v{MLPS+2*blk} offset:{blk*512}")
            e(f"ds_write_b32 v{vT0}, v{MLPS+2*blk+1} offset:{blk*512+16}")
        STG = 224
        e(f"s_mul_i32 s{sT}, s{sH}, {128*1280}")
        srd(SC, pWO, sT, 4096*1280, size_sub=sT)
        e(f"s_lshl_b32 s{sTmp}, s{sHw}, 5")
        e(f"v_lshlrev_b32 v{vT0}, 3, v{vR}")
        e(f"v_add_u32 v{vT0}, s{sTmp}, v{vT0}")
        e(f"s_mov_b32 s{sT}, 1280")
        e(f"v_mul_lo_u32 v{vOff}, v{vT0}, s{sT}")
        e(f"v_lshl_add_u32 v{vOff}, v{vC}, 4, v{vOff}")
        e(f"s_mov_b32 s9, 0x05040100")
        e(f"s_mov_b32 s10, 0x07060302")
        for blk in range(5):
            for ee_ in range(8):
                vq.limit((cfg.Dwo or cfg.Dw) - 1)
                e(f"s_mov_b32 s{sT}, {ee_*1280}")
                vq.issue(("WO", blk), f"buffer_load_dwordx4 v[{STG+4*ee_}:{STG+4*ee_+3}], v{vOff}, s[{SC}:{SC+3}], s{sT} offen offset:{blk*256} {cfg.wflag}")
            vq.wait(("WO", blk))
            for d in range(4):
                for dd in range(4):
                    lo = STG + 4*(2*dd) + d; hi = STG + 4*(2*dd+1) + d
                    e(f"v_perm_b32 v{W + 32*blk + 4*(2*d) + dd}, v{hi}, v{lo}, s9")
                    e(f"v_perm_b32 v{W + 32*blk + 4*(2*d+1) + dd}, v{hi}, v{lo}, s10")
    else:
        e(f"s_mul_i32 s{sT}, s{sH}, {0 if cfg.exp == 'hot' else 128*1280}")
        srd(SC, pWO, sT, 4096*1280, size_sub=sT)
        e(f"s_lshl_b32 s{sTmp}, s{sHw}, 5")
        e(f"v_add_u32 v{vT0}, s{sTmp}, v{vR}")
        e(f"s_mov_b32 s{sT}, 1280")
        e(f"v_mul_lo_u32 v{vOff}, v{vT0}, s{sT}")
        e(f"v_lshl_add_u32 v{vOff}, v{vC}, 4, v{vOff}")
        for g in range(8):
            for blk in range(5):
                n = g*5 + blk
                if cfg.exp == 'skip': continue
                vq.limit((cfg.Dwo or cfg.Dw) - 1)
                e(f"s_mov_b32 s{sT}, {g*5120}")
                vq.issue(("WO", n), f"buffer_load_dwordx4 v[{W+4*n}:{W+4*n+3}], v{vOff}, s[{SC}:{SC+3}], s{sT} offen offset:{blk*256} {cfg.wflag}")
    vXB = 62
    vXB2 = 58
    if cfg.fin == 'tag8':
        e(f"s_mul_i32 s{sT}, s{sB}, 1280")
        e(f"s_mul_i32 s{sTmp}, s{sH}, 40")
        e(f"s_add_u32 s{sT}, s{sT}, s{sTmp}")
        srd(SBq, pX, sT, 40)
        srd(SD, pB2, sTmp, 40)
        e(f"v_and_b32 v{vT0}, 7, v{vLane}")
        e(f"v_lshlrev_b32 v{vT0}, 3, v{vT0}")
        vq.issue("XB", f"buffer_load_dwordx2 v[{vXB2}:{vXB2+1}], v{vT0}, s[{SBq}:{SBq+3}], 0 offen")
        vq.issue("XB", f"buffer_load_dwordx2 v[{vXB2+2}:{vXB2+3}], v{vT0}, s[{SD}:{SD+3}], 0 offen")
    if cfg.fin == 'tag':
        e(f"s_mul_i32 s{sT}, s{sB}, 1280")
        e(f"s_mul_i32 s{sTmp}, s{sH}, 40")
        e(f"s_add_u32 s{sT}, s{sT}, s{sTmp}")
        srd(SBq, pX, sT, 40)
        srd(SD, pB2, sTmp, 40)
        e(f"v_lshlrev_b32 v{vT0}, 2, v{vC}")
        vq.issue("XB", f"buffer_load_dword v{vXB}, v{vT0}, s[{SBq}:{SBq+3}], 0 offen")
        vq.issue("XB", f"buffer_load_dword v{vXB+1}, v{vT0}, s[{SD}:{SD+3}], 0 offen")
    if cfg.mfma:
        ML = 12; OV = 20; AB = 24; DD = 32; OPX = 224
        vMn, vL = 52, 53
        e(f"s_lshl_b32 s{sT}, s{sHw}, 5")
        e(f"v_lshlrev_b32 v{vT1}, 3, v{vR}")
        e(f"v_add_u32 v{vT1}, s{sT}, v{vT1}")
        e(f"v_lshlrev_b32 v{vT1}, 2, v{vT1}")
        e(f"v_mov_b32 v{vT0}, 0")
        e(f"s_mul_i32 s{sT}, s{sHw}, 2560")
        e(f"v_lshlrev_b32 v{vT5}, 5, v{vC}")
        e(f"v_lshl_add_u32 v{vT5}, v{vR}, 4, v{vT5}")
        e(f"v_add_u32 v{vT5}, s{sT}, v{vT5}")
        e(f"v_add_u32 v{vT5}, {L_OUT}, v{vT5}")
        vq.drain()
        e(f"s_waitcnt lgkmcnt(0)")
        if cfg.exp2 != 'qpoll': stamp(3)
        e(f"s_barrier")
        if cfg.exp2 != 'qpoll': stamp(4)
        e(f"ds_read_b128 v[{ML}:{ML+3}], v{vT0} offset:{L_ML}")
        e(f"ds_read_b128 v[{ML+4}:{ML+7}], v{vT0} offset:{L_ML+16}")
        for w in range(4):
            e(f"ds_read_b128 v[{OPX+8*w}:{OPX+8*w+3}], v{vT1} offset:{L_OP + w*512}")
            e(f"ds_read_b128 v[{OPX+8*w+4}:{OPX+8*w+7}], v{vT1} offset:{L_OP + w*512 + 16}")
        e(f"s_waitcnt lgkmcnt(8)")
        e(f"v_max3_f32 v{vMn}, v{ML}, v{ML+2}, v{ML+4}")
        e(f"v_max_f32 v{vMn}, v{vMn}, v{ML+6}")
        for w in range(4): e(f"v_sub_f32 v{ML+2*w}, v{ML+2*w}, v{vMn}")
        for w in range(4): e(f"v_mul_f32 v{ML+2*w}, s{sL2E}, v{ML+2*w}")
        for w in range(4): e(f"v_exp_f32 v{ML+2*w}, v{ML+2*w}")
        e(f"v_mul_f32 v{vL}, v{ML}, v{ML+1}")
        for w in range(1, 4): e(f"v_fmac_f32 v{vL}, v{ML+2*w}, v{ML+2*w+1}")
        e(f"v_rcp_f32 v{vL}, v{vL}")
        for w in range(4): e(f"v_mul_f32 v{ML+2*w}, v{ML+2*w}, v{vL}")
        e(f"s_waitcnt lgkmcnt(0)")
        for k in range(8): e(f"v_mul_f32 v{OPX+k}, v{ML}, v{OPX+k}")
        for w in range(1, 4):
            for k in range(8): e(f"v_fmac_f32 v{OPX+k}, v{ML+2*w}, v{OPX+8*w+k}")
        for dd in range(4): e(f"v_cvt_pk_bf16_f32 v{OV+dd}, v{OPX+2*dd}, v{OPX+2*dd+1}")
        def build_a(i):
            ab = AB + 4*(i % 2)
            e(f"s_mov_b32 s12, {0x00010001 << i}")
            e(f"s_mov_b32 s13, s12")
            for dd in range(4): e(f"v_cndmask_b32 v{ab+dd}, 0, v{OV+dd}, s[12:13]")
        build_a(0); build_a(1)
        for i in range(8):
            ab = AB + 4*(i % 2)
            for blk in range(5):
                c_ = "0" if i == 0 else f"v[{DD+4*blk}:{DD+4*blk+3}]"
                t_ = W + 32*blk + 4*i
                e(f"v_mfma_f32_16x16x32_bf16 v[{DD+4*blk}:{DD+4*blk+3}], v[{ab}:{ab+3}], v[{t_}:{t_+3}], {c_}")
            if i + 2 < 8: build_a(i + 2)
        e(f"s_mov_b32 exec_hi, 0")
        for blk in range(5):
            e(f"ds_write_b128 v{vT5}, v[{DD+4*blk}:{DD+4*blk+3}] offset:{blk*512}")
        e(f"s_mov_b32 exec_hi, -1")
    else:
        ACCO = 224 - 0
        ACCO = 12
        acco = list(range(12, 40)) + list(range(50, 62))
        ACB = [12, 20, 28, 50, 224]
        for b_ in ACB:
            for i in range(8): e(f"v_mov_b32 v{b_+i}, 0")
        e(f"s_lshl_b32 s{sT}, s{sHw}, 5")
        e(f"v_lshl_add_u32 v{vT1}, v{vC}, 2, v{vR}")
        e(f"v_add_u32 v{vT1}, s{sT}, v{vT1}")
        e(f"v_and_b32 v{vT1}, 127, v{vT1}")
        e(f"v_lshlrev_b32 v{vT1}, 2, v{vT1}")
        e(f"v_mov_b32 v{vT0}, 0")
        vq.drain()
        if cfg.exp2 != 'qpoll': stamp(3)
        e(f"s_barrier")
        if cfg.exp2 != 'qpoll': stamp(4)
        ML = 232; OP = 240
        e(f"ds_read_b128 v[{ML}:{ML+3}], v{vT0} offset:{L_ML}")
        e(f"ds_read_b128 v[{ML+4}:{ML+7}], v{vT0} offset:{L_ML+16}")
        for w in range(4):
            e(f"ds_read_b32 v{OP+w}, v{vT1} offset:{L_OP + w*512}")
        e(f"s_waitcnt lgkmcnt(4)")
        vMn, vL, vE, vPL, vPH = 244, 245, 246, 247, 248
        e(f"v_max3_f32 v{vMn}, v{ML}, v{ML+2}, v{ML+4}")
        e(f"v_max_f32 v{vMn}, v{vMn}, v{ML+6}")
        for w in range(4): e(f"v_sub_f32 v{ML+2*w}, v{ML+2*w}, v{vMn}")
        for w in range(4): e(f"v_mul_f32 v{ML+2*w}, s{sL2E}, v{ML+2*w}")
        for w in range(4): e(f"v_exp_f32 v{ML+2*w}, v{ML+2*w}")
        e(f"s_waitcnt lgkmcnt(0)")
        e(f"v_mul_f32 v{vL}, v{ML}, v{ML+1}")
        e(f"v_mul_f32 v{vE}, v{ML}, v{OP}")
        for w in range(1, 4):
            e(f"v_fmac_f32 v{vL}, v{ML+2*w}, v{ML+2*w+1}")
            e(f"v_fmac_f32 v{vE}, v{ML+2*w}, v{OP+w}")
        e(f"v_rcp_f32 v{vL}, v{vL}")
        e(f"v_mul_f32 v{vE}, v{vE}, v{vL}")
        e(f"v_cvt_pk_bf16_f32 v{vPL}, v{vE}, 0")
        e(f"v_cvt_pk_bf16_f32 v{vPH}, 0, v{vE}")
        RES = 232
        for blk in range(5):
            for g in range(8):
                r = W + (g*5 + blk)*4
                for d in range(4):
                    e(f"v_dot2c_f32_bf16_dpp v{ACB[blk]+2*d}, v{vPL}, v{r+d} {bc(g)}")
                    e(f"v_dot2c_f32_bf16_dpp v{ACB[blk]+2*d+1}, v{vPH}, v{r+d} {bc(g)}")
            if blk > 0:
                reduce8(ACB[blk-1], RES + 2*(blk-1), RES + 2*(blk-1) + 1)
        reduce8(ACB[4], RES + 8, RES + 9)
        for i in range(10): e(f"v_add_f32 v{RES+i}, v{RES+i}, v{MLPS+i}")
        e(f"s_mul_i32 s{sT}, s{sHw}, 2560")
        e(f"v_add_u32 v{vT0}, s{sT}, v{vColAddr}")
        e(f"v_add_u32 v{vT0}, {L_OUT}, v{vT0}")
        for blk in range(5):
            e(f"ds_write_b32 v{vT0}, v{RES+2*blk} offset:{blk*512}")
            e(f"ds_write_b32 v{vT0}, v{RES+2*blk+1} offset:{blk*512+16}")
    e(f"s_waitcnt lgkmcnt(0)")
    e(f"s_barrier")
    if cfg.exp2 not in ('qpoll', 'qready'): stamp(5)
    if cfg.fin == 'tag8':
        GB = 4096
        e(f"s_and_b32 s{sTmp2}, s{sNonce}, 0xff")
        e(f"s_cmp_eq_u32 s{sW}, 3")
        e(f"s_cbranch_scc1 L_cons")
        e(f"v_cmp_gt_u32 vcc, 160, v0")
        e(f"s_and_saveexec_b64 s[{SAVE}:{SAVE+1}], vcc")
        e(f"v_lshlrev_b32 v{vT0}, 4, v0")
        Pp = 64
        for w in range(4):
            e(f"ds_read_b128 v[{Pp+4*w}:{Pp+4*w+3}], v{vT0} offset:{L_OUT + w*2560}")
        if cfg.mfma:
            e(f"v_add_u32 v{vT5}, {L_MLP}, v{vT0}")
            for w in range(4):
                e(f"ds_read_b128 v[{Pp+16+4*w}:{Pp+16+4*w+3}], v{vT5} offset:{w*2560}")
        e(f"s_mul_i32 s{sT}, s{sB}, {32*2560}")
        e(f"s_add_u32 s{sT}, s{sT}, {GB}")
        srd(SA, pWS, sT, 32*2560)
        e(f"v_mul_u32_u24 v{vT1}, 205, v0")
        e(f"v_lshrrev_b32 v{vT1}, 10, v{vT1}")
        e(f"v_mul_u32_u24 v{vT2}, 5, v{vT1}")
        e(f"v_sub_u32 v{vT2}, v0, v{vT2}")
        e(f"v_mul_u32_u24 v{vT1}, 2560, v{vT1}")
        e(f"v_lshl_add_u32 v{vT1}, v{vT2}, 4, v{vT1}")
        e(f"s_mul_i32 s{sT}, s{sH}, 80")
        e(f"v_mov_b32 v{vT3}, 0xffffff00")
        e(f"v_mov_b32 v{vT4}, s{sTmp2}")
        e(f"s_waitcnt lgkmcnt(0)")
        if cfg.mfma:
            for k in range(16):
                e(f"v_add_f32 v{Pp+k}, v{Pp+k}, v{Pp+16+k}")
        for k in range(4):
            e(f"v_add_f32 v{Pp+k}, v{Pp+k}, v{Pp+4+k}")
            e(f"v_add_f32 v{Pp+8+k}, v{Pp+8+k}, v{Pp+12+k}")
        for k in range(4):
            e(f"v_add_f32 v{Pp+k}, v{Pp+k}, v{Pp+8+k}")
        for k in range(4):
            e(f"v_add_u32 v{Pp+k}, 0x80, v{Pp+k}")
        for k in range(4):
            e(f"v_and_or_b32 v{Pp+k}, v{Pp+k}, v{vT3}, v{vT4}")
        e(f"buffer_store_dwordx4 v[{Pp}:{Pp+3}], v{vT1}, s[{SA}:{SA+3}], s{sT} offen sc0 sc1")
        e(f"s_branch L_fin")
        A.label("L_cons"); A.hist = []
        e(f"s_mul_i32 s{sT}, s2, 2560")
        e(f"s_add_u32 s{sT}, s{sT}, {GB}")
        srd(SA, pWS, sT, 2560)
        e(f"v_lshrrev_b32 v{vT0}, 3, v{vLane}")
        e(f"v_and_b32 v{vT4}, 7, v{vLane}")
        e(f"v_mul_u32_u24 v{vT1}, 80, v{vT0}")
        e(f"v_lshl_add_u32 v{vT1}, v{vT4}, 4, v{vT1}")
        e(f"s_mov_b32 s{sSpin}, 0")
        e(f"v_mov_b32 v{vT5}, s{sTmp2}")
        G = 64
        A.label("L_poll2"); A.hist = []
        for i in range(4):
            e(f"buffer_load_dwordx4 v[{G+4*i}:{G+4*i+3}], v{vT1}, s[{SA}:{SA+3}], 0 offen offset:{i*640} sc0 sc1")
        e(f"s_add_u32 s{sSpin}, s{sSpin}, 1")
        e(f"s_waitcnt vmcnt(0)")
        X = 84
        for k in range(16):
            e(f"v_xor_b32 v{X+k}, v{vT5}, v{G+k}")
        for k in range(0, 15, 3):
            e(f"v_or3_b32 v{X+k}, v{X+k}, v{X+k+1}, v{X+k+2}")
        e(f"v_or3_b32 v{X}, v{X}, v{X+3}, v{X+6}")
        e(f"v_or3_b32 v{X+9}, v{X+9}, v{X+12}, v{X+15}")
        e(f"v_or_b32 v{X}, v{X}, v{X+9}")
        e(f"v_and_b32 v{X}, 0xff, v{X}")
        e(f"v_cmp_gt_u32 vcc, 5, v{vT4}")
        e(f"v_cndmask_b32 v{X}, 0, v{X}, vcc")
        e(f"v_cmp_ne_u32 vcc, 0, v{X}")
        e(f"s_cmp_gt_u32 s{sSpin}, 200000")
        e(f"s_cbranch_scc1 L_fin")
        if cfg.psleep or cfg.padapt:
            e(f"s_cmp_eq_u64 vcc, 0")
            e(f"s_cbranch_scc1 L_pollok")
            if cfg.padapt:
                e(f"s_bcnt1_i32_b64 s{sT}, vcc")
                e(f"s_cmp_lt_u32 s{sT}, 16")
                e(f"s_cbranch_scc1 L_pollshort")
                e(f"s_sleep {cfg.padapt}")
                A.label("L_pollshort")
            if cfg.psleep: e(f"s_sleep {cfg.psleep}")
            e(f"s_branch L_poll2")
            A.label("L_pollok"); A.hist = []
        else:
            e(f"s_cmp_eq_u64 vcc, 0")
            e(f"s_cbranch_scc0 L_poll2")
        for k in range(16):
            e(f"v_and_b32 v{G+k}, 0xffffff00, v{G+k}")
        for k in range(4):
            e(f"v_add_f32 v{G+k}, v{G+k}, v{G+4+k}")
            e(f"v_add_f32 v{G+8+k}, v{G+8+k}, v{G+12+k}")
        for k in range(4):
            e(f"v_add_f32 v{G+k}, v{G+k}, v{G+8+k}")
        for k in range(4):
            e(f"v_add_f32_dpp v{G+k}, v{G+k}, v{G+k} row_ror:8 row_mask:0xf bank_mask:0xf")
        for k in range(4):
            e(f"v_mov_b32 v{G+4+k}, v{G+k}")
        for k in range(4):
            e(f"v_permlane16_swap_b32 v{G+k}, v{G+4+k}")
        for k in range(4):
            e(f"v_add_f32 v{G+k}, v{G+k}, v{G+4+k}")
        for k in range(4):
            e(f"v_mov_b32 v{G+4+k}, v{G+k}")
        for k in range(4):
            e(f"v_permlane32_swap_b32 v{G+k}, v{G+4+k}")
        for k in range(4):
            e(f"v_add_f32 v{G+k}, v{G+k}, v{G+4+k}")
        for k in range(4):
            for src in (vXB2 + 2 + k//2, vXB2 + k//2):
                if k % 2 == 0: e(f"v_lshlrev_b32 v{vT2}, 16, v{src}")
                else: e(f"v_and_b32 v{vT2}, 0xffff0000, v{src}")
                e(f"v_add_f32 v{G+k}, v{G+k}, v{vT2}")
        e(f"v_cvt_pk_bf16_f32 v{G+4}, v{G}, v{G+1}")
        e(f"v_cvt_pk_bf16_f32 v{G+5}, v{G+2}, v{G+3}")
        e(f"s_mul_i32 s{sT}, s{sB}, 1280")
        e(f"s_mul_i32 s{sTmp}, s{sH}, 40")
        e(f"s_add_u32 s{sT}, s{sT}, s{sTmp}")
        srd(SD, pOUT, sT, 40)
        e(f"v_lshlrev_b32 v{vT0}, 3, v{vLane}")
        e(f"buffer_store_dwordx2 v[{G+4}:{G+5}], v{vT0}, s[{SD}:{SD+3}], 0 offen")
        if cfg.coop:
            e(f"s_cmp_lg_u32 s2, 0")
            e(f"s_cbranch_scc1 L_fin")
            srd(SC, pWS, None, 4)
        else:
            e(f"s_cmp_lg_u32 s{sH}, 0")
            e(f"s_cbranch_scc1 L_fin")
            e(f"s_lshl_b32 s{sT}, s{sB}, 8")
            srd(SC, pWS, sT, 4)
        e(f"v_mov_b32 v{vT2}, s{sNonce}")
        e(f"buffer_store_dword v{vT2}, v{vT0}, s[{SC}:{SC+3}], 0 offen sc0 sc1")
        e(f"s_branch L_fin")
    elif cfg.fin == 'tag':
        GB = 4096
        e(f"s_cmp_eq_u32 s{sW}, 3")
        e(f"s_cbranch_scc1 L_cons")
        e(f"v_cmp_gt_u32 vcc, 160, v0")
        e(f"s_and_saveexec_b64 s[{SAVE}:{SAVE+1}], vcc")
        e(f"v_lshlrev_b32 v{vT0}, 4, v0")
        Pp = 64
        for w in range(4):
            e(f"ds_read_b128 v[{Pp+4*w}:{Pp+4*w+3}], v{vT0} offset:{L_OUT + w*2560}")
        e(f"s_mul_i32 s{sT}, s{sB}, {32*5120}")
        e(f"s_add_u32 s{sT}, s{sT}, {GB}")
        srd(SA, pWS, sT, 32*5120)
        e(f"v_mul_u32_u24 v{vT1}, 205, v0")
        e(f"v_lshrrev_b32 v{vT1}, 10, v{vT1}")
        e(f"v_mul_u32_u24 v{vT2}, 5, v{vT1}")
        e(f"v_sub_u32 v{vT2}, v0, v{vT2}")
        e(f"v_mul_u32_u24 v{vT1}, 5120, v{vT1}")
        e(f"v_lshl_add_u32 v{vT1}, v{vT2}, 5, v{vT1}")
        e(f"s_mul_i32 s{sT}, s{sH}, 160")
        e(f"v_mov_b32 v{Pp+17}, s{sNonce}")
        e(f"v_mov_b32 v{Pp+19}, s{sNonce}")
        e(f"v_mov_b32 v{Pp+21}, s{sNonce}")
        e(f"v_mov_b32 v{Pp+23}, s{sNonce}")
        e(f"s_waitcnt lgkmcnt(0)")
        for k in range(4):
            e(f"v_add_f32 v{Pp+k}, v{Pp+k}, v{Pp+4+k}")
            e(f"v_add_f32 v{Pp+8+k}, v{Pp+8+k}, v{Pp+12+k}")
        for k in range(4):
            e(f"v_add_f32 v{Pp+16+2*k}, v{Pp+k}, v{Pp+8+k}")
        e(f"buffer_store_dwordx4 v[{Pp+16}:{Pp+19}], v{vT1}, s[{SA}:{SA+3}], s{sT} offen sc0 sc1")
        e(f"buffer_store_dwordx4 v[{Pp+20}:{Pp+23}], v{vT1}, s[{SA}:{SA+3}], s{sT} offen offset:16 sc0 sc1")
        e(f"s_branch L_fin")
        A.label("L_cons"); A.hist = []
        e(f"s_mul_i32 s{sT}, s2, 5120")
        e(f"s_add_u32 s{sT}, s{sT}, {GB}")
        srd(SA, pWS, sT, 5120)
        e(f"v_mul_u32_u24 v{vT0}, 160, v{vLane}")
        e(f"v_mul_u32_u24 v{vT1}, 160, v{vR}")
        e(f"v_lshl_add_u32 v{vT1}, v{vC}, 4, v{vT1}")
        e(f"s_mov_b32 s{sSpin}, 0")
        e(f"s_mov_b32 s{sTmp}, 2560")
        G = 64
        A.label("L_poll1"); A.hist = []
        e(f"buffer_load_dwordx4 v[{G}:{G+3}], v{vT0}, s[{SA}:{SA+3}], 0 offen sc0 sc1")
        e(f"s_add_u32 s{sSpin}, s{sSpin}, 1")
        e(f"s_waitcnt vmcnt(0)")
        e(f"v_xor_b32 v{G}, s{sNonce}, v{G+1}")
        e(f"v_xor_b32 v{G+2}, s{sNonce}, v{G+3}")
        e(f"v_or_b32 v{G}, v{G}, v{G+2}")
        e(f"v_cmp_eq_u32 vcc, 0, v{G}")
        e(f"s_cmp_gt_u32 s{sSpin}, 200000")
        e(f"s_cbranch_scc1 L_fin")
        e(f"s_cmp_eq_u32 vcc_lo, -1")
        e(f"s_cbranch_scc0 L_poll1")
        A.label("L_poll2"); A.hist = []
        for i in range(8):
            so = "0" if i < 4 else f"s{sTmp}"
            e(f"buffer_load_dwordx4 v[{G+4*i}:{G+4*i+3}], v{vT1}, s[{SA}:{SA+3}], {so} offen offset:{(i%4)*640} sc0 sc1")
        e(f"s_add_u32 s{sSpin}, s{sSpin}, 1")
        e(f"s_waitcnt vmcnt(0)")
        e(f"v_xor_b32 v{vT2}, s{sNonce}, v{G+1}")
        for i in range(8):
            for k in (1, 3):
                if i == 0 and k == 1: continue
                e(f"v_xor_b32 v{vT3}, s{sNonce}, v{G+4*i+k}")
                e(f"v_or_b32 v{vT2}, v{vT2}, v{vT3}")
        e(f"v_cmp_gt_u32 vcc, 10, v{vC}")
        e(f"v_cndmask_b32 v{vT2}, 0, v{vT2}, vcc")
        e(f"v_cmp_ne_u32 vcc, 0, v{vT2}")
        e(f"s_cmp_gt_u32 s{sSpin}, 200000")
        e(f"s_cbranch_scc1 L_fin")
        e(f"s_cmp_eq_u64 vcc, 0")
        e(f"s_cbranch_scc0 L_poll2")
        for i in range(1, 8):
            e(f"v_add_f32 v{G}, v{G}, v{G+4*i}")
            e(f"v_add_f32 v{G+2}, v{G+2}, v{G+4*i+2}")
        for r in (G, G+2):
            e(f"v_mov_b32 v{vT2}, v{r}")
            e(f"v_permlane16_swap_b32 v{r}, v{vT2}")
            e(f"v_add_f32 v{r}, v{r}, v{vT2}")
            e(f"v_mov_b32 v{vT2}, v{r}")
            e(f"v_permlane32_swap_b32 v{r}, v{vT2}")
            e(f"v_add_f32 v{r}, v{r}, v{vT2}")
        e(f"v_lshlrev_b32 v{vT2}, 16, v{vXB+1}")
        e(f"v_and_b32 v{vT3}, 0xffff0000, v{vXB+1}")
        e(f"v_add_f32 v{G}, v{G}, v{vT2}")
        e(f"v_add_f32 v{G+2}, v{G+2}, v{vT3}")
        e(f"v_lshlrev_b32 v{vT2}, 16, v{vXB}")
        e(f"v_and_b32 v{vT3}, 0xffff0000, v{vXB}")
        e(f"v_add_f32 v{G}, v{G}, v{vT2}")
        e(f"v_add_f32 v{G+2}, v{G+2}, v{vT3}")
        e(f"v_cvt_pk_bf16_f32 v{G}, v{G}, v{G+2}")
        e(f"s_mul_i32 s{sT}, s{sB}, 1280")
        e(f"s_mul_i32 s{sTmp}, s{sH}, 40")
        e(f"s_add_u32 s{sT}, s{sT}, s{sTmp}")
        srd(SD, pOUT, sT, 40)
        e(f"v_lshlrev_b32 v{vT0}, 2, v{vLane}")
        e(f"buffer_store_dword v{G}, v{vT0}, s[{SD}:{SD+3}], 0 offen")
        e(f"s_cmp_lg_u32 s{sH}, 0")
        e(f"s_cbranch_scc1 L_fin")
        e(f"s_lshl_b32 s{sT}, s{sB}, 8")
        srd(SC, pWS, sT, 4)
        e(f"v_mov_b32 v{vT2}, s{sNonce}")
        e(f"buffer_store_dword v{vT2}, v{vT0}, s[{SC}:{SC+3}], 0 offen sc0 sc1")
        e(f"s_branch L_fin")
    else:
        e(f"s_cmp_ge_u32 s{sW}, 3")
        e(f"s_cbranch_scc1 L_fin")
        e(f"v_cmp_gt_u32 vcc, 160, v0")
        e(f"s_and_saveexec_b64 s[{SAVE}:{SAVE+1}], vcc")
        e(f"v_lshlrev_b32 v{vT0}, 4, v0")
        Pp = 64
        for w in range(4):
            e(f"ds_read_b128 v[{Pp+4*w}:{Pp+4*w+3}], v{vT0} offset:{L_OUT + w*2560}")
        e(f"s_mul_i32 s{sT}, s2, 2560")
        srd(SA, pWS, sT, 2560)
        e(f"s_waitcnt lgkmcnt(0)")
        for k in range(4):
            e(f"v_add_f32 v{Pp+k}, v{Pp+k}, v{Pp+4+k}")
            e(f"v_add_f32 v{Pp+8+k}, v{Pp+8+k}, v{Pp+12+k}")
        for k in range(4):
            e(f"v_add_f32 v{Pp+k}, v{Pp+k}, v{Pp+8+k}")
        e(f"buffer_store_dwordx4 v[{Pp}:{Pp+3}], v{vT0}, s[{SA}:{SA+3}], 0 offen sc0 sc1")
        e(f"s_mul_i32 s{sT}, s{sB}, 3")
        e(f"s_add_u32 s{sT}, s{sT}, s{sW}")
        e(f"s_lshl_b32 s{sT}, s{sT}, 2")
        e(f"s_mov_b64 s[{SAVE+2}:{SAVE+3}], exec")
        e(f"s_waitcnt vmcnt(0)")
        e(f"s_mov_b64 exec, 1")
        e(f"v_mov_b32 v{vT1}, s{sT}")
        e(f"v_mov_b32 v{vT2}, 1")
        e(f"global_atomic_add v{vT3}, v{vT1}, v{vT2}, s[{pDBG}:{pDBG+1}] sc0 sc1")
        e(f"s_waitcnt vmcnt(0)")
        e(f"v_readfirstlane_b32 s{sT}, v{vT3}")
        e(f"s_mov_b64 exec, s[{SAVE+2}:{SAVE+3}]")
        e(f"s_cmp_lg_u32 s{sT}, 31")
        e(f"s_cbranch_scc1 L_fin")
        e(f"s_mul_i32 s{sT}, s{sB}, {32*2560}")
        srd(SA, pWS, sT, 32*2560)
        for hh in range(32):
            r = 96 + 4*hh
            e(f"s_mov_b32 s{sT}, {hh*2560}")
            e(f"buffer_load_dwordx4 v[{r}:{r+3}], v{vT0}, s[{SA}:{SA+3}], s{sT} offen sc0 sc1")
        e(f"s_mul_i32 s{sT}, s{sB}, 1280")
        srd(SBq, pX, sT, 1280)
        srd(SC, pB2, None, 1280)
        srd(SD, pOUT, sT, 1280)
        e(f"v_lshlrev_b32 v{vT1}, 3, v0")
        e(f"buffer_load_dwordx2 v[{Pp}:{Pp+1}], v{vT1}, s[{SBq}:{SBq+3}], 0 offen")
        e(f"buffer_load_dwordx2 v[{Pp+2}:{Pp+3}], v{vT1}, s[{SC}:{SC+3}], 0 offen")
        for hh in range(1, 32):
            e(f"s_waitcnt vmcnt({2 + 31 - hh})")
            for k in range(4):
                e(f"v_add_f32 v{96+k}, v{96+k}, v{96+4*hh+k}")
        e(f"s_waitcnt vmcnt(0)")
        for k in range(4):
            src = Pp + k//2; src2 = Pp + 2 + k//2
            if k % 2 == 0:
                e(f"v_lshlrev_b32 v{vT2}, 16, v{src}")
                e(f"v_lshlrev_b32 v{vT3}, 16, v{src2}")
            else:
                e(f"v_and_b32 v{vT2}, 0xffff0000, v{src}")
                e(f"v_and_b32 v{vT3}, 0xffff0000, v{src2}")
            e(f"v_add_f32 v{96+k}, v{96+k}, v{vT3}")
            e(f"v_add_f32 v{96+k}, v{96+k}, v{vT2}")
        e(f"v_cvt_pk_bf16_f32 v{Pp+4}, v96, v97")
        e(f"v_cvt_pk_bf16_f32 v{Pp+5}, v98, v99")
        e(f"buffer_store_dwordx2 v[{Pp+4}:{Pp+5}], v{vT1}, s[{SD}:{SD+3}], 0 offen")
        e(f"s_branch L_fin")


    A.hist = []
    if cfg.streamfirst: A.lines.append("@@STREAM_BEGIN@@")
    A.label("L_stream")
    L = cfg.L; P = cfg.P
    Q = 12; ACC = 16; vM = 24; vSc = 25; S = 26
    vU0, vU1, vTt = 30, 31, 32
    vLs = 33; E2 = 34
    E2n = 36
    vPL, vPH, vE = 38, 39, 40
    RING = 44
    BIG = 76
    P2 = cfg.P2
    TMPR = BIG + 4*P
    assert BIG + 4*P + (16 if P2 else 0) <= 256 and P2 % 4 == 0 and (not P2 or P % 4 == 0)
    sPF = 8; vPF = 42
    e(f"s_mov_b32 s{sScale}, {f32(128**-0.5)}")
    sIss0 = 9
    e(f"s_lshl_b32 s{sIss0}, s{sHw}, { {'A': 12, 'B': 18, 'C': 10, 'D': 11}[cfg.amap] }")
    if cfg.krot:
        e(f"s_mul_i32 s{sT}, s2, {cfg.krot}")
        e(f"s_and_b32 s{sT}, s{sT}, 63")
        e(f"s_lshl_b32 s{sT}, s{sT}, 14")
        e(f"s_add_u32 s{sIss0}, s{sIss0}, s{sT}")
    e(f"s_mov_b32 s{sIss}, s{sIss0}")
    e(f"v_lshrrev_b32 v{vT0}, 2, v{vC}")
    e(f"v_lshl_add_u32 v{vT0}, v{vR}, 2, v{vT0}")
    e(f"s_lshl_b32 s{sT}, s{sHw}, 9")
    e(f"v_add_u32 v{vT0}, s{sT}, v{vT0}")
    e(f"v_lshlrev_b32 v{vSc}, 3, v{vT0}")
    e(f"v_add_u32 v{vSc}, {L_SC}, v{vSc}")
    e(f"s_waitcnt lgkmcnt(0)")
    if cfg.rank and cfg.rankmode == 'flag':
        e(f"s_load_dword s{sNonce}, s[{pWS}:{pWS+1}], 0")
    e(f"s_lshl_b32 s{sT}, s2, 20")
    srd(SK, pK, sT, 1 << 20)
    srd(SV, pV, sT, 1 << 20)
    if P2:
        e(f"s_mul_i32 s{sPF}, s{sHw}, {P2*1024}")
        e(f"s_add_u32 s{sPF}, s{sPF}, {L_PF}")
        e(f"v_add_u32 v{vPF}, s{sPF}, v{vL16}")
    def imm(j):
        if cfg.amap in ('A', 'B'): return j*1024
        if cfg.amap == 'C': return 0
        if cfg.amap == 'D': return (j % 2)*1024
    def adv(j):
        if cfg.amap == 'A':
            if j == 3:
                e(f"s_add_u32 s{sIss}, s{sIss}, 16384")
                if cfg.krot: e(f"s_and_b32 s{sIss}, s{sIss}, 0xfffff")
        elif cfg.amap == 'B':
            if j == 3: e(f"s_add_u32 s{sIss}, s{sIss}, 4096")
        elif cfg.amap == 'C':
            e(f"s_add_u32 s{sIss}, s{sIss}, 4096")
        elif cfg.amap == 'D':
            if j % 2 == 1: e(f"s_add_u32 s{sIss}, s{sIss}, 8192")
    slot = {}
    def issue_lds(n):
        k = n - P; j = n % 4
        e(f"s_add_u32 m0, s{sPF}, {k*1024 - imm(j)}")
        e(f"s_nop 0")
        e(f"buffer_load_dwordx4 v{vL16}, s[{SK}:{SK+3}], s{sIss} offen offset:{imm(j)} {cfg.kflag} lds")
        adv(j)
        slot[n] = ("L", k)
    def issue(n, reg):
        isV = n >= 256
        j = n % 4
        if n == 256: e(f"s_mov_b32 s{sIss}, s{sIss0}")
        srdr = SV if isV else SK
        fl = cfg.vflag if isV else cfg.kflag
        e(f"buffer_load_dwordx4 v[{reg}:{reg+3}], v{vL16}, s[{srdr}:{srdr+3}], s{sIss} offen offset:{imm(j)} {fl}")
        adv(j)
        slot[n] = reg
    m_ = "row_mask:0xf"
    def consumeK(n, scoff=None):
        j = n % 4; reg = slot[n]; i = n // 4
        if isinstance(reg, tuple):
            k = reg[1]
            if j == 0:
                for jj in range(4):
                    e(f"ds_read_b128 v[{TMPR+4*jj}:{TMPR+4*jj+3}], v{vPF} offset:{(k+jj)*1024}")
                e(f"s_waitcnt lgkmcnt(0)")
            reg = TMPR + 4*j
        for d in range(4):
            src2 = "0" if d == 0 else f"v{S+j}"
            e(f"v_dot2_f32_bf16 v{S+j}, v{reg+d}, v{Q+d}, {src2}")
        if j == 3:
            e(f"v_add_f32_dpp v{vU0}, v{S}, v{S} row_mirror {m_} bank_mask:0x3")
            e(f"v_add_f32_dpp v{vU1}, v{S+1}, v{S+1} row_mirror {m_} bank_mask:0x3")
            e(f"v_add_f32_dpp v{vU0}, v{S+2}, v{S+2} row_mirror {m_} bank_mask:0xc")
            e(f"v_add_f32_dpp v{vU1}, v{S+3}, v{S+3} row_mirror {m_} bank_mask:0xc")
            e(f"v_add_f32_dpp v{vTt}, v{vU0}, v{vU0} row_half_mirror {m_} bank_mask:0x5")
            e(f"v_add_f32_dpp v{vTt}, v{vU1}, v{vU1} row_half_mirror {m_} bank_mask:0xa")
            e(f"v_add_f32_dpp v{vTt}, v{vTt}, v{vTt} quad_perm:[1,0,3,2] {m_} bank_mask:0xf")
            e(f"v_add_f32_dpp v{vTt}, v{vTt}, v{vTt} quad_perm:[2,3,0,1] {m_} bank_mask:0xf")
            e(f"v_cvt_pk_bf16_f32 v{vTt}, 0, v{vTt}")
            e(f"v_mul_f32 v{vTt}, s{sScale}, v{vTt}")
            e(f"v_cvt_pk_bf16_f32 v{vTt}, 0, v{vTt}")
            e(f"ds_write_b32 v{vSc}, v{vTt} offset:{4*(i % 2)}")
            e(f"v_max_f32 v{vM}, v{vM}, v{vTt}")
            if i % 2 == 1: e(f"v_add_u32 v{vSc}, 128, v{vSc}")
    def consumeV(n):
        j = n % 4; reg = slot[n]; i = (n - 256) // 4
        if j == 0:
            if i % 2 == 0:
                e(f"s_waitcnt lgkmcnt(0)")
                e(f"v_sub_f32 v{E2}, v{E2n}, v{vM}")
                e(f"v_sub_f32 v{E2+1}, v{E2n+1}, v{vM}")
                e(f"ds_read_b64 v[{E2n}:{E2n+1}], v{vSc}")
                e(f"v_add_u32 v{vSc}, 128, v{vSc}")
                e(f"v_mul_f32 v{E2}, s{sL2E}, v{E2}")
                e(f"v_mul_f32 v{E2+1}, s{sL2E}, v{E2+1}")
                e(f"v_exp_f32 v{E2}, v{E2}")
                e(f"v_exp_f32 v{E2+1}, v{E2+1}")
                e(f"v_add_f32 v{vLs}, v{vLs}, v{E2}")
                e(f"v_add_f32 v{vLs}, v{vLs}, v{E2+1}")
            e(f"v_cvt_pk_bf16_f32 v{vPL}, v{E2 + i % 2}, 0")
            e(f"v_cvt_pk_bf16_f32 v{vPH}, 0, v{E2 + i % 2}")
        for d in range(4):
            e(f"v_dot2c_f32_bf16_dpp v{ACC+2*d}, v{vPL}, v{reg+d} {bc(4*j)}")
            e(f"v_dot2c_f32_bf16_dpp v{ACC+2*d+1}, v{vPH}, v{reg+d} {bc(4*j)}")
    Lp = cfg.Lp or L
    for n in range(P):
        if n == Lp: e(f"s_barrier")
        if n >= max(Lp, cfg.burst0): e(f"s_waitcnt vmcnt({Lp-1})")
        if cfg.exp2 == 'early' and n in (Lp, Lp+10, Lp+20, Lp+30):
            stamp({Lp: 3, Lp+10: 4, Lp+20: 5, Lp+30: 6}[n])
        issue(n, BIG + 4*n)
    for n in range(P, P + P2):
        e(f"s_waitcnt vmcnt({Lp-1})")
        issue_lds(n)
    if P <= Lp: e("s_barrier")
    stamp(1)
    e(f"s_barrier")
    e(f"v_lshlrev_b32 v{vT0}, 4, v{vC}")
    e(f"ds_read_b128 v[{Q}:{Q+3}], v{vT0} offset:{L_QB}")
    for i in range(8): e(f"v_mov_b32 v{ACC+i}, 0")
    e(f"v_mov_b32 v{vM}, 0xff800000")
    e(f"v_mov_b32 v{vLs}, 0")
    e(f"s_waitcnt lgkmcnt(0)")
    if cfg.rank and cfg.rankmode == 'flag': e(f"s_add_u32 s{sNonce}, s{sNonce}, 1")
    stamp(2)
    I = P + P2; C = 0
    free = []
    def alloc(n):
        return None
    while I - C > L:
        e(f"s_waitcnt vmcnt({L-1})")
        prev = I - 8
        ringreg = RING + 4*(I % 8)
        tenant = [n for n, r in slot.items() if r == ringreg and n >= C]
        if not tenant and (I - C) <= 16:
            reg = ringreg
        else:
            reg = free.pop(0) if free else None
            if reg is None:
                assert not tenant
                reg = ringreg
        issue(I, reg); I += 1
        for _ in range(2):
            if I - C > L:
                consumeK(C)
                if not isinstance(slot[C], tuple) and BIG <= slot[C]: free.append(slot[C])
                C += 1
    Kpat = cfg.Kpat or [L]*8
    Vpat = cfg.Vpat or [L]*8
    def target(n):
        if n >= 512: return 0
        t = Kpat[n % 8] if n < 256 else Vpat[n % 8]
        if n >= 512 - cfg.tailN: t = cfg.Ltail
        return min(t, 512 - n)
    def steady(nsteps_end):
        nonlocal I, C
        while C < nsteps_end:
            e(f"s_waitcnt vmcnt({I - C - 1})")
            while I < 512 and I - (C + 1) < target(C + 1):
                ringreg = RING + 4*(I % 8)
                assert not [n for n, r in slot.items() if r == ringreg and C <= n < I], (I, C)
                issue(I, ringreg); I += 1
            if C < 256: consumeK(C)
            else: consumeV(C)
            C += 1
    while not (C % 8 == 0 and I - C == target(C) and all(slot[n] == RING + 4*(n % 8) for n in range(C, I))):
        steady(C + 1)
    c0 = C
    niterK = (248 - c0) // 8
    assert niterK >= 1 and c0 + 8*niterK == 248, (c0, niterK)
    if cfg.exp2 == 'kstart': stamp(5)
    e(f"s_mov_b32 s{sCnt}, {niterK}")
    A.fence()
    A.label("L_kloop")
    steady(C + 8)
    e(f"s_sub_u32 s{sCnt}, s{sCnt}, 1")
    e(f"s_cmp_lg_u32 s{sCnt}, 0")
    A.fence()
    e(f"s_cbranch_scc1 L_kloop")
    shift = 248 - C
    for n in range(C, I): slot[n + shift] = slot[n]
    C += shift; I += shift
    vRank = 41
    if cfg.rank:
        e(f"s_cmp_lg_u32 s{sHw}, 0")
        e(f"s_cbranch_scc1 L_norank")
        if cfg.rankmode == 'atomic':
            e(f"s_mov_b64 exec, 1")
            e(f"v_mov_b32 v{vT0}, 0")
            e(f"v_mov_b32 v{vT1}, 1")
            e(f"global_atomic_add v{vRank}, v{vT0}, v{vT1}, s[{pDBG}:{pDBG+1}] sc0 sc1")
            e(f"s_mov_b64 exec, -1")
        else:
            e(f"s_and_b32 s{sT}, s2, 7")
            e(f"s_lshl_b32 s{sT}, s{sT}, 7")
            e(f"s_add_u32 s{sT}, s{sT}, {3 << 20}")
            e(f"v_and_b32 v{vT0}, 31, v{vLane}")
            e(f"v_lshlrev_b32 v{vT0}, 2, v{vT0}")
            e(f"v_add_u32 v{vT0}, s{sT}, v{vT0}")
            e(f"s_lshr_b32 s{sTmp}, s2, 3")
            e(f"s_lshl_b32 s{sTmp}, s{sTmp}, 2")
            e(f"s_add_u32 s{sTmp}, s{sTmp}, s{sT}")
            e(f"v_mov_b32 v{vT1}, s{sTmp}")
            e(f"v_mov_b32 v{vT2}, s{sNonce}")
            e(f"global_load_dword v{vRank}, v{vT0}, s[{pWS}:{pWS+1}] sc1")
            e(f"s_mov_b64 exec, 1")
            e(f"global_store_dword v{vT1}, v{vT2}, s[{pWS}:{pWS+1}]")
            e(f"s_mov_b64 exec, -1")
        A.label("L_norank"); A.hist = []
        Ia = I
        steady(Ia + 1)
        e(f"s_cmp_lg_u32 s{sHw}, 0")
        e(f"s_cbranch_scc1 L_norank2")
        if cfg.rankmode == 'atomic':
            e(f"v_readfirstlane_b32 s{sT}, v{vRank}")
        else:
            e(f"v_cmp_eq_u32 vcc, s{sNonce}, v{vRank}")
            e(f"s_bcnt1_i32_b32 s{sT}, vcc_lo")
            if cfg.exp2 == 'rankdbg':
                e(f"s_mov_b32 s90, s{sT}")
                e(f"s_mov_b32 s91, 0")
        e(f"s_mov_b32 s{sTmp}, 0")
        for k, (thr, pat) in enumerate(cfg.rank):
            e(f"s_cmp_ge_u32 s{sT}, {thr}")
            e(f"s_cselect_b32 s{sTmp}, {k+1}, s{sTmp}")
        e(f"v_mov_b32 v{vT0}, 0")
        e(f"v_mov_b32 v{vT1}, s{sTmp}")
        e(f"ds_write_b32 v{vT0}, v{vT1} offset:{L_CNT+16}")
        A.label("L_norank2"); A.hist = []
    steady(256)
    if cfg.exp2 != 'early': stamp(3)
    wave_red(vM, vT1, "v_max_f32")
    e(f"v_subrev_u32 v{vSc}, {32*128}, v{vSc}")
    e(f"s_waitcnt lgkmcnt(0)")
    e(f"ds_read_b64 v[{E2n}:{E2n+1}], v{vSc}")
    e(f"v_add_u32 v{vSc}, 128, v{vSc}")
    steady(264)
    def vsection(pat, sfx):
        nonlocal I, C, Vpat
        Vpat = pat
        steady(272)
        vend = 512 - 8 - cfg.tailN - (8 if cfg.tailN else 0)
        niterV = (vend - 272) // 8
        e(f"s_mov_b32 s{sCnt}, {niterV}")
        A.fence()
        A.label(f"L_vloop{sfx}")
        steady(C + 8)
        e(f"s_sub_u32 s{sCnt}, s{sCnt}, 1")
        e(f"s_cmp_lg_u32 s{sCnt}, 0")
        A.fence()
        e(f"s_cbranch_scc1 L_vloop{sfx}")
        shift = vend - C
        for n in range(C, I): slot[n + shift] = slot[n]
        C += shift; I += shift
        if cfg.tailN and cfg.deeptail:
            steady(512 - cfg.tailN - 1)
            pool = [RING + 4*i for i in range(8)] + [BIG + 4*i for i in range(8)]
            while C < 512:
                e(f"s_waitcnt vmcnt({I - C - 1})")
                while I < 512 and I - (C + 1) < target(C + 1):
                    busy = {slot[n] for n in range(C, I)}
                    reg = next(r for r in pool if r not in busy)
                    issue(I, reg); I += 1
                consumeV(C); C += 1
        elif cfg.tailN:
            steady(512 - cfg.tailN + 8)
            nt_ = (504 - C) // 8
            if nt_ > 0:
                e(f"s_mov_b32 s{sCnt}, {nt_}")
                A.fence()
                A.label(f"L_tloop{sfx}")
                steady(C + 8)
                e(f"s_sub_u32 s{sCnt}, s{sCnt}, 1")
                e(f"s_cmp_lg_u32 s{sCnt}, 0")
                A.fence()
                e(f"s_cbranch_scc1 L_tloop{sfx}")
                shift = 504 - C
                for n in range(C, I): slot[n + shift] = slot[n]
                C += shift; I += shift
        steady(512)
    if cfg.rank:
        e(f"v_mov_b32 v{vT0}, 0")
        e(f"ds_read_b32 v{vT1}, v{vT0} offset:{L_CNT+16}")
        e(f"s_waitcnt lgkmcnt(0)")
        e(f"v_readfirstlane_b32 s{sT}, v{vT1}")
        for k in range(len(cfg.rank)):
            e(f"s_cmp_eq_u32 s{sT}, {k+1}")
            e(f"s_cbranch_scc1 L_vsec{k+1}")
        base_pat = list(Vpat)
        saved = (I, C, dict(slot))
        pats = [base_pat] + [p for _, p in cfg.rank]
        for k, pat in enumerate(pats):
            I, C = saved[0], saved[1]
            slot.clear(); slot.update(saved[2])
            if k > 0:
                A.label(f"L_vsec{k}"); A.hist = []
            vsection(pat, f"_{k}")
            if k < len(pats) - 1:
                A.fence()
                e(f"s_branch L_vdone")
        A.label("L_vdone"); A.hist = []
    elif cfg.xccpat:
        e(f"s_getreg_b32 s{sT}, hwreg(HW_REG_XCC_ID)")
        e(f"s_and_b32 s{sT}, s{sT}, 3")
        e(f"s_cmp_eq_u32 s{sT}, 3")
        e(f"s_cbranch_scc1 L_vsec1")
        saved = (I, C, dict(slot))
        for k, pat in enumerate((cfg.xccpat[1], cfg.xccpat[0])):
            I, C = saved[0], saved[1]
            slot.clear(); slot.update(saved[2])
            if k > 0:
                A.label(f"L_vsec{k}"); A.hist = []
            vsection(pat, f"_{k}")
            if k == 0:
                A.fence()
                e(f"s_branch L_vdone")
        A.label("L_vdone"); A.hist = []
    else:
        vsection(Vpat, "")
    if cfg.exp2 != 'early': stamp(4)
    m = "row_mask:0xf bank_mask:0xf"
    e(f"v_add_f32_dpp v{vLs}, v{vLs}, v{vLs} row_half_mirror {m}")
    e(f"v_add_f32_dpp v{vLs}, v{vLs}, v{vLs} row_mirror {m}")
    e(f"v_mov_b32 v{vT1}, v{vLs}")
    e(f"v_permlane16_swap_b32 v{vLs}, v{vT1}")
    e(f"v_add_f32 v{vLs}, v{vLs}, v{vT1}")
    e(f"v_mov_b32 v{vT1}, v{vLs}")
    e(f"v_permlane32_swap_b32 v{vLs}, v{vT1}")
    e(f"v_add_f32 v35, v{vLs}, v{vT1}")
    e(f"v_mov_b32 v34, v{vM}")
    reduce8(ACC, vT2, vT3)
    e(f"s_lshl_b32 s{sT}, s{sHw}, 9")
    e(f"v_add_u32 v{vT0}, s{sT}, v{vColAddr}")
    e(f"v_add_u32 v{vT0}, {L_OP}, v{vT0}")
    e(f"ds_write2_b32 v{vT0}, v{vT2}, v{vT3} offset0:0 offset1:4")
    e(f"s_lshl_b32 s{sT}, s{sHw}, 3")
    e(f"v_mov_b32 v{vT0}, s{sT}")
    e(f"ds_write_b64 v{vT0}, v[34:35] offset:{L_ML}")
    e(f"s_waitcnt lgkmcnt(0)")
    e(f"s_barrier")
    if cfg.exp2 not in ('kstart', 'early', 'rankdbg'): stamp(5)
    if cfg.streamfirst:
        e("s_branch L_fin")
        A.lines.append("@@STREAM_END@@")
    A.label("L_fin"); A.hist = []
    if cfg.stamps:
        e("s_mov_b64 exec, -1")
        if cfg.exp2 == 'early':
            e(f"s_cmp_ge_u32 s{sW}, 4")
            e(f"s_cbranch_scc1 L_nost6")
        stamp(6)
        if cfg.exp2 == 'early': A.label("L_nost6")
        e("s_waitcnt lgkmcnt(0)")
        if cfg.dbgstamps:
            e(f"s_cmp_eq_u32 s{sW}, 3")
            e(f"s_cbranch_scc1 L_dbg3")
            e(f"s_cmp_eq_u32 s{sW}, 4")
            e(f"s_cbranch_scc0 L_end")
            e("s_mov_b64 exec, 1")
            for k, i in enumerate((1, 2, 3, 4)):
                e(f"v_mov_b32 v64, s{80+2*i}")
                e(f"v_not_b32 v65, v64")
                e(f"v_mov_b32 v66, {32 + 8*k}")
                e(f"global_atomic_umax v66, v64, s[{pDBG}:{pDBG+1}] sc1")
                e(f"global_atomic_umax v66, v65, s[{pDBG}:{pDBG+1}] offset:4 sc1")
            e("s_waitcnt vmcnt(0)")
            e("s_branch L_end")
            A.label("L_dbg3")
            e("s_mov_b64 exec, 1")
            for k, i in enumerate((0, 2, 5, 6)):
                e(f"v_mov_b32 v64, s{80+2*i}")
                e(f"v_not_b32 v65, v64")
                e(f"v_mov_b32 v66, {8*k}")
                e(f"global_atomic_umax v66, v64, s[{pDBG}:{pDBG+1}] sc1")
                e(f"global_atomic_umax v66, v65, s[{pDBG}:{pDBG+1}] offset:4 sc1")
            e("s_waitcnt vmcnt(0)")
            e("s_branch L_end")
        e(f"s_lshl_b32 s{sT}, s2, 3")
        e(f"s_add_u32 s{sT}, s{sT}, s{sW}")
        e(f"s_lshl_b32 s{sT}, s{sT}, 6")
        e(f"s_add_u32 s{sT}, s{sT}, {1<<20}")
        for i in range(14): e(f"v_mov_b32 v{64+i}, s{80+i}")
        e(f"s_getreg_b32 s{sTmp}, hwreg(HW_REG_XCC_ID)")
        e(f"v_mov_b32 v78, s{sTmp}")
        e(f"s_getreg_b32 s{sTmp}, hwreg(HW_REG_HW_ID)")
        e(f"v_mov_b32 v79, s{sTmp}")
        e(f"v_mov_b32 v{vT0}, s{sT}")
        e("s_mov_b64 exec, 1")
        for i in range(4):
            e(f"global_store_dwordx4 v{vT0}, v[{64+4*i}:{67+4*i}], s[{pWS}:{pWS+1}] offset:{16*i}")
        e("s_waitcnt vmcnt(0)")
    A.label("L_end")
    e("s_endpgm")
    body = A.text()
    if cfg.streamfirst:
        a_ = body.index("@@HELPER_BEGIN@@\n"); b_ = body.index("@@STREAM_BEGIN@@\n"); c_ = body.index("@@STREAM_END@@\n")
        head = body[:a_]; helper = body[a_+len("@@HELPER_BEGIN@@\n"):b_]; stream = body[b_+len("@@STREAM_BEGIN@@\n"):c_]; tail_ = body[c_+len("@@STREAM_END@@\n"):]
        body = head + stream + "L_helper:\n" + helper + tail_
    hdr = HDR + f"; @launch grid=(256,1,1) block=(512,1,1) lds={LDS_BYTES}\n" + DESC
    pre = f""".amdgcn_target "amdgcn-amd-amdhsa--gfx950"
.text
.globl {KN}
.p2align 8
.type {KN},@function
{KN}:
"""
    post = f""".section .rodata,"a"
.p2align 6
.amdhsa_kernel {KN}
  .amdhsa_next_free_vgpr 256
  .amdhsa_next_free_sgpr 102
  .amdhsa_accum_offset 256
  .amdhsa_group_segment_fixed_size 0
  .amdhsa_kernarg_size 104
  .amdhsa_user_sgpr_count 2
  .amdhsa_user_sgpr_kernarg_segment_ptr 1
  .amdhsa_system_sgpr_workgroup_id_x 1
  .amdhsa_float_denorm_mode_32 3
.end_amdhsa_kernel
"""
    return hdr + pre + body + post

if __name__ == "__main__":
    class C(Cfg): pass
    for a in sys.argv[2:]:
        k, v = a.split("=")
        setattr(C, k, eval(v))
    open(sys.argv[1], "w").write(gen(C))
```

```python
import sys, math, struct
from asmlib import Asm

KN = "parallel_sum__gqa_block_cached__mixer_channel_mlp__decode_kernel"
HDR = open("parallel_sum__gqa_block_cached__mixer_channel_mlp__decode.s.ref").read().split("; Override launch")[0]

def f32(x):
    return "0x%08x" % struct.unpack("<I", struct.pack("<f", x))[0]

DESC = """; One workgroup per (batch b, head h): id = 32*b + h.  8 waves:
;   Late in the V phase helper 3 compares the workgroup's progress with that of its peers (tagged progress words in
;   The 32 per-head partial rows of a batch are exchanged through d_ws as self-tagged words (low 8 bits = launch
"""

class Cfg:
    kflag = "nt"
    vflag = "nt"
    wflag = ""
    stamps = False
    rot = True
    L = 5
    P = 44
    Dh = 6
    Dw = 2
    Lp = None
    Kpat = None
    Vpat = None
    tailN = 0
    Ltail = 7
    exp = ''
    exp2 = ''
    dbgstamps = False
    ctrl = False
    cslow = [5,5,5,5,5,5,5,5]
    cd1 = 2
    xbias = 0
    pstride = 0
    cd2 = 2
    bigpf = False
    deeptail = False
    vtouch = 0
    burst0 = 0
    amap = 'A'
    krot = 0
    psleep = 0
    padapt = 0
    xccpat = None
    rankmode = 'flag'
    codepf = False
    streamfirst = False
    Dw2 = None
    Dwo = None
    mfma = False
    P2 = 0
    rank = None
    coop = False
    fin = 'tag8'

class VQ:
    def __init__(self, A):
        self.q = []; self.A = A
    def issue(self, tag, text):
        self.A(text); self.q.append(tag)
        assert len(self.q) <= 63, len(self.q)
    def wait(self, tag):
        idx = [i for i, t in enumerate(self.q) if t == tag]
        if not idx: return
        i = idx[-1]
        n = len(self.q) - 1 - i
        self.A(f"s_waitcnt vmcnt({n})")
        self.q = self.q[i+1:]
    def limit(self, n):
        if len(self.q) > n:
            self.A(f"s_waitcnt vmcnt({n})")
            self.q = self.q[len(self.q)-n:] if n else []
    def drain(self):
        self.A("s_waitcnt vmcnt(0)"); self.q = []

def gen(cfg=Cfg):
    A = Asm(); e = A
    vLane = 1; vL16 = 2; vR = 3; vC = 4
    vT0, vT1, vT2, vT3, vT4, vT5 = 5, 6, 7, 8, 9, 10
    vColAddr = 11
    sW = 3; sB = 4; sH = 5; sS = 6; sT = 7
    pX, pK, pV, pWQ, pWO, pBX, pW1, pB1 = 16, 18, 20, 22, 24, 26, 28, 30
    pW2, pB2, pOUT, pDBG = 32, 34, 36, 38
    pWS = 40
    SK, SV, SA, SBq, SC, SD, SE = 44, 48, 52, 56, 60, 64, 68
    sIss = 72; sCnt = 73; sScale = 74; sL2E = 75; sTmp = 76; sTmp2 = 77; sWr = 78; sHw = 79
    SAVE = 96
    sNonce = 100; sSpin = 101
    L_QP = 0
    L_HP = 2048
    L_QB = 3072
    L_HB = 3328
    L_ML = 3456
    L_CNT = 3488
    L_OP = 3584
    L_OUT = 5632
    L_ST = 3520
    L_PROG = 3520; L_MODE = 3536
    L_SC = 15872
    LDS_BYTES = L_SC + 16384 + 256
    if cfg.bigpf:
        L_SC = 5632
        L_PF = 22528
        assert L_SC + 16384 + 256 <= L_PF
        LDS_BYTES = L_PF + 4*cfg.P2*1024
        L_OUT = L_PF
        L_MLP = L_PF + 10240
    else:
        L_PF = 32768
        if cfg.P2: LDS_BYTES = L_PF + 4*cfg.P2*1024
        else: LDS_BYTES = L_PF
        L_MLP = LDS_BYTES
        if cfg.mfma: LDS_BYTES += 10240

    def srd(dst, ptr, off, size, size_sub=None):
        if off is None:
            e(f"s_mov_b32 s{dst}, s{ptr}")
            e(f"s_and_b32 s{dst+1}, s{ptr+1}, 0xffff")
        else:
            e(f"s_add_u32 s{dst}, s{ptr}, s{off}")
            e(f"s_addc_u32 s{dst+1}, s{ptr+1}, 0")
            e(f"s_and_b32 s{dst+1}, s{dst+1}, 0xffff")
        if size_sub is None: e(f"s_mov_b32 s{dst+2}, {size}")
        else: e(f"s_sub_u32 s{dst+2}, {size}, s{size_sub}")
        e(f"s_mov_b32 s{dst+3}, 0x20000")
    def stamp(i):
        if cfg.stamps: e(f"s_memrealtime s[{80+2*i}:{81+2*i}]")
    def bc(j): return f"row_newbcast:{j} row_mask:0xf bank_mask:0xf"
    def wave_red(v, t1, op):
        e(f"{op}_dpp v{v}, v{v}, v{v} quad_perm:[1,0,3,2] row_mask:0xf bank_mask:0xf")
        e(f"{op}_dpp v{v}, v{v}, v{v} quad_perm:[2,3,0,1] row_mask:0xf bank_mask:0xf")
        e(f"{op}_dpp v{v}, v{v}, v{v} row_half_mirror row_mask:0xf bank_mask:0xf")
        e(f"{op}_dpp v{v}, v{v}, v{v} row_mirror row_mask:0xf bank_mask:0xf")
        e(f"v_mov_b32 v{t1}, v{v}")
        e(f"v_permlane16_swap_b32 v{v}, v{t1}")
        e(f"{op} v{v}, v{v}, v{t1}")
        e(f"v_mov_b32 v{t1}, v{v}")
        e(f"v_permlane32_swap_b32 v{v}, v{t1}")
        e(f"{op} v{v}, v{v}, v{t1}")
    def reduce8(a, out0, out1):
        for p in range(4): e(f"v_permlane32_swap_b32 v{a+2*p}, v{a+2*p+1}")
        for p in range(4): e(f"v_add_f32 v{a+2*p}, v{a+2*p}, v{a+2*p+1}")
        e(f"v_permlane16_swap_b32 v{a}, v{a+2}")
        e(f"v_permlane16_swap_b32 v{a+4}, v{a+6}")
        e(f"v_add_f32 v{out0}, v{a}, v{a+2}")
        e(f"v_add_f32 v{out1}, v{a+4}, v{a+6}")
    def perm_reg(dst, t):
        e(f"v_and_b32 v{dst}, 1, v{vR}")
        e(f"v_lshlrev_b32 v{dst}, 1, v{dst}")
        e(f"v_lshrrev_b32 v{t}, 1, v{vR}")
        e(f"v_or_b32 v{dst}, v{dst}, v{t}")

    e(f"s_cmp_ge_u32 s2, 256")
    e(f"s_cbranch_scc1 L_end")
    stamp(0)
    e(f"s_load_dwordx16 s[16:31], s[0:1], 0")
    e(f"s_load_dwordx8 s[32:39], s[0:1], 64")
    e(f"s_load_dwordx2 s[40:41], s[0:1], 96")
    e(f"v_and_b32 v{vLane}, 63, v0")
    e(f"v_lshrrev_b32 v{vT0}, 6, v0")
    e(f"v_readfirstlane_b32 s{sW}, v{vT0}")
    e(f"s_lshr_b32 s{sB}, s2, 5")
    e(f"s_and_b32 s{sH}, s2, 31")
    e(f"v_lshlrev_b32 v{vL16}, 4, v{vLane}")
    e(f"v_lshrrev_b32 v{vR}, 4, v{vLane}")
    e(f"v_and_b32 v{vC}, 15, v{vLane}")
    e(f"s_and_b32 s{sHw}, s{sW}, 3")
    e(f"s_mov_b32 s{sL2E}, {f32(1.4426950408889634)}")
    perm_reg(vT4, vT1)
    e(f"v_lshl_add_u32 v{vT0}, v{vC}, 3, v{vT4}")
    e(f"v_lshlrev_b32 v{vColAddr}, 2, v{vT0}")
    if cfg.streamfirst:
        e(f"s_cmp_lt_u32 s{sW}, 4")
        e(f"s_cbranch_scc1 L_helper")
    else:
        e(f"s_cmp_ge_u32 s{sW}, 4")
        e(f"s_cbranch_scc1 L_stream")

    vq = VQ(A)
    if cfg.streamfirst:
        A.lines.append("@@HELPER_BEGIN@@")
    if cfg.codepf:
        e(f"s_cmp_lg_u32 s{sHw}, 3")
        e(f"s_cbranch_scc1 L_nopf")
        e(f"s_getpc_b64 s[8:9]")
        A.label("L_pcref")
        e(f"s_sub_u32 s8, s8, L_pcref-{KN}")
        e(f"s_subb_u32 s9, s9, 0")
        e(f"s_lshr_b32 s10, s2, 3")
        e(f"s_mul_i32 s10, s10, 1088")
        e(f"s_min_u32 s10, s10, L_end-{KN}-2048")
        e(f"v_add_u32 v{vT0}, s10, v{vL16}")
        e(f"global_load_dwordx4 v[248:251], v{vT0}, s[8:9]")
        e(f"global_load_dwordx4 v[252:255], v{vT0}, s[8:9] offset:1024")
        A.label("L_nopf"); A.hist = []
    XR = 224
    XU = 230
    OWN = 240
    XL = [12, 14, 16]; XH = [13, 15, 17]
    YL = [18, 20, 22]; YH = [19, 21, 23]
    ACCQ = 24
    ACCH = 32
    vB1 = 36; vHL = 37; vHH = 38; vOff = 39
    MLPS = 40
    ACC2 = 50
    W = 64
    W1R = 244
    if cfg.rot:
        e(f"s_add_u32 s{sWr}, s{sHw}, s{sB}")
        e(f"s_and_b32 s{sWr}, s{sWr}, 3")
    else:
        e(f"s_mov_b32 s{sWr}, s{sHw}")
    e(f"s_and_b32 s{sS}, s{sH}, 7")
    e(f"s_lshl_b32 s{sS}, s{sS}, 2")
    e(f"s_lshr_b32 s{sT}, s{sH}, 3")
    e(f"s_add_u32 s{sS}, s{sS}, s{sT}")
    e(f"s_mul_i32 s{sTmp}, s{sWr}, 160")
    e(f"v_add_u32 v{vT0}, s{sTmp}, v{vR}")
    e(f"v_lshlrev_b32 v{vOff}, 13, v{vT0}")
    e(f"v_lshl_add_u32 v{vOff}, v{vC}, 4, v{vOff}")
    e(f"v_lshl_add_u32 v{vT1}, v{vC}, 2, v{vR}")
    e(f"v_add_u32 v{vT2}, s{sTmp}, v{vT1}")
    e(f"v_lshlrev_b32 v{vT2}, 1, v{vT2}")
    e(f"v_lshlrev_b32 v{vT3}, 2, v{vLane}")
    if cfg.fin in ('tag', 'tag8'):
        if cfg.coop: e(f"s_mov_b32 s{sTmp}, 0")
        else: e(f"s_lshl_b32 s{sTmp}, s{sB}, 8")
        e(f"s_waitcnt lgkmcnt(0)")
        e(f"s_load_dword s{sNonce}, s[{pWS}:{pWS+1}], s{sTmp}")
        if cfg.ctrl: e(f"s_load_dword s11, s[{pWS}:{pWS+1}], 0")
    e(f"v_mov_b32 v{vT5}, 0")
    e(f"ds_write_b32 v{vT5}, v{vT5} offset:{L_CNT}")
    e(f"ds_write_b32 v{vT5}, v{vT5} offset:{L_CNT+4}")
    e(f"ds_write_b32 v{vT5}, v{vT5} offset:{L_CNT+8}")
    e(f"ds_write_b32 v{vT5}, v{vT5} offset:{L_CNT+12}")
    e(f"ds_write_b32 v{vT5}, v{vT5} offset:{L_CNT+16}")
    e(f"ds_write_b32 v{vT5}, v{vT5} offset:{L_CNT+20}")
    if cfg.ctrl:
        e(f"ds_write_b32 v{vT5}, v{vT5} offset:{L_PROG}")
        e(f"ds_write_b32 v{vT5}, v{vT5} offset:{L_MODE}")
    e(f"s_waitcnt lgkmcnt(0)")
    if cfg.fin in ('tag', 'tag8'): e(f"s_add_u32 s{sNonce}, s{sNonce}, 1")
    if cfg.exp == 'noq':
        e(f"s_mul_i32 s{sTmp}, s{sB}, 1280")
        srd(SA, pX, sTmp, 1280)
        e(f"v_mov_b32 v{vT2}, 0"); e(f"v_mov_b32 v{vT3}, 0")
        e("s_barrier")
        e("s_branch L_qdone")
    if cfg.coop:
        XRc = 64; XUc = 74; OWN8 = 94; ST = 104; X8 = 120; Wq = 136; ACC8 = 160; RES8 = 74
        QGB = 1 << 20
        srd(SA, pX, None, 8*1280)
        e(f"v_lshrrev_b32 v{vT0}, 5, v{vLane}")
        e(f"s_lshl_b32 s{sTmp}, s{sHw}, 1")
        e(f"v_add_u32 v{vT0}, s{sTmp}, v{vT0}")
        e(f"v_mul_u32_u24 v{vT1}, 1280, v{vT0}")
        e(f"v_and_b32 v{vT2}, 31, v{vLane}")
        e(f"v_lshl_add_u32 v{vT3}, v{vT2}, 4, v{vT1}")
        e(f"v_lshl_add_u32 v{vT4}, v{vT2}, 3, v{vT1}")
        vq.issue("X", f"buffer_load_dwordx4 v[{XRc}:{XRc+3}], v{vT3}, s[{SA}:{SA+3}], 0 offen")
        vq.issue("X", f"buffer_load_dwordx4 v[{XRc+4}:{XRc+7}], v{vT3}, s[{SA}:{SA+3}], 0 offen offset:512")
        vq.issue("X", f"buffer_load_dwordx2 v[{XRc+8}:{XRc+9}], v{vT4}, s[{SA}:{SA+3}], 0 offen offset:1024")
        e(f"v_lshlrev_b32 v{vOff}, 3, v{vT0}")
        e(f"s_mul_i32 s{sTmp}, s{sB}, 80")
        e(f"s_mul_i32 s{sTmp2}, s{sHw}, 20")
        e(f"s_add_u32 s{sTmp}, s{sTmp}, s{sTmp2}")
        e(f"v_lshl_add_u32 v{vT1}, v{vC}, 2, v{vR}")
        e(f"v_add_u32 v{vT1}, s{sTmp}, v{vT1}")
        e(f"v_lshlrev_b32 v{vT1}, 1, v{vT1}")
        for bb in range(8):
            e(f"s_mov_b32 s{sT}, {bb*1280}")
            vq.issue("O", f"buffer_load_ushort v{OWN8+bb}, v{vT1}, s[{SA}:{SA+3}], s{sT} offen")
        e(f"s_lshl_b32 s{sT}, s{sH}, 8")
        srd(SC, pWQ, sT, 640*8192, size_sub=sT)
        e(f"v_add_u32 v{vT2}, s{sTmp}, v{vR}")
        e(f"v_lshlrev_b32 v{vT2}, 13, v{vT2}")
        e(f"v_lshl_add_u32 v{vT2}, v{vC}, 4, v{vT2}")
        for j in range(5):
            e(f"s_mov_b32 s{sT}, {j*32768}")
            vq.issue(("WQ", j), f"buffer_load_dwordx4 v[{Wq+4*j}:{Wq+4*j+3}], v{vT2}, s[{SC}:{SC+3}], s{sT} offen {cfg.wflag}")
        e(f"s_barrier")
    else:
        e(f"s_mul_i32 s{sTmp}, s{sB}, 1280")
        srd(SA, pX, sTmp, 1280)
        e(f"s_lshl_b32 s{sT}, s{sH}, 8")
        srd(SC, pWQ, sT, 640*8192, size_sub=sT)
        vq.issue("X", f"buffer_load_dwordx4 v[{XR}:{XR+3}], v{vL16}, s[{SA}:{SA+3}], 0 offen")
        vq.issue("X", f"buffer_load_dword v{XR+4}, v{vT3}, s[{SA}:{SA+3}], 0 offen offset:1024")
        for m in range(3):
            vq.issue("X", f"buffer_load_ushort v{OWN+m}, v{vT2}, s[{SA}:{SA+3}], 0 offen offset:{128*m}")
        def wq_load(j):
            e(f"s_mov_b32 s{sT}, {j*32768}")
            vq.issue(("WQ", j), f"buffer_load_dwordx4 v[{W+4*j}:{W+4*j+3}], v{vOff}, s[{SC}:{SC+3}], s{sT} offen {cfg.wflag}")
        nq = 0
        for j in range(cfg.Dh): wq_load(j); nq += 1
        e(f"s_barrier")
    def unpack_xr():
        for i in range(5):
            e(f"v_lshlrev_b32 v{XU+2*i}, 16, v{XR+i}")
            e(f"v_and_b32 v{XU+2*i+1}, 0xffff0000, v{XR+i}")
    def layernorm(norm_regs):
        s_, t1, mean, mb = vT0, vT1, vT2, vT3
        e(f"v_add_f32 v{s_}, v{XU}, v{XU+1}")
        e(f"v_add_f32 v{t1}, v{XU+2}, v{XU+3}")
        e(f"v_add_f32 v{mean}, v{XU+4}, v{XU+5}")
        e(f"v_add_f32 v{mb}, v{XU+6}, v{XU+7}")
        e(f"v_add_f32 v{s_}, v{s_}, v{t1}")
        e(f"v_add_f32 v{t1}, v{XU+8}, v{XU+9}")
        e(f"v_add_f32 v{mean}, v{mean}, v{mb}")
        e(f"v_add_f32 v{s_}, v{s_}, v{t1}")
        e(f"v_add_f32 v{s_}, v{s_}, v{mean}")
        wave_red(s_, t1, "v_add_f32")
        e(f"v_mul_f32 v{mean}, {f32(1.0/640)}, v{s_}")
        e(f"v_cvt_pk_bf16_f32 v{mb}, 0, v{mean}")
        e(f"v_sub_f32 v{t1}, v{XU}, v{mean}")
        e(f"v_mul_f32 v{s_}, v{t1}, v{t1}")
        for i in range(1, 10):
            e(f"v_sub_f32 v{t1}, v{XU+i}, v{mean}")
            e(f"v_fmac_f32 v{s_}, v{t1}, v{t1}")
        wave_red(s_, t1, "v_add_f32")
        e(f"v_mul_f32 v{s_}, {f32(1.0/640)}, v{s_}")
        e(f"v_cvt_pk_bf16_f32 v{s_}, 0, v{s_}")
        e(f"v_add_f32 v{s_}, {f32(1e-5)}, v{s_}")
        e(f"v_cvt_pk_bf16_f32 v{s_}, 0, v{s_}")
        e(f"v_sqrt_f32 v{s_}, v{s_}")
        e(f"v_cvt_pk_bf16_f32 v{s_}, 0, v{s_}")
        e(f"v_rcp_f32 v{s_}, v{s_}")
        for r in norm_regs: e(f"v_sub_f32 v{r}, v{r}, v{mb}")
        for r in norm_regs: e(f"v_cvt_pk_bf16_f32 v{r}, 0, v{r}")
        for r in norm_regs: e(f"v_mul_f32 v{r}, v{r}, v{s_}")
        for r in norm_regs: e(f"v_cvt_pk_bf16_f32 v{r}, 0, v{r}")
    def lds_arrive_and_spin(off, n, name):
        e(f"v_mov_b32 v{vT0}, 0")
        e(f"v_mov_b32 v{vT1}, 1")
        e(f"s_waitcnt lgkmcnt(0)")
        e(f"s_mov_b64 exec, 1")
        e(f"ds_add_u32 v{vT0}, v{vT1} offset:{off}")
        e(f"s_mov_b64 exec, -1")
        A.label(f"L_spin_{name}"); A.hist = []
        e(f"ds_read_b32 v{vT1}, v{vT0} offset:{off}")
        e(f"s_waitcnt lgkmcnt(0)")
        e(f"v_readfirstlane_b32 s{sT}, v{vT1}")
        e(f"s_cmp_lt_u32 s{sT}, {n}")
        e(f"s_cbranch_scc1 L_spin_{name}")
        A.hist = []
    if cfg.coop:
        vq.wait("X")
        for i in range(10):
            e(f"v_lshlrev_b32 v{XUc+2*i}, 16, v{XRc+i}")
            e(f"v_and_b32 v{XUc+2*i+1}, 0xffff0000, v{XRc+i}")
        def red32(v, t1):
            e(f"v_add_f32_dpp v{v}, v{v}, v{v} quad_perm:[1,0,3,2] row_mask:0xf bank_mask:0xf")
            e(f"v_add_f32_dpp v{v}, v{v}, v{v} quad_perm:[2,3,0,1] row_mask:0xf bank_mask:0xf")
            e(f"v_add_f32_dpp v{v}, v{v}, v{v} row_half_mirror row_mask:0xf bank_mask:0xf")
            e(f"v_add_f32_dpp v{v}, v{v}, v{v} row_mirror row_mask:0xf bank_mask:0xf")
            e(f"v_mov_b32 v{t1}, v{v}")
            e(f"v_permlane16_swap_b32 v{v}, v{t1}")
            e(f"v_add_f32 v{v}, v{v}, v{t1}")
        a0, a1, a2, a3 = vT0, vT1, vT2, vT3
        for k, a_ in enumerate((a0, a1, a2, a3)):
            e(f"v_add_f32 v{a_}, v{XUc+k}, v{XUc+4+k}")
        for base in (8, 12, 16):
            for k, a_ in enumerate((a0, a1, a2, a3)):
                e(f"v_add_f32 v{a_}, v{a_}, v{XUc+base+k}")
        e(f"v_add_f32 v{a0}, v{a0}, v{a1}")
        e(f"v_add_f32 v{a2}, v{a2}, v{a3}")
        e(f"v_add_f32 v{a0}, v{a0}, v{a2}")
        red32(a0, a1)
        e(f"v_mul_f32 v{vT4}, {f32(1.0/640)}, v{a0}")
        e(f"v_cvt_pk_bf16_f32 v{ST}, 0, v{vT4}")
        for i in range(20): e(f"v_sub_f32 v{XUc+i}, v{XUc+i}, v{vT4}")
        for k, a_ in enumerate((a0, a1, a2, a3)):
            e(f"v_mul_f32 v{a_}, v{XUc+k}, v{XUc+k}")
        for base in (4, 8, 12, 16):
            for k, a_ in enumerate((a0, a1, a2, a3)):
                e(f"v_fmac_f32 v{a_}, v{XUc+base+k}, v{XUc+base+k}")
        e(f"v_add_f32 v{a0}, v{a0}, v{a1}")
        e(f"v_add_f32 v{a2}, v{a2}, v{a3}")
        e(f"v_add_f32 v{a0}, v{a0}, v{a2}")
        red32(a0, a1)
        e(f"v_mul_f32 v{a0}, {f32(1.0/640)}, v{a0}")
        e(f"v_cvt_pk_bf16_f32 v{a0}, 0, v{a0}")
        e(f"v_add_f32 v{a0}, {f32(1e-5)}, v{a0}")
        e(f"v_cvt_pk_bf16_f32 v{a0}, 0, v{a0}")
        e(f"v_sqrt_f32 v{a0}, v{a0}")
        e(f"v_cvt_pk_bf16_f32 v{a0}, 0, v{a0}")
        e(f"v_rcp_f32 v{ST+1}, v{a0}")
        e(f"ds_write_b64 v{vOff}, v[{ST}:{ST+1}] offset:{L_ST}")
        lds_arrive_and_spin(L_CNT, 4, "st")
        e(f"v_mov_b32 v{vT0}, 0")
        for i in range(4):
            e(f"ds_read_b128 v[{ST+4*i}:{ST+4*i+3}], v{vT0} offset:{L_ST+16*i}")
        for i in range(64): e(f"v_mov_b32 v{ACC8+i}, 0")
        vq.wait("O")
        for bb in range(8): e(f"v_lshlrev_b32 v{OWN8+bb}, 16, v{OWN8+bb}")
        e(f"s_waitcnt lgkmcnt(0)")
        for bb in range(8): e(f"v_sub_f32 v{OWN8+bb}, v{OWN8+bb}, v{ST+2*bb}")
        for bb in range(8): e(f"v_cvt_pk_bf16_f32 v{OWN8+bb}, 0, v{OWN8+bb}")
        for bb in range(8): e(f"v_mul_f32 v{OWN8+bb}, v{OWN8+bb}, v{ST+2*bb+1}")
        for bb in range(8): e(f"v_cvt_pk_bf16_f32 v{X8+2*bb+1}, 0, v{OWN8+bb}")
        for bb in range(8): e(f"v_lshrrev_b32 v{X8+2*bb}, 16, v{X8+2*bb+1}")
        stamp(1)
        for j in range(5):
            vq.wait(("WQ", j))
            for bb in range(8):
                for d in range(4):
                    e(f"v_dot2c_f32_bf16_dpp v{ACC8+8*bb+2*d}, v{X8+2*bb}, v{Wq+4*j+d} {bc(j)}")
                    e(f"v_dot2c_f32_bf16_dpp v{ACC8+8*bb+2*d+1}, v{X8+2*bb+1}, v{Wq+4*j+d} {bc(j)}")
        e(f"s_lshl_b32 s{sT}, s{sHw}, 12")
        e(f"v_add_u32 v{vT5}, s{sT}, v{vColAddr}")
        e(f"v_add_u32 v{vT5}, {L_SC}, v{vT5}")
        for bb in range(8):
            reduce8(ACC8 + 8*bb, RES8 + 2*bb, RES8 + 2*bb + 1)
            e(f"ds_write_b32 v{vT5}, v{RES8+2*bb} offset:{bb*512}")
            e(f"ds_write_b32 v{vT5}, v{RES8+2*bb+1} offset:{bb*512+16}")
        e(f"s_mul_i32 s{sTmp}, s{sB}, 1280")
        srd(SA, pX, sTmp, 1280)
        e(f"s_mul_i32 s{sTmp}, s{sWr}, 160")
        e(f"v_lshl_add_u32 v{vT1}, v{vC}, 2, v{vR}")
        e(f"v_add_u32 v{vT2}, s{sTmp}, v{vT1}")
        e(f"v_lshlrev_b32 v{vT2}, 1, v{vT2}")
        e(f"v_lshlrev_b32 v{vT3}, 2, v{vLane}")
        lds_arrive_and_spin(L_CNT + 12, 4, "pq")
        e(f"s_lshl_b32 s{sT}, s{sHw}, 10")
        e(f"v_lshlrev_b32 v{vT0}, 3, v{vLane}")
        e(f"v_add_u32 v{vT4}, s{sT}, v{vT0}")
        e(f"v_add_u32 v{vT4}, {L_SC}, v{vT4}")
        PUB = 104
        for k in range(2):
            for w in range(4):
                e(f"ds_read_b64 v[{PUB+8*k+2*w}:{PUB+8*k+2*w+1}], v{vT4} offset:{w*4096 + k*512}")
        e(f"s_lshl_b32 s{sT}, s{sH}, 15")
        e(f"s_add_u32 s{sT}, s{sT}, {QGB}")
        srd(SE, pWS, sT, 32768)
        e(f"s_lshl_b32 s{sT}, s{sHw}, 13")
        e(f"s_lshl_b32 s{sTmp}, s{sB}, 9")
        e(f"s_add_u32 s{sT}, s{sT}, s{sTmp}")
        e(f"s_add_u32 s{sTmp}, s{sT}, 4096")
        e(f"s_and_b32 s{sTmp2}, s{sNonce}, 0xff")
        e(f"v_mov_b32 v{vT1}, 0xffffff00")
        e(f"v_mov_b32 v{vT5}, s{sTmp2}")
        e(f"s_waitcnt lgkmcnt(0)")
        for k in range(2):
            p = PUB + 8*k
            e(f"v_pk_add_f32 v[{p}:{p+1}], v[{p}:{p+1}], v[{p+2}:{p+3}]")
            e(f"v_pk_add_f32 v[{p+4}:{p+5}], v[{p+4}:{p+5}], v[{p+6}:{p+7}]")
        for k in range(2):
            p = PUB + 8*k
            e(f"v_pk_add_f32 v[{p}:{p+1}], v[{p}:{p+1}], v[{p+4}:{p+5}]")
        for k in range(2):
            p = PUB + 8*k
            e(f"v_add_u32 v{p}, 0x80, v{p}")
            e(f"v_add_u32 v{p+1}, 0x80, v{p+1}")
        for k in range(2):
            p = PUB + 8*k
            e(f"v_and_or_b32 v{p}, v{p}, v{vT1}, v{vT5}")
            e(f"v_and_or_b32 v{p+1}, v{p+1}, v{vT1}, v{vT5}")
        vq.issue("PUB", f"buffer_store_dwordx2 v[{PUB}:{PUB+1}], v{vT0}, s[{SE}:{SE+3}], s{sT} offen sc0 sc1")
        vq.issue("PUB", f"buffer_store_dwordx2 v[{PUB+8}:{PUB+9}], v{vT0}, s[{SE}:{SE+3}], s{sTmp} offen sc0 sc1")
        if cfg.exp2 == 'qpoll': stamp(3)
        e(f"s_cmp_lg_u32 s{sHw}, 0")
        e(f"s_cbranch_scc1 L_qdone")
        e(f"s_lshl_b32 s{sTmp}, s{sB}, 12")
        e(f"s_mov_b32 s{sSpin}, 0")
        G = 120; X = 136
        A.label("L_qpoll"); A.hist = []
        for i in range(4):
            e(f"buffer_load_dwordx4 v[{G+4*i}:{G+4*i+3}], v{vL16}, s[{SE}:{SE+3}], s{sTmp} offen offset:{i*1024} sc0 sc1")
        e(f"s_add_u32 s{sSpin}, s{sSpin}, 1")
        e(f"s_waitcnt vmcnt(0)")
        for k in range(16): e(f"v_xor_b32 v{X+k}, v{vT5}, v{G+k}")
        for k in range(0, 15, 3): e(f"v_or3_b32 v{X+k}, v{X+k}, v{X+k+1}, v{X+k+2}")
        e(f"v_or3_b32 v{X}, v{X}, v{X+3}, v{X+6}")
        e(f"v_or3_b32 v{X+9}, v{X+9}, v{X+12}, v{X+15}")
        e(f"v_or_b32 v{X}, v{X}, v{X+9}")
        e(f"v_and_b32 v{X}, 0xff, v{X}")
        e(f"v_cmp_ne_u32 vcc, 0, v{X}")
        e(f"s_cmp_gt_u32 s{sSpin}, 200000")
        e(f"s_cbranch_scc1 L_qgive")
        e(f"s_cmp_eq_u64 vcc, 0")
        e(f"s_cbranch_scc0 L_qpoll")
        A.label("L_qgive"); A.hist = []
        if cfg.exp2 == 'qpoll':
            stamp(4)
            e(f"s_mov_b32 s90, s{sSpin}")
            e(f"s_mov_b32 s91, 0")
        for k in range(16): e(f"v_and_b32 v{G+k}, 0xffffff00, v{G+k}")
        for k in range(4):
            e(f"v_add_f32 v{G+k}, v{G+k}, v{G+4+k}")
            e(f"v_add_f32 v{G+8+k}, v{G+8+k}, v{G+12+k}")
        for k in range(4): e(f"v_add_f32 v{G+k}, v{G+k}, v{G+8+k}")
        for k in range(4): e(f"v_mov_b32 v{G+4+k}, v{G+k}")
        for k in range(4): e(f"v_permlane32_swap_b32 v{G+k}, v{G+4+k}")
        for k in range(4): e(f"v_add_f32 v{G+k}, v{G+k}, v{G+4+k}")
        e(f"v_cvt_pk_bf16_f32 v{G}, v{G}, v{G+1}")
        e(f"v_cvt_pk_bf16_f32 v{G+1}, v{G+2}, v{G+3}")
        e(f"v_and_b32 v{vT0}, 31, v{vLane}")
        e(f"v_lshlrev_b32 v{vT0}, 3, v{vT0}")
        e(f"ds_write_b64 v{vT0}, v[{G}:{G+1}] offset:{L_QB}")
        e(f"s_waitcnt lgkmcnt(0)")
        A.label("L_qdone"); A.hist = []
        vq.q = []
    else:
        vq.wait("X")
        unpack_xr()
        for m in range(3): e(f"v_lshlrev_b32 v{OWN+m}, 16, v{OWN+m}")
        layernorm([XU+i for i in range(10)] + [OWN+m for m in range(3)])
        for m in range(3):
            e(f"v_mov_b32 v{XH[m]}, v{OWN+m}")
            e(f"v_lshrrev_b32 v{XL[m]}, 16, v{OWN+m}")
        for i in range(8): e(f"v_mov_b32 v{ACCQ+i}, 0")
        stamp(1)
        for j in range(40):
            vq.wait(("WQ", j))
            if nq < 40: wq_load(nq); nq += 1
            m, jj = divmod(j, 16)
            for d in range(4):
                e(f"v_dot2c_f32_bf16_dpp v{ACCQ+2*d}, v{XL[m]}, v{W+4*j+d} {bc(jj)}")
                e(f"v_dot2c_f32_bf16_dpp v{ACCQ+2*d+1}, v{XH[m]}, v{W+4*j+d} {bc(jj)}")
        reduce8(ACCQ, vT2, vT3)
        e(f"s_lshl_b32 s{sT}, s{sHw}, 9")
        e(f"v_add_u32 v{vT0}, s{sT}, v{vColAddr}")
        e(f"ds_write2_b32 v{vT0}, v{vT2}, v{vT3} offset0:{L_QP//4} offset1:{L_QP//4+4}")
        e(f"v_mov_b32 v{vT0}, 0")
        e(f"v_mov_b32 v{vT1}, 1")
        e(f"s_waitcnt lgkmcnt(0)")
        e(f"s_mov_b64 exec, 1")
        e(f"ds_add_rtn_u32 v{vT2}, v{vT0}, v{vT1} offset:{L_CNT}")
        e(f"s_waitcnt lgkmcnt(0)")
        e(f"v_readfirstlane_b32 s{sT}, v{vT2}")
        e(f"s_mov_b64 exec, -1")
        e(f"s_cmp_lg_u32 s{sT}, 3")
        e(f"s_cbranch_scc1 L_qdone")
        e(f"v_lshlrev_b32 v{vT0}, 3, v{vLane}")
        for w in range(4):
            e(f"ds_read_b64 v[{XU+2*w}:{XU+2*w+1}], v{vT0} offset:{L_QP + w*512}")
        e(f"s_waitcnt lgkmcnt(0)")
        e(f"v_pk_add_f32 v[{XU}:{XU+1}], v[{XU}:{XU+1}], v[{XU+2}:{XU+3}]")
        e(f"v_pk_add_f32 v[{XU+4}:{XU+5}], v[{XU+4}:{XU+5}], v[{XU+6}:{XU+7}]")
        e(f"v_pk_add_f32 v[{XU}:{XU+1}], v[{XU}:{XU+1}], v[{XU+4}:{XU+5}]")
        e(f"v_cvt_pk_bf16_f32 v{XU}, v{XU}, v{XU+1}")
        e(f"v_lshlrev_b32 v{vT0}, 2, v{vLane}")
        e(f"ds_write_b32 v{vT0}, v{XU} offset:{L_QB}")
        e(f"s_waitcnt lgkmcnt(0)")
        A.label("L_qdone"); A.hist = []
    if cfg.exp2 == 'qready': stamp(5)
    e(f"s_barrier")
    stamp(2)
    if cfg.vtouch:
        e(f"s_lshl_b32 s{sT}, s2, 20")
        srd(SV, pV, sT, 1 << 20)
        if cfg.vtouch == 2: e(f"v_lshlrev_b32 v{vT0}, 14, v{vLane}")
        else: e(f"v_mov_b32 v{vT0}, 0")
        vq.issue("VT", f"buffer_load_dword v{vT5}, v{vT0}, s[{SV}:{SV+3}], 0 offen nt")
        vq.wait("VT")
    if cfg.coop:
        vq.issue("X2", f"buffer_load_dwordx4 v[{XR}:{XR+3}], v{vL16}, s[{SA}:{SA+3}], 0 offen")
        vq.issue("X2", f"buffer_load_dword v{XR+4}, v{vT3}, s[{SA}:{SA+3}], 0 offen offset:1024")
        for m in range(3):
            vq.issue("X2", f"buffer_load_ushort v{OWN+m}, v{vT2}, s[{SA}:{SA+3}], 0 offen offset:{128*m}")
        vq.wait("X2")
        unpack_xr()
        for m in range(3): e(f"v_lshlrev_b32 v{OWN+m}, 16, v{OWN+m}")
        layernorm([XU+i for i in range(10)] + [OWN+m for m in range(3)])
        layernorm([OWN+m for m in range(3)])
    else:
        unpack_xr()
        layernorm([XU+i for i in range(10)])
        for m in range(3): e(f"v_mov_b32 v{OWN+m}, v{XH[m]}")
        layernorm([OWN+m for m in range(3)])
    for m in range(3):
        e(f"v_mov_b32 v{YH[m]}, v{OWN+m}")
        e(f"v_lshrrev_b32 v{YL[m]}, 16, v{OWN+m}")
    for i in range(4): e(f"v_mov_b32 v{ACCH+i}, 0")
    e(f"s_mul_i32 s{sTmp2}, s{sS}, {0 if cfg.exp == 'hot' else 108}")
    srd(SD, pW1, sTmp2, 640*3456, size_sub=sTmp2)
    srd(SBq, pB1, sTmp2, 3456, size_sub=sTmp2)
    e(f"s_mul_i32 s{sTmp}, s{sWr}, 160")
    e(f"v_add_u32 v{vT0}, s{sTmp}, v{vR}")
    e(f"s_mov_b32 s{sT}, 3456")
    e(f"v_mul_lo_u32 v{vOff}, v{vT0}, s{sT}")
    e(f"v_lshl_add_u32 v{vOff}, v{vC}, 3, v{vOff}")
    e(f"v_lshlrev_b32 v{vT4}, 1, v{vLane}")
    vq.issue("B1", f"buffer_load_ushort v{vB1}, v{vT4}, s[{SBq}:{SBq+3}], 0 offen")
    NS1 = 6
    def w1_load(j):
        if cfg.exp == 'skip': return
        e(f"s_mov_b32 s{sT}, {j*13824}")
        r = W1R + 2*(j % NS1)
        vq.issue(("W1", j), f"buffer_load_dwordx2 v[{r}:{r+1}], v{vOff}, s[{SD}:{SD+3}], s{sT} offen {cfg.wflag}")
    d1 = min(2*cfg.Dw, NS1 - 1)
    n1 = 0
    for j in range(d1): w1_load(j); n1 += 1
    for j in range(40):
        vq.wait(("W1", j))
        if n1 < 40: w1_load(n1); n1 += 1
        m, jj = divmod(j, 16)
        r = W1R + 2*(j % NS1)
        for d in range(2):
            e(f"v_dot2c_f32_bf16_dpp v{ACCH+2*d}, v{YL[m]}, v{r+d} {bc(jj)}")
            e(f"v_dot2c_f32_bf16_dpp v{ACCH+2*d+1}, v{YH[m]}, v{r+d} {bc(jj)}")
    e(f"s_mul_i32 s{sT}, s{sS}, {0 if cfg.exp == 'hot' else 54*1280}")
    srd(SE, pW2, sT, 1728*1280, size_sub=sT)
    e(f"s_mul_i32 s{sTmp}, s{sHw}, 14")
    e(f"v_add_u32 v{vT0}, s{sTmp}, v{vR}")
    e(f"s_mov_b32 s{sT}, 1280")
    e(f"v_mul_lo_u32 v{vOff}, v{vT0}, s{sT}")
    e(f"v_lshl_add_u32 v{vOff}, v{vC}, 4, v{vOff}")
    for blk in range(5):
        for g in range(4):
            n = blk*4 + g
            if cfg.exp == 'skip': continue
            vq.limit((cfg.Dw2 or cfg.Dw) - 1)
            e(f"s_mov_b32 s{sT}, {g*5120}")
            vq.issue(("W2", blk), f"buffer_load_dwordx4 v[{W+4*n}:{W+4*n+3}], v{vOff}, s[{SE}:{SE+3}], s{sT} offen offset:{blk*256} {cfg.wflag}")
    e(f"v_permlane32_swap_b32 v{ACCH}, v{ACCH+1}")
    e(f"v_permlane32_swap_b32 v{ACCH+2}, v{ACCH+3}")
    e(f"v_add_f32 v{ACCH}, v{ACCH}, v{ACCH+1}")
    e(f"v_add_f32 v{ACCH+2}, v{ACCH+2}, v{ACCH+3}")
    e(f"v_permlane16_swap_b32 v{ACCH}, v{ACCH+2}")
    e(f"v_add_f32 v{ACCH}, v{ACCH}, v{ACCH+2}")
    perm_reg(vT4, vT1)
    e(f"v_lshl_add_u32 v{vT0}, v{vC}, 2, v{vT4}")
    e(f"v_lshlrev_b32 v{vT0}, 2, v{vT0}")
    e(f"s_lshl_b32 s{sT}, s{sHw}, 8")
    e(f"v_add_u32 v{vT0}, s{sT}, v{vT0}")
    e(f"ds_write_b32 v{vT0}, v{ACCH} offset:{L_HP}")
    e(f"v_mov_b32 v{vT0}, 0")
    e(f"v_mov_b32 v{vT1}, 1")
    e(f"s_waitcnt lgkmcnt(0)")
    e(f"s_mov_b64 exec, 1")
    e(f"ds_add_rtn_u32 v{vT2}, v{vT0}, v{vT1} offset:{L_CNT+4}")
    e(f"s_waitcnt lgkmcnt(0)")
    e(f"v_readfirstlane_b32 s{sT}, v{vT2}")
    e(f"s_mov_b64 exec, -1")
    vq.wait("B1")
    e(f"s_cmp_lg_u32 s{sT}, 3")
    e(f"s_cbranch_scc1 L_hwait")
    T = 230
    e(f"v_lshlrev_b32 v{vT0}, 2, v{vLane}")
    for w in range(4):
        e(f"ds_read_b32 v{T+w}, v{vT0} offset:{L_HP + w*256}")
    e(f"s_waitcnt lgkmcnt(0)")
    e(f"v_add_f32 v{T}, v{T}, v{T+1}")
    e(f"v_add_f32 v{T+2}, v{T+2}, v{T+3}")
    e(f"v_add_f32 v{T}, v{T}, v{T+2}")
    x_ = T
    e(f"v_cvt_pk_bf16_f32 v{x_}, 0, v{x_}")
    e(f"v_lshlrev_b32 v{vB1}, 16, v{vB1}")
    e(f"v_add_f32 v{x_}, v{x_}, v{vB1}")
    e(f"v_cvt_pk_bf16_f32 v{x_}, 0, v{x_}")
    e(f"v_mul_f32 v{vT1}, v{x_}, v{x_}")
    e(f"v_mul_f32 v{vT1}, v{vT1}, v{x_}")
    e(f"v_mov_b32 v{vT2}, {f32(0.044715)}")
    e(f"v_fma_f32 v{vT1}, v{vT1}, v{vT2}, v{x_}")
    e(f"v_mul_f32 v{vT1}, {f32(-2.0*math.sqrt(2.0/math.pi)*1.4426950408889634)}, v{vT1}")
    e(f"v_exp_f32 v{vT1}, v{vT1}")
    e(f"v_add_f32 v{vT1}, 1.0, v{vT1}")
    e(f"v_rcp_f32 v{vT1}, v{vT1}")
    e(f"v_mul_f32 v{x_}, v{x_}, v{vT1}")
    e(f"v_cvt_pk_bf16_f32 v{x_}, v{x_}, 0")
    e(f"v_cmp_gt_u32 vcc, 54, v{vLane}")
    e(f"v_cndmask_b32 v{x_}, 0, v{x_}, vcc")
    e(f"v_lshlrev_b32 v{vT0}, 1, v{vLane}")
    e(f"ds_write_b16 v{vT0}, v{x_} offset:{L_HB}")
    e(f"v_mov_b32 v{vT0}, 0")
    e(f"v_mov_b32 v{vT1}, 1")
    e(f"s_waitcnt lgkmcnt(0)")
    e(f"ds_write_b32 v{vT0}, v{vT1} offset:{L_CNT+8}")
    e(f"s_waitcnt lgkmcnt(0)")
    A.label("L_hwait"); A.hist = []
    e(f"v_mov_b32 v{vT0}, 0")
    A.label("L_hspin")
    e(f"ds_read_b32 v{vT1}, v{vT0} offset:{L_CNT+8}")
    e(f"s_waitcnt lgkmcnt(0)")
    e(f"v_readfirstlane_b32 s{sT}, v{vT1}")
    e(f"s_cmp_eq_u32 s{sT}, 0")
    e(f"s_cbranch_scc0 L_hgo")
    e(f"s_branch L_hspin")
    A.label("L_hgo"); A.hist = []
    e(f"s_mul_i32 s{sTmp}, s{sHw}, 14")
    e(f"v_lshl_add_u32 v{vT1}, v{vC}, 2, v{vR}")
    e(f"v_add_u32 v{vT2}, s{sTmp}, v{vT1}")
    e(f"v_and_b32 v{vT2}, 63, v{vT2}")
    e(f"v_lshlrev_b32 v{vT2}, 1, v{vT2}")
    e(f"ds_read_u16 v{vHL}, v{vT2} offset:{L_HB}")
    e(f"v_cmp_gt_u32 vcc, 14, v{vT1}")
    e(f"s_waitcnt lgkmcnt(0)")
    e(f"v_cndmask_b32 v{vHL}, 0, v{vHL}, vcc")
    e(f"v_lshlrev_b32 v{vHH}, 16, v{vHL}")
    for blk in range(5):
        for i in range(8): e(f"v_mov_b32 v{ACC2+i}, 0")
        vq.wait(("W2", blk))
        for g in range(4):
            r = W + 4*(blk*4 + g)
            for d in range(4):
                e(f"v_dot2c_f32_bf16_dpp v{ACC2+2*d}, v{vHL}, v{r+d} {bc(g)}")
                e(f"v_dot2c_f32_bf16_dpp v{ACC2+2*d+1}, v{vHH}, v{r+d} {bc(g)}")
        reduce8(ACC2, MLPS + 2*blk, MLPS + 2*blk + 1)
    if cfg.mfma:
        if cfg.bigpf:
            e(f"v_mov_b32 v{vT0}, 0")
            A.label("L_pfspin"); A.hist = []
            e(f"ds_read_b32 v{vT1}, v{vT0} offset:{L_CNT+20}")
            e(f"s_waitcnt lgkmcnt(0)")
            e(f"v_readfirstlane_b32 s{sT}, v{vT1}")
            e(f"s_cmp_lt_u32 s{sT}, 4")
            e(f"s_cbranch_scc1 L_pfspin")
            A.hist = []
        e(f"s_mul_i32 s{sT}, s{sHw}, 2560")
        e(f"v_add_u32 v{vT0}, s{sT}, v{vColAddr}")
        e(f"v_add_u32 v{vT0}, {L_MLP}, v{vT0}")
        for blk in range(5):
            e(f"ds_write_b32 v{vT0}, v{MLPS+2*blk} offset:{blk*512}")
            e(f"ds_write_b32 v{vT0}, v{MLPS+2*blk+1} offset:{blk*512+16}")
        STG = 224
        e(f"s_mul_i32 s{sT}, s{sH}, {128*1280}")
        srd(SC, pWO, sT, 4096*1280, size_sub=sT)
        e(f"s_lshl_b32 s{sTmp}, s{sHw}, 5")
        e(f"v_lshlrev_b32 v{vT0}, 3, v{vR}")
        e(f"v_add_u32 v{vT0}, s{sTmp}, v{vT0}")
        e(f"s_mov_b32 s{sT}, 1280")
        e(f"v_mul_lo_u32 v{vOff}, v{vT0}, s{sT}")
        e(f"v_lshl_add_u32 v{vOff}, v{vC}, 4, v{vOff}")
        e(f"s_mov_b32 s9, 0x05040100")
        e(f"s_mov_b32 s10, 0x07060302")
        if cfg.ctrl:
            assert cfg.pstride == 0 or (cfg.Dwo or cfg.Dw) == 1
            cA, cB, cP, cV, cQ, cT, cZ = 12, 13, 14, 15, 16, 17, 18
            e(f"s_and_b32 s{sT}, s2, 7")
            e(f"s_lshl_b32 s{sT}, s{sT}, 7")
            e(f"s_add_u32 s{sT}, s{sT}, {3 << 20}")
            e(f"v_and_b32 v{cA}, 31, v{vLane}")
            e(f"v_lshlrev_b32 v{cA}, 2, v{cA}")
            e(f"v_add_u32 v{cA}, s{sT}, v{cA}")
            e(f"s_lshr_b32 s{sTmp}, s2, 3")
            e(f"s_lshl_b32 s{sTmp}, s{sTmp}, 2")
            e(f"s_add_u32 s{sTmp}, s{sTmp}, s{sT}")
            e(f"v_mov_b32 v{cB}, s{sTmp}")
            e(f"s_add_u32 s11, s11, 1")
            e(f"s_and_b32 s11, s11, 0xffff")
            e(f"s_lshl_b32 s12, s11, 16")
            e(f"s_mov_b32 s13, 0")
            e(f"s_mov_b32 s14, 0")
            e(f"v_mov_b32 v{cZ}, 0")
            e(f"v_not_b32 v{cQ}, s12")
            if cfg.xbias:
                e(f"s_getreg_b32 s8, hwreg(HW_REG_XCC_ID)")
                e(f"s_and_b32 s8, s8, 3")
                e(f"s_cmp_eq_u32 s8, 3")
                e(f"s_cselect_b32 s8, {2*cfg.xbias}, 0")
        for blk in range(5):
            for ee_ in range(8):
                vq.limit((cfg.Dwo or cfg.Dw) - 1)
                if cfg.ctrl and cfg.pstride and (blk*8 + ee_) % cfg.pstride == 0:
                    lab = f"L_np{blk}_{ee_}"
                    e(f"s_cmp_lg_u32 s{sHw}, 3")
                    e(f"s_cbranch_scc1 {lab}")
                    e(f"s_waitcnt vmcnt(0)")
                    e(f"s_call_b64 s[94:95], L_probe")
                    A.label(lab); A.hist = []
                e(f"s_mov_b32 s{sT}, {ee_*1280}")
                vq.issue(("WO", blk), f"buffer_load_dwordx4 v[{STG+4*ee_}:{STG+4*ee_+3}], v{vOff}, s[{SC}:{SC+3}], s{sT} offen offset:{blk*256} {cfg.wflag}")
            vq.wait(("WO", blk))
            for d in range(4):
                for dd in range(4):
                    lo = STG + 4*(2*dd) + d; hi = STG + 4*(2*dd+1) + d
                    e(f"v_perm_b32 v{W + 32*blk + 4*(2*d) + dd}, v{hi}, v{lo}, s9")
                    e(f"v_perm_b32 v{W + 32*blk + 4*(2*d+1) + dd}, v{hi}, v{lo}, s10")
    else:
        e(f"s_mul_i32 s{sT}, s{sH}, {0 if cfg.exp == 'hot' else 128*1280}")
        srd(SC, pWO, sT, 4096*1280, size_sub=sT)
        e(f"s_lshl_b32 s{sTmp}, s{sHw}, 5")
        e(f"v_add_u32 v{vT0}, s{sTmp}, v{vR}")
        e(f"s_mov_b32 s{sT}, 1280")
        e(f"v_mul_lo_u32 v{vOff}, v{vT0}, s{sT}")
        e(f"v_lshl_add_u32 v{vOff}, v{vC}, 4, v{vOff}")
        for g in range(8):
            for blk in range(5):
                n = g*5 + blk
                if cfg.exp == 'skip': continue
                vq.limit((cfg.Dwo or cfg.Dw) - 1)
                e(f"s_mov_b32 s{sT}, {g*5120}")
                vq.issue(("WO", n), f"buffer_load_dwordx4 v[{W+4*n}:{W+4*n+3}], v{vOff}, s[{SC}:{SC+3}], s{sT} offen offset:{blk*256} {cfg.wflag}")
    vXB = 62
    vXB2 = 58
    if cfg.fin == 'tag8':
        e(f"s_mul_i32 s{sT}, s{sB}, 1280")
        e(f"s_mul_i32 s{sTmp}, s{sH}, 40")
        e(f"s_add_u32 s{sT}, s{sT}, s{sTmp}")
        srd(SBq, pX, sT, 40)
        srd(SD, pB2, sTmp, 40)
        e(f"v_and_b32 v{vT0}, 7, v{vLane}")
        e(f"v_lshlrev_b32 v{vT0}, 3, v{vT0}")
        vq.issue("XB", f"buffer_load_dwordx2 v[{vXB2}:{vXB2+1}], v{vT0}, s[{SBq}:{SBq+3}], 0 offen")
        vq.issue("XB", f"buffer_load_dwordx2 v[{vXB2+2}:{vXB2+3}], v{vT0}, s[{SD}:{SD+3}], 0 offen")
    if cfg.fin == 'tag':
        e(f"s_mul_i32 s{sT}, s{sB}, 1280")
        e(f"s_mul_i32 s{sTmp}, s{sH}, 40")
        e(f"s_add_u32 s{sT}, s{sT}, s{sTmp}")
        srd(SBq, pX, sT, 40)
        srd(SD, pB2, sTmp, 40)
        e(f"v_lshlrev_b32 v{vT0}, 2, v{vC}")
        vq.issue("XB", f"buffer_load_dword v{vXB}, v{vT0}, s[{SBq}:{SBq+3}], 0 offen")
        vq.issue("XB", f"buffer_load_dword v{vXB+1}, v{vT0}, s[{SD}:{SD+3}], 0 offen")
    if cfg.mfma:
        ML = 12; OV = 20; AB = 24; DD = 32; OPX = 224
        vMn, vL = 52, 53
        e(f"s_lshl_b32 s{sT}, s{sHw}, 5")
        e(f"v_lshlrev_b32 v{vT1}, 3, v{vR}")
        e(f"v_add_u32 v{vT1}, s{sT}, v{vT1}")
        e(f"v_lshlrev_b32 v{vT1}, 2, v{vT1}")
        e(f"v_mov_b32 v{vT0}, 0")
        e(f"s_mul_i32 s{sT}, s{sHw}, 2560")
        e(f"v_lshlrev_b32 v{vT5}, 5, v{vC}")
        e(f"v_lshl_add_u32 v{vT5}, v{vR}, 4, v{vT5}")
        e(f"v_add_u32 v{vT5}, s{sT}, v{vT5}")
        e(f"v_add_u32 v{vT5}, {L_OUT}, v{vT5}")
        if cfg.ctrl:
            PEND = (512 - cfg.tailN - 256)//2 - 6
            e(f"s_cmp_lg_u32 s{sHw}, 3")
            e(f"s_cbranch_scc1 L_noctrl")
            A.label("L_ctrl"); A.hist = []
            e(f"s_waitcnt vmcnt(0)")
            e(f"s_call_b64 s[94:95], L_probe")
            A.hist = []
            e(f"s_cmp_lt_u32 s14, {PEND}")
            e(f"s_cbranch_scc1 L_ctrl")
            e(f"ds_write_b32 v18, v18 offset:{L_MODE}")
            A.label("L_noctrl"); A.hist = []
        vq.drain()
        e(f"s_waitcnt lgkmcnt(0)")
        if cfg.exp2 != 'qpoll': stamp(3)
        e(f"s_barrier")
        if cfg.exp2 != 'qpoll': stamp(4)
        e(f"ds_read_b128 v[{ML}:{ML+3}], v{vT0} offset:{L_ML}")
        e(f"ds_read_b128 v[{ML+4}:{ML+7}], v{vT0} offset:{L_ML+16}")
        for w in range(4):
            e(f"ds_read_b128 v[{OPX+8*w}:{OPX+8*w+3}], v{vT1} offset:{L_OP + w*512}")
            e(f"ds_read_b128 v[{OPX+8*w+4}:{OPX+8*w+7}], v{vT1} offset:{L_OP + w*512 + 16}")
        e(f"s_waitcnt lgkmcnt(8)")
        e(f"v_max3_f32 v{vMn}, v{ML}, v{ML+2}, v{ML+4}")
        e(f"v_max_f32 v{vMn}, v{vMn}, v{ML+6}")
        for w in range(4): e(f"v_sub_f32 v{ML+2*w}, v{ML+2*w}, v{vMn}")
        for w in range(4): e(f"v_mul_f32 v{ML+2*w}, s{sL2E}, v{ML+2*w}")
        for w in range(4): e(f"v_exp_f32 v{ML+2*w}, v{ML+2*w}")
        e(f"v_mul_f32 v{vL}, v{ML}, v{ML+1}")
        for w in range(1, 4): e(f"v_fmac_f32 v{vL}, v{ML+2*w}, v{ML+2*w+1}")
        e(f"v_rcp_f32 v{vL}, v{vL}")
        for w in range(4): e(f"v_mul_f32 v{ML+2*w}, v{ML+2*w}, v{vL}")
        e(f"s_waitcnt lgkmcnt(0)")
        for k in range(8): e(f"v_mul_f32 v{OPX+k}, v{ML}, v{OPX+k}")
        for w in range(1, 4):
            for k in range(8): e(f"v_fmac_f32 v{OPX+k}, v{ML+2*w}, v{OPX+8*w+k}")
        for dd in range(4): e(f"v_cvt_pk_bf16_f32 v{OV+dd}, v{OPX+2*dd}, v{OPX+2*dd+1}")
        def build_a(i):
            ab = AB + 4*(i % 2)
            e(f"s_mov_b32 s12, {0x00010001 << i}")
            e(f"s_mov_b32 s13, s12")
            for dd in range(4): e(f"v_cndmask_b32 v{ab+dd}, 0, v{OV+dd}, s[12:13]")
        build_a(0); build_a(1)
        for i in range(8):
            ab = AB + 4*(i % 2)
            for blk in range(5):
                c_ = "0" if i == 0 else f"v[{DD+4*blk}:{DD+4*blk+3}]"
                t_ = W + 32*blk + 4*i
                e(f"v_mfma_f32_16x16x32_bf16 v[{DD+4*blk}:{DD+4*blk+3}], v[{ab}:{ab+3}], v[{t_}:{t_+3}], {c_}")
            if i + 2 < 8: build_a(i + 2)
        e(f"s_mov_b32 exec_hi, 0")
        for blk in range(5):
            e(f"ds_write_b128 v{vT5}, v[{DD+4*blk}:{DD+4*blk+3}] offset:{blk*512}")
        e(f"s_mov_b32 exec_hi, -1")
    else:
        ACCO = 224 - 0
        ACCO = 12
        acco = list(range(12, 40)) + list(range(50, 62))
        ACB = [12, 20, 28, 50, 224]
        for b_ in ACB:
            for i in range(8): e(f"v_mov_b32 v{b_+i}, 0")
        e(f"s_lshl_b32 s{sT}, s{sHw}, 5")
        e(f"v_lshl_add_u32 v{vT1}, v{vC}, 2, v{vR}")
        e(f"v_add_u32 v{vT1}, s{sT}, v{vT1}")
        e(f"v_and_b32 v{vT1}, 127, v{vT1}")
        e(f"v_lshlrev_b32 v{vT1}, 2, v{vT1}")
        e(f"v_mov_b32 v{vT0}, 0")
        vq.drain()
        if cfg.exp2 != 'qpoll': stamp(3)
        e(f"s_barrier")
        if cfg.exp2 != 'qpoll': stamp(4)
        ML = 232; OP = 240
        e(f"ds_read_b128 v[{ML}:{ML+3}], v{vT0} offset:{L_ML}")
        e(f"ds_read_b128 v[{ML+4}:{ML+7}], v{vT0} offset:{L_ML+16}")
        for w in range(4):
            e(f"ds_read_b32 v{OP+w}, v{vT1} offset:{L_OP + w*512}")
        e(f"s_waitcnt lgkmcnt(4)")
        vMn, vL, vE, vPL, vPH = 244, 245, 246, 247, 248
        e(f"v_max3_f32 v{vMn}, v{ML}, v{ML+2}, v{ML+4}")
        e(f"v_max_f32 v{vMn}, v{vMn}, v{ML+6}")
        for w in range(4): e(f"v_sub_f32 v{ML+2*w}, v{ML+2*w}, v{vMn}")
        for w in range(4): e(f"v_mul_f32 v{ML+2*w}, s{sL2E}, v{ML+2*w}")
        for w in range(4): e(f"v_exp_f32 v{ML+2*w}, v{ML+2*w}")
        e(f"s_waitcnt lgkmcnt(0)")
        e(f"v_mul_f32 v{vL}, v{ML}, v{ML+1}")
        e(f"v_mul_f32 v{vE}, v{ML}, v{OP}")
        for w in range(1, 4):
            e(f"v_fmac_f32 v{vL}, v{ML+2*w}, v{ML+2*w+1}")
            e(f"v_fmac_f32 v{vE}, v{ML+2*w}, v{OP+w}")
        e(f"v_rcp_f32 v{vL}, v{vL}")
        e(f"v_mul_f32 v{vE}, v{vE}, v{vL}")
        e(f"v_cvt_pk_bf16_f32 v{vPL}, v{vE}, 0")
        e(f"v_cvt_pk_bf16_f32 v{vPH}, 0, v{vE}")
        RES = 232
        for blk in range(5):
            for g in range(8):
                r = W + (g*5 + blk)*4
                for d in range(4):
                    e(f"v_dot2c_f32_bf16_dpp v{ACB[blk]+2*d}, v{vPL}, v{r+d} {bc(g)}")
                    e(f"v_dot2c_f32_bf16_dpp v{ACB[blk]+2*d+1}, v{vPH}, v{r+d} {bc(g)}")
            if blk > 0:
                reduce8(ACB[blk-1], RES + 2*(blk-1), RES + 2*(blk-1) + 1)
        reduce8(ACB[4], RES + 8, RES + 9)
        for i in range(10): e(f"v_add_f32 v{RES+i}, v{RES+i}, v{MLPS+i}")
        e(f"s_mul_i32 s{sT}, s{sHw}, 2560")
        e(f"v_add_u32 v{vT0}, s{sT}, v{vColAddr}")
        e(f"v_add_u32 v{vT0}, {L_OUT}, v{vT0}")
        for blk in range(5):
            e(f"ds_write_b32 v{vT0}, v{RES+2*blk} offset:{blk*512}")
            e(f"ds_write_b32 v{vT0}, v{RES+2*blk+1} offset:{blk*512+16}")
    e(f"s_waitcnt lgkmcnt(0)")
    e(f"s_barrier")
    if cfg.exp2 not in ('qpoll', 'qready'): stamp(5)
    if cfg.fin == 'tag8':
        GB = 4096
        e(f"s_and_b32 s{sTmp2}, s{sNonce}, 0xff")
        e(f"s_cmp_eq_u32 s{sW}, 3")
        e(f"s_cbranch_scc1 L_cons")
        e(f"v_cmp_gt_u32 vcc, 160, v0")
        e(f"s_and_saveexec_b64 s[{SAVE}:{SAVE+1}], vcc")
        e(f"v_lshlrev_b32 v{vT0}, 4, v0")
        Pp = 64
        for w in range(4):
            e(f"ds_read_b128 v[{Pp+4*w}:{Pp+4*w+3}], v{vT0} offset:{L_OUT + w*2560}")
        if cfg.mfma:
            e(f"v_add_u32 v{vT5}, {L_MLP}, v{vT0}")
            for w in range(4):
                e(f"ds_read_b128 v[{Pp+16+4*w}:{Pp+16+4*w+3}], v{vT5} offset:{w*2560}")
        e(f"s_mul_i32 s{sT}, s{sB}, {32*2560}")
        e(f"s_add_u32 s{sT}, s{sT}, {GB}")
        srd(SA, pWS, sT, 32*2560)
        e(f"v_mul_u32_u24 v{vT1}, 205, v0")
        e(f"v_lshrrev_b32 v{vT1}, 10, v{vT1}")
        e(f"v_mul_u32_u24 v{vT2}, 5, v{vT1}")
        e(f"v_sub_u32 v{vT2}, v0, v{vT2}")
        e(f"v_mul_u32_u24 v{vT1}, 2560, v{vT1}")
        e(f"v_lshl_add_u32 v{vT1}, v{vT2}, 4, v{vT1}")
        e(f"s_mul_i32 s{sT}, s{sH}, 80")
        e(f"v_mov_b32 v{vT3}, 0xffffff00")
        e(f"v_mov_b32 v{vT4}, s{sTmp2}")
        e(f"s_waitcnt lgkmcnt(0)")
        if cfg.mfma:
            for k in range(16):
                e(f"v_add_f32 v{Pp+k}, v{Pp+k}, v{Pp+16+k}")
        for k in range(4):
            e(f"v_add_f32 v{Pp+k}, v{Pp+k}, v{Pp+4+k}")
            e(f"v_add_f32 v{Pp+8+k}, v{Pp+8+k}, v{Pp+12+k}")
        for k in range(4):
            e(f"v_add_f32 v{Pp+k}, v{Pp+k}, v{Pp+8+k}")
        for k in range(4):
            e(f"v_add_u32 v{Pp+k}, 0x80, v{Pp+k}")
        for k in range(4):
            e(f"v_and_or_b32 v{Pp+k}, v{Pp+k}, v{vT3}, v{vT4}")
        e(f"buffer_store_dwordx4 v[{Pp}:{Pp+3}], v{vT1}, s[{SA}:{SA+3}], s{sT} offen sc0 sc1")
        e(f"s_branch L_fin")
        A.label("L_cons"); A.hist = []
        e(f"s_mul_i32 s{sT}, s2, 2560")
        e(f"s_add_u32 s{sT}, s{sT}, {GB}")
        srd(SA, pWS, sT, 2560)
        e(f"v_lshrrev_b32 v{vT0}, 3, v{vLane}")
        e(f"v_and_b32 v{vT4}, 7, v{vLane}")
        e(f"v_mul_u32_u24 v{vT1}, 80, v{vT0}")
        e(f"v_lshl_add_u32 v{vT1}, v{vT4}, 4, v{vT1}")
        e(f"s_mov_b32 s{sSpin}, 0")
        e(f"v_mov_b32 v{vT5}, s{sTmp2}")
        G = 64
        A.label("L_poll2"); A.hist = []
        for i in range(4):
            e(f"buffer_load_dwordx4 v[{G+4*i}:{G+4*i+3}], v{vT1}, s[{SA}:{SA+3}], 0 offen offset:{i*640} sc0 sc1")
        e(f"s_add_u32 s{sSpin}, s{sSpin}, 1")
        e(f"s_waitcnt vmcnt(0)")
        X = 84
        for k in range(16):
            e(f"v_xor_b32 v{X+k}, v{vT5}, v{G+k}")
        for k in range(0, 15, 3):
            e(f"v_or3_b32 v{X+k}, v{X+k}, v{X+k+1}, v{X+k+2}")
        e(f"v_or3_b32 v{X}, v{X}, v{X+3}, v{X+6}")
        e(f"v_or3_b32 v{X+9}, v{X+9}, v{X+12}, v{X+15}")
        e(f"v_or_b32 v{X}, v{X}, v{X+9}")
        e(f"v_and_b32 v{X}, 0xff, v{X}")
        e(f"v_cmp_gt_u32 vcc, 5, v{vT4}")
        e(f"v_cndmask_b32 v{X}, 0, v{X}, vcc")
        e(f"v_cmp_ne_u32 vcc, 0, v{X}")
        e(f"s_cmp_gt_u32 s{sSpin}, 200000")
        e(f"s_cbranch_scc1 L_fin")
        if cfg.psleep or cfg.padapt:
            e(f"s_cmp_eq_u64 vcc, 0")
            e(f"s_cbranch_scc1 L_pollok")
            if cfg.padapt:
                e(f"s_bcnt1_i32_b64 s{sT}, vcc")
                e(f"s_cmp_lt_u32 s{sT}, 16")
                e(f"s_cbranch_scc1 L_pollshort")
                e(f"s_sleep {cfg.padapt}")
                A.label("L_pollshort")
            if cfg.psleep: e(f"s_sleep {cfg.psleep}")
            e(f"s_branch L_poll2")
            A.label("L_pollok"); A.hist = []
        else:
            e(f"s_cmp_eq_u64 vcc, 0")
            e(f"s_cbranch_scc0 L_poll2")
        for k in range(16):
            e(f"v_and_b32 v{G+k}, 0xffffff00, v{G+k}")
        for k in range(4):
            e(f"v_add_f32 v{G+k}, v{G+k}, v{G+4+k}")
            e(f"v_add_f32 v{G+8+k}, v{G+8+k}, v{G+12+k}")
        for k in range(4):
            e(f"v_add_f32 v{G+k}, v{G+k}, v{G+8+k}")
        for k in range(4):
            e(f"v_add_f32_dpp v{G+k}, v{G+k}, v{G+k} row_ror:8 row_mask:0xf bank_mask:0xf")
        for k in range(4):
            e(f"v_mov_b32 v{G+4+k}, v{G+k}")
        for k in range(4):
            e(f"v_permlane16_swap_b32 v{G+k}, v{G+4+k}")
        for k in range(4):
            e(f"v_add_f32 v{G+k}, v{G+k}, v{G+4+k}")
        for k in range(4):
            e(f"v_mov_b32 v{G+4+k}, v{G+k}")
        for k in range(4):
            e(f"v_permlane32_swap_b32 v{G+k}, v{G+4+k}")
        for k in range(4):
            e(f"v_add_f32 v{G+k}, v{G+k}, v{G+4+k}")
        for k in range(4):
            for src in (vXB2 + 2 + k//2, vXB2 + k//2):
                if k % 2 == 0: e(f"v_lshlrev_b32 v{vT2}, 16, v{src}")
                else: e(f"v_and_b32 v{vT2}, 0xffff0000, v{src}")
                e(f"v_add_f32 v{G+k}, v{G+k}, v{vT2}")
        e(f"v_cvt_pk_bf16_f32 v{G+4}, v{G}, v{G+1}")
        e(f"v_cvt_pk_bf16_f32 v{G+5}, v{G+2}, v{G+3}")
        e(f"s_mul_i32 s{sT}, s{sB}, 1280")
        e(f"s_mul_i32 s{sTmp}, s{sH}, 40")
        e(f"s_add_u32 s{sT}, s{sT}, s{sTmp}")
        srd(SD, pOUT, sT, 40)
        e(f"v_lshlrev_b32 v{vT0}, 3, v{vLane}")
        e(f"buffer_store_dwordx2 v[{G+4}:{G+5}], v{vT0}, s[{SD}:{SD+3}], 0 offen")
        if cfg.coop:
            e(f"s_cmp_lg_u32 s2, 0")
            e(f"s_cbranch_scc1 L_fin")
            srd(SC, pWS, None, 4)
        else:
            e(f"s_cmp_lg_u32 s{sH}, 0")
            e(f"s_cbranch_scc1 L_fin")
            e(f"s_lshl_b32 s{sT}, s{sB}, 8")
            srd(SC, pWS, sT, 4)
        e(f"v_mov_b32 v{vT2}, s{sNonce}")
        e(f"buffer_store_dword v{vT2}, v{vT0}, s[{SC}:{SC+3}], 0 offen sc0 sc1")
        e(f"s_branch L_fin")
    elif cfg.fin == 'tag':
        GB = 4096
        e(f"s_cmp_eq_u32 s{sW}, 3")
        e(f"s_cbranch_scc1 L_cons")
        e(f"v_cmp_gt_u32 vcc, 160, v0")
        e(f"s_and_saveexec_b64 s[{SAVE}:{SAVE+1}], vcc")
        e(f"v_lshlrev_b32 v{vT0}, 4, v0")
        Pp = 64
        for w in range(4):
            e(f"ds_read_b128 v[{Pp+4*w}:{Pp+4*w+3}], v{vT0} offset:{L_OUT + w*2560}")
        e(f"s_mul_i32 s{sT}, s{sB}, {32*5120}")
        e(f"s_add_u32 s{sT}, s{sT}, {GB}")
        srd(SA, pWS, sT, 32*5120)
        e(f"v_mul_u32_u24 v{vT1}, 205, v0")
        e(f"v_lshrrev_b32 v{vT1}, 10, v{vT1}")
        e(f"v_mul_u32_u24 v{vT2}, 5, v{vT1}")
        e(f"v_sub_u32 v{vT2}, v0, v{vT2}")
        e(f"v_mul_u32_u24 v{vT1}, 5120, v{vT1}")
        e(f"v_lshl_add_u32 v{vT1}, v{vT2}, 5, v{vT1}")
        e(f"s_mul_i32 s{sT}, s{sH}, 160")
        e(f"v_mov_b32 v{Pp+17}, s{sNonce}")
        e(f"v_mov_b32 v{Pp+19}, s{sNonce}")
        e(f"v_mov_b32 v{Pp+21}, s{sNonce}")
        e(f"v_mov_b32 v{Pp+23}, s{sNonce}")
        e(f"s_waitcnt lgkmcnt(0)")
        for k in range(4):
            e(f"v_add_f32 v{Pp+k}, v{Pp+k}, v{Pp+4+k}")
            e(f"v_add_f32 v{Pp+8+k}, v{Pp+8+k}, v{Pp+12+k}")
        for k in range(4):
            e(f"v_add_f32 v{Pp+16+2*k}, v{Pp+k}, v{Pp+8+k}")
        e(f"buffer_store_dwordx4 v[{Pp+16}:{Pp+19}], v{vT1}, s[{SA}:{SA+3}], s{sT} offen sc0 sc1")
        e(f"buffer_store_dwordx4 v[{Pp+20}:{Pp+23}], v{vT1}, s[{SA}:{SA+3}], s{sT} offen offset:16 sc0 sc1")
        e(f"s_branch L_fin")
        A.label("L_cons"); A.hist = []
        e(f"s_mul_i32 s{sT}, s2, 5120")
        e(f"s_add_u32 s{sT}, s{sT}, {GB}")
        srd(SA, pWS, sT, 5120)
        e(f"v_mul_u32_u24 v{vT0}, 160, v{vLane}")
        e(f"v_mul_u32_u24 v{vT1}, 160, v{vR}")
        e(f"v_lshl_add_u32 v{vT1}, v{vC}, 4, v{vT1}")
        e(f"s_mov_b32 s{sSpin}, 0")
        e(f"s_mov_b32 s{sTmp}, 2560")
        G = 64
        A.label("L_poll1"); A.hist = []
        e(f"buffer_load_dwordx4 v[{G}:{G+3}], v{vT0}, s[{SA}:{SA+3}], 0 offen sc0 sc1")
        e(f"s_add_u32 s{sSpin}, s{sSpin}, 1")
        e(f"s_waitcnt vmcnt(0)")
        e(f"v_xor_b32 v{G}, s{sNonce}, v{G+1}")
        e(f"v_xor_b32 v{G+2}, s{sNonce}, v{G+3}")
        e(f"v_or_b32 v{G}, v{G}, v{G+2}")
        e(f"v_cmp_eq_u32 vcc, 0, v{G}")
        e(f"s_cmp_gt_u32 s{sSpin}, 200000")
        e(f"s_cbranch_scc1 L_fin")
        e(f"s_cmp_eq_u32 vcc_lo, -1")
        e(f"s_cbranch_scc0 L_poll1")
        A.label("L_poll2"); A.hist = []
        for i in range(8):
            so = "0" if i < 4 else f"s{sTmp}"
            e(f"buffer_load_dwordx4 v[{G+4*i}:{G+4*i+3}], v{vT1}, s[{SA}:{SA+3}], {so} offen offset:{(i%4)*640} sc0 sc1")
        e(f"s_add_u32 s{sSpin}, s{sSpin}, 1")
        e(f"s_waitcnt vmcnt(0)")
        e(f"v_xor_b32 v{vT2}, s{sNonce}, v{G+1}")
        for i in range(8):
            for k in (1, 3):
                if i == 0 and k == 1: continue
                e(f"v_xor_b32 v{vT3}, s{sNonce}, v{G+4*i+k}")
                e(f"v_or_b32 v{vT2}, v{vT2}, v{vT3}")
        e(f"v_cmp_gt_u32 vcc, 10, v{vC}")
        e(f"v_cndmask_b32 v{vT2}, 0, v{vT2}, vcc")
        e(f"v_cmp_ne_u32 vcc, 0, v{vT2}")
        e(f"s_cmp_gt_u32 s{sSpin}, 200000")
        e(f"s_cbranch_scc1 L_fin")
        e(f"s_cmp_eq_u64 vcc, 0")
        e(f"s_cbranch_scc0 L_poll2")
        for i in range(1, 8):
            e(f"v_add_f32 v{G}, v{G}, v{G+4*i}")
            e(f"v_add_f32 v{G+2}, v{G+2}, v{G+4*i+2}")
        for r in (G, G+2):
            e(f"v_mov_b32 v{vT2}, v{r}")
            e(f"v_permlane16_swap_b32 v{r}, v{vT2}")
            e(f"v_add_f32 v{r}, v{r}, v{vT2}")
            e(f"v_mov_b32 v{vT2}, v{r}")
            e(f"v_permlane32_swap_b32 v{r}, v{vT2}")
            e(f"v_add_f32 v{r}, v{r}, v{vT2}")
        e(f"v_lshlrev_b32 v{vT2}, 16, v{vXB+1}")
        e(f"v_and_b32 v{vT3}, 0xffff0000, v{vXB+1}")
        e(f"v_add_f32 v{G}, v{G}, v{vT2}")
        e(f"v_add_f32 v{G+2}, v{G+2}, v{vT3}")
        e(f"v_lshlrev_b32 v{vT2}, 16, v{vXB}")
        e(f"v_and_b32 v{vT3}, 0xffff0000, v{vXB}")
        e(f"v_add_f32 v{G}, v{G}, v{vT2}")
        e(f"v_add_f32 v{G+2}, v{G+2}, v{vT3}")
        e(f"v_cvt_pk_bf16_f32 v{G}, v{G}, v{G+2}")
        e(f"s_mul_i32 s{sT}, s{sB}, 1280")
        e(f"s_mul_i32 s{sTmp}, s{sH}, 40")
        e(f"s_add_u32 s{sT}, s{sT}, s{sTmp}")
        srd(SD, pOUT, sT, 40)
        e(f"v_lshlrev_b32 v{vT0}, 2, v{vLane}")
        e(f"buffer_store_dword v{G}, v{vT0}, s[{SD}:{SD+3}], 0 offen")
        e(f"s_cmp_lg_u32 s{sH}, 0")
        e(f"s_cbranch_scc1 L_fin")
        e(f"s_lshl_b32 s{sT}, s{sB}, 8")
        srd(SC, pWS, sT, 4)
        e(f"v_mov_b32 v{vT2}, s{sNonce}")
        e(f"buffer_store_dword v{vT2}, v{vT0}, s[{SC}:{SC+3}], 0 offen sc0 sc1")
        e(f"s_branch L_fin")
    else:
        e(f"s_cmp_ge_u32 s{sW}, 3")
        e(f"s_cbranch_scc1 L_fin")
        e(f"v_cmp_gt_u32 vcc, 160, v0")
        e(f"s_and_saveexec_b64 s[{SAVE}:{SAVE+1}], vcc")
        e(f"v_lshlrev_b32 v{vT0}, 4, v0")
        Pp = 64
        for w in range(4):
            e(f"ds_read_b128 v[{Pp+4*w}:{Pp+4*w+3}], v{vT0} offset:{L_OUT + w*2560}")
        e(f"s_mul_i32 s{sT}, s2, 2560")
        srd(SA, pWS, sT, 2560)
        e(f"s_waitcnt lgkmcnt(0)")
        for k in range(4):
            e(f"v_add_f32 v{Pp+k}, v{Pp+k}, v{Pp+4+k}")
            e(f"v_add_f32 v{Pp+8+k}, v{Pp+8+k}, v{Pp+12+k}")
        for k in range(4):
            e(f"v_add_f32 v{Pp+k}, v{Pp+k}, v{Pp+8+k}")
        e(f"buffer_store_dwordx4 v[{Pp}:{Pp+3}], v{vT0}, s[{SA}:{SA+3}], 0 offen sc0 sc1")
        e(f"s_mul_i32 s{sT}, s{sB}, 3")
        e(f"s_add_u32 s{sT}, s{sT}, s{sW}")
        e(f"s_lshl_b32 s{sT}, s{sT}, 2")
        e(f"s_mov_b64 s[{SAVE+2}:{SAVE+3}], exec")
        e(f"s_waitcnt vmcnt(0)")
        e(f"s_mov_b64 exec, 1")
        e(f"v_mov_b32 v{vT1}, s{sT}")
        e(f"v_mov_b32 v{vT2}, 1")
        e(f"global_atomic_add v{vT3}, v{vT1}, v{vT2}, s[{pDBG}:{pDBG+1}] sc0 sc1")
        e(f"s_waitcnt vmcnt(0)")
        e(f"v_readfirstlane_b32 s{sT}, v{vT3}")
        e(f"s_mov_b64 exec, s[{SAVE+2}:{SAVE+3}]")
        e(f"s_cmp_lg_u32 s{sT}, 31")
        e(f"s_cbranch_scc1 L_fin")
        e(f"s_mul_i32 s{sT}, s{sB}, {32*2560}")
        srd(SA, pWS, sT, 32*2560)
        for hh in range(32):
            r = 96 + 4*hh
            e(f"s_mov_b32 s{sT}, {hh*2560}")
            e(f"buffer_load_dwordx4 v[{r}:{r+3}], v{vT0}, s[{SA}:{SA+3}], s{sT} offen sc0 sc1")
        e(f"s_mul_i32 s{sT}, s{sB}, 1280")
        srd(SBq, pX, sT, 1280)
        srd(SC, pB2, None, 1280)
        srd(SD, pOUT, sT, 1280)
        e(f"v_lshlrev_b32 v{vT1}, 3, v0")
        e(f"buffer_load_dwordx2 v[{Pp}:{Pp+1}], v{vT1}, s[{SBq}:{SBq+3}], 0 offen")
        e(f"buffer_load_dwordx2 v[{Pp+2}:{Pp+3}], v{vT1}, s[{SC}:{SC+3}], 0 offen")
        for hh in range(1, 32):
            e(f"s_waitcnt vmcnt({2 + 31 - hh})")
            for k in range(4):
                e(f"v_add_f32 v{96+k}, v{96+k}, v{96+4*hh+k}")
        e(f"s_waitcnt vmcnt(0)")
        for k in range(4):
            src = Pp + k//2; src2 = Pp + 2 + k//2
            if k % 2 == 0:
                e(f"v_lshlrev_b32 v{vT2}, 16, v{src}")
                e(f"v_lshlrev_b32 v{vT3}, 16, v{src2}")
            else:
                e(f"v_and_b32 v{vT2}, 0xffff0000, v{src}")
                e(f"v_and_b32 v{vT3}, 0xffff0000, v{src2}")
            e(f"v_add_f32 v{96+k}, v{96+k}, v{vT3}")
            e(f"v_add_f32 v{96+k}, v{96+k}, v{vT2}")
        e(f"v_cvt_pk_bf16_f32 v{Pp+4}, v96, v97")
        e(f"v_cvt_pk_bf16_f32 v{Pp+5}, v98, v99")
        e(f"buffer_store_dwordx2 v[{Pp+4}:{Pp+5}], v{vT1}, s[{SD}:{SD+3}], 0 offen")
        e(f"s_branch L_fin")


    A.hist = []
    if cfg.streamfirst: A.lines.append("@@STREAM_BEGIN@@")
    A.label("L_stream")
    L = cfg.L; P = cfg.P
    Q = 12; ACC = 16; vM = 24; vSc = 25; S = 26
    vU0, vU1, vTt = 30, 31, 32
    vLs = 33; E2 = 34
    E2n = 36
    vPL, vPH, vE = 38, 39, 40
    RING = 44
    BIG = 76
    P2 = cfg.P2
    TMPR = RING if cfg.bigpf else BIG + 4*P
    assert BIG + 4*P + (16 if (P2 and not cfg.bigpf) else 0) <= 256 and P2 % 4 == 0 and (not P2 or P % 4 == 0)
    sPF = 8; vPF = 42
    e(f"s_mov_b32 s{sScale}, {f32(128**-0.5)}")
    sIss0 = 9
    e(f"s_lshl_b32 s{sIss0}, s{sHw}, { {'A': 12, 'B': 18, 'C': 10, 'D': 11}[cfg.amap] }")
    if cfg.krot:
        e(f"s_mul_i32 s{sT}, s2, {cfg.krot}")
        e(f"s_and_b32 s{sT}, s{sT}, 63")
        e(f"s_lshl_b32 s{sT}, s{sT}, 14")
        e(f"s_add_u32 s{sIss0}, s{sIss0}, s{sT}")
    e(f"s_mov_b32 s{sIss}, s{sIss0}")
    e(f"v_lshrrev_b32 v{vT0}, 2, v{vC}")
    e(f"v_lshl_add_u32 v{vT0}, v{vR}, 2, v{vT0}")
    e(f"s_lshl_b32 s{sT}, s{sHw}, 9")
    e(f"v_add_u32 v{vT0}, s{sT}, v{vT0}")
    e(f"v_lshlrev_b32 v{vSc}, 3, v{vT0}")
    e(f"v_add_u32 v{vSc}, {L_SC}, v{vSc}")
    e(f"s_waitcnt lgkmcnt(0)")
    if cfg.rank and cfg.rankmode == 'flag':
        e(f"s_load_dword s{sNonce}, s[{pWS}:{pWS+1}], 0")
    e(f"s_lshl_b32 s{sT}, s2, 20")
    srd(SK, pK, sT, 1 << 20)
    srd(SV, pV, sT, 1 << 20)
    if P2:
        e(f"s_mul_i32 s{sPF}, s{sHw}, {P2*1024}")
        e(f"s_add_u32 s{sPF}, s{sPF}, {L_PF}")
        e(f"v_add_u32 v{vPF}, s{sPF}, v{vL16}")
    def imm(j):
        if cfg.amap in ('A', 'B'): return j*1024
        if cfg.amap == 'C': return 0
        if cfg.amap == 'D': return (j % 2)*1024
    def adv(j):
        if cfg.amap == 'A':
            if j == 3:
                e(f"s_add_u32 s{sIss}, s{sIss}, 16384")
                if cfg.krot: e(f"s_and_b32 s{sIss}, s{sIss}, 0xfffff")
        elif cfg.amap == 'B':
            if j == 3: e(f"s_add_u32 s{sIss}, s{sIss}, 4096")
        elif cfg.amap == 'C':
            e(f"s_add_u32 s{sIss}, s{sIss}, 4096")
        elif cfg.amap == 'D':
            if j % 2 == 1: e(f"s_add_u32 s{sIss}, s{sIss}, 8192")
    slot = {}
    def issue_lds(n):
        k = n - P; j = n % 4
        e(f"s_add_u32 m0, s{sPF}, {k*1024 - imm(j)}")
        e(f"s_nop 0")
        e(f"buffer_load_dwordx4 v{vL16}, s[{SK}:{SK+3}], s{sIss} offen offset:{imm(j)} {cfg.kflag} lds")
        adv(j)
        slot[n] = ("L", k)
    def issue(n, reg):
        isV = n >= 256
        j = n % 4
        if n == 256: e(f"s_mov_b32 s{sIss}, s{sIss0}")
        srdr = SV if isV else SK
        fl = cfg.vflag if isV else cfg.kflag
        e(f"buffer_load_dwordx4 v[{reg}:{reg+3}], v{vL16}, s[{srdr}:{srdr+3}], s{sIss} offen offset:{imm(j)} {fl}")
        adv(j)
        slot[n] = reg
    m_ = "row_mask:0xf"
    def consumeK(n, scoff=None):
        j = n % 4; reg = slot[n]; i = n // 4
        if isinstance(reg, tuple):
            k = reg[1]
            if j == 0:
                for jj in range(4):
                    e(f"ds_read_b128 v[{TMPR+4*jj}:{TMPR+4*jj+3}], v{vPF} offset:{(k+jj)*1024}")
                e(f"s_waitcnt lgkmcnt(0)")
            reg = TMPR + 4*j
        for d in range(4):
            src2 = "0" if d == 0 else f"v{S+j}"
            e(f"v_dot2_f32_bf16 v{S+j}, v{reg+d}, v{Q+d}, {src2}")
        if j == 3:
            e(f"v_add_f32_dpp v{vU0}, v{S}, v{S} row_mirror {m_} bank_mask:0x3")
            e(f"v_add_f32_dpp v{vU1}, v{S+1}, v{S+1} row_mirror {m_} bank_mask:0x3")
            e(f"v_add_f32_dpp v{vU0}, v{S+2}, v{S+2} row_mirror {m_} bank_mask:0xc")
            e(f"v_add_f32_dpp v{vU1}, v{S+3}, v{S+3} row_mirror {m_} bank_mask:0xc")
            e(f"v_add_f32_dpp v{vTt}, v{vU0}, v{vU0} row_half_mirror {m_} bank_mask:0x5")
            e(f"v_add_f32_dpp v{vTt}, v{vU1}, v{vU1} row_half_mirror {m_} bank_mask:0xa")
            e(f"v_add_f32_dpp v{vTt}, v{vTt}, v{vTt} quad_perm:[1,0,3,2] {m_} bank_mask:0xf")
            e(f"v_add_f32_dpp v{vTt}, v{vTt}, v{vTt} quad_perm:[2,3,0,1] {m_} bank_mask:0xf")
            e(f"v_cvt_pk_bf16_f32 v{vTt}, 0, v{vTt}")
            e(f"v_mul_f32 v{vTt}, s{sScale}, v{vTt}")
            e(f"v_cvt_pk_bf16_f32 v{vTt}, 0, v{vTt}")
            e(f"ds_write_b32 v{vSc}, v{vTt} offset:{4*(i % 2)}")
            e(f"v_max_f32 v{vM}, v{vM}, v{vTt}")
            if i % 2 == 1: e(f"v_add_u32 v{vSc}, 128, v{vSc}")
    vProgA, vProgV, vMode = 41, 42, 43
    def consumeV(n):
        j = n % 4; reg = slot[n]; i = (n - 256) // 4
        if cfg.ctrl and j % 2 == 0:
            e(f"v_add_u32 v{vProgV}, 1, v{vProgV}")
            e(f"ds_write_b32 v{vProgA}, v{vProgV}")
        if j == 0:
            if i % 2 == 0:
                e(f"s_waitcnt lgkmcnt(0)")
                e(f"v_sub_f32 v{E2}, v{E2n}, v{vM}")
                e(f"v_sub_f32 v{E2+1}, v{E2n+1}, v{vM}")
                e(f"ds_read_b64 v[{E2n}:{E2n+1}], v{vSc}")
                e(f"v_add_u32 v{vSc}, 128, v{vSc}")
                e(f"v_mul_f32 v{E2}, s{sL2E}, v{E2}")
                e(f"v_mul_f32 v{E2+1}, s{sL2E}, v{E2+1}")
                e(f"v_exp_f32 v{E2}, v{E2}")
                e(f"v_exp_f32 v{E2+1}, v{E2+1}")
                e(f"v_add_f32 v{vLs}, v{vLs}, v{E2}")
                e(f"v_add_f32 v{vLs}, v{vLs}, v{E2+1}")
            e(f"v_cvt_pk_bf16_f32 v{vPL}, v{E2 + i % 2}, 0")
            e(f"v_cvt_pk_bf16_f32 v{vPH}, 0, v{E2 + i % 2}")
        for d in range(4):
            e(f"v_dot2c_f32_bf16_dpp v{ACC+2*d}, v{vPL}, v{reg+d} {bc(4*j)}")
            e(f"v_dot2c_f32_bf16_dpp v{ACC+2*d+1}, v{vPH}, v{reg+d} {bc(4*j)}")
    Lp = cfg.Lp or L
    for n in range(P):
        if n == Lp: e(f"s_barrier")
        if n >= max(Lp, cfg.burst0): e(f"s_waitcnt vmcnt({Lp-1})")
        if cfg.exp2 == 'early' and n in (Lp, Lp+10, Lp+20, Lp+30):
            stamp({Lp: 3, Lp+10: 4, Lp+20: 5, Lp+30: 6}[n])
        issue(n, BIG + 4*n)
    for n in range(P, P + P2):
        e(f"s_waitcnt vmcnt({Lp-1})")
        issue_lds(n)
    if P <= Lp: e("s_barrier")
    stamp(1)
    e(f"s_barrier")
    e(f"v_lshlrev_b32 v{vT0}, 4, v{vC}")
    e(f"ds_read_b128 v[{Q}:{Q+3}], v{vT0} offset:{L_QB}")
    for i in range(8): e(f"v_mov_b32 v{ACC+i}, 0")
    e(f"v_mov_b32 v{vM}, 0xff800000")
    e(f"v_mov_b32 v{vLs}, 0")
    e(f"s_waitcnt lgkmcnt(0)")
    if cfg.rank and cfg.rankmode == 'flag': e(f"s_add_u32 s{sNonce}, s{sNonce}, 1")
    stamp(2)
    I = P + P2; C = 0
    free = []
    def alloc(n):
        return None
    while I - C > L:
        e(f"s_waitcnt vmcnt({L-1})")
        prev = I - 8
        ringreg = RING + 4*(I % 8)
        tenant = [n for n, r in slot.items() if r == ringreg and n >= C]
        ring_ok = not (cfg.bigpf and C < P + P2 and ringreg < RING + 16)
        if not tenant and ring_ok and (I - C) <= 16:
            reg = ringreg
        else:
            reg = free.pop(0) if free else None
            if reg is None:
                busy = {r for n, r in slot.items() if n >= C}
                reg = next(RING + 4*k for k in range(4 if cfg.bigpf else 0, 8) if RING + 4*k not in busy)
        issue(I, reg); I += 1
        for _ in range(2):
            if I - C > L:
                consumeK(C)
                if not isinstance(slot[C], tuple) and BIG <= slot[C]: free.append(slot[C])
                C += 1
    if cfg.bigpf:
        assert C >= P + P2
        e(f"s_mov_b64 exec, 1")
        e(f"v_mov_b32 v{vT0}, 0")
        e(f"v_mov_b32 v{vT1}, 1")
        e(f"ds_add_u32 v{vT0}, v{vT1} offset:{L_CNT+20}")
        e(f"s_mov_b64 exec, -1")
    Kpat = cfg.Kpat or [L]*8
    Vpat = cfg.Vpat or [L]*8
    tgt_over = {}
    def target(n):
        if n >= 512: return 0
        if n in tgt_over: return tgt_over[n]
        t = Kpat[n % 8] if n < 256 else Vpat[n % 8]
        if n >= 512 - cfg.tailN: t = cfg.Ltail
        return min(t, 512 - n)
    def steady(nsteps_end):
        nonlocal I, C
        while C < nsteps_end:
            e(f"s_waitcnt vmcnt({I - C - 1})")
            while I < 512 and I - (C + 1) < target(C + 1):
                ringreg = RING + 4*(I % 8)
                assert not [n for n, r in slot.items() if r == ringreg and C <= n < I], (I, C)
                issue(I, ringreg); I += 1
            if C < 256: consumeK(C)
            else: consumeV(C)
            C += 1
    while not (C % 8 == 0 and I - C == target(C) and all(slot[n] == RING + 4*(n % 8) for n in range(C, I))):
        steady(C + 1)
    c0 = C
    niterK = (248 - c0) // 8
    assert niterK >= 1 and c0 + 8*niterK == 248, (c0, niterK)
    if cfg.exp2 == 'kstart': stamp(5)
    e(f"s_mov_b32 s{sCnt}, {niterK}")
    A.fence()
    A.label("L_kloop")
    steady(C + 8)
    e(f"s_sub_u32 s{sCnt}, s{sCnt}, 1")
    e(f"s_cmp_lg_u32 s{sCnt}, 0")
    A.fence()
    e(f"s_cbranch_scc1 L_kloop")
    shift = 248 - C
    for n in range(C, I): slot[n + shift] = slot[n]
    C += shift; I += shift
    vRank = 41
    if cfg.rank:
        e(f"s_cmp_lg_u32 s{sHw}, 0")
        e(f"s_cbranch_scc1 L_norank")
        if cfg.rankmode == 'atomic':
            e(f"s_mov_b64 exec, 1")
            e(f"v_mov_b32 v{vT0}, 0")
            e(f"v_mov_b32 v{vT1}, 1")
            e(f"global_atomic_add v{vRank}, v{vT0}, v{vT1}, s[{pDBG}:{pDBG+1}] sc0 sc1")
            e(f"s_mov_b64 exec, -1")
        else:
            e(f"s_and_b32 s{sT}, s2, 7")
            e(f"s_lshl_b32 s{sT}, s{sT}, 7")
            e(f"s_add_u32 s{sT}, s{sT}, {3 << 20}")
            e(f"v_and_b32 v{vT0}, 31, v{vLane}")
            e(f"v_lshlrev_b32 v{vT0}, 2, v{vT0}")
            e(f"v_add_u32 v{vT0}, s{sT}, v{vT0}")
            e(f"s_lshr_b32 s{sTmp}, s2, 3")
            e(f"s_lshl_b32 s{sTmp}, s{sTmp}, 2")
            e(f"s_add_u32 s{sTmp}, s{sTmp}, s{sT}")
            e(f"v_mov_b32 v{vT1}, s{sTmp}")
            e(f"v_mov_b32 v{vT2}, s{sNonce}")
            e(f"global_load_dword v{vRank}, v{vT0}, s[{pWS}:{pWS+1}] sc1")
            e(f"s_mov_b64 exec, 1")
            e(f"global_store_dword v{vT1}, v{vT2}, s[{pWS}:{pWS+1}]")
            e(f"s_mov_b64 exec, -1")
        A.label("L_norank"); A.hist = []
        Ia = I
        steady(Ia + 1)
        e(f"s_cmp_lg_u32 s{sHw}, 0")
        e(f"s_cbranch_scc1 L_norank2")
        if cfg.rankmode == 'atomic':
            e(f"v_readfirstlane_b32 s{sT}, v{vRank}")
        else:
            e(f"v_cmp_eq_u32 vcc, s{sNonce}, v{vRank}")
            e(f"s_bcnt1_i32_b32 s{sT}, vcc_lo")
            if cfg.exp2 == 'rankdbg':
                e(f"s_mov_b32 s90, s{sT}")
                e(f"s_mov_b32 s91, 0")
        e(f"s_mov_b32 s{sTmp}, 0")
        for k, (thr, pat) in enumerate(cfg.rank):
            e(f"s_cmp_ge_u32 s{sT}, {thr}")
            e(f"s_cselect_b32 s{sTmp}, {k+1}, s{sTmp}")
        e(f"v_mov_b32 v{vT0}, 0")
        e(f"v_mov_b32 v{vT1}, s{sTmp}")
        e(f"ds_write_b32 v{vT0}, v{vT1} offset:{L_CNT+16}")
        A.label("L_norank2"); A.hist = []
    steady(256)
    if cfg.exp2 != 'early': stamp(3)
    wave_red(vM, vT1, "v_max_f32")
    e(f"v_subrev_u32 v{vSc}, {32*128}, v{vSc}")
    e(f"s_waitcnt lgkmcnt(0)")
    e(f"ds_read_b64 v[{E2n}:{E2n+1}], v{vSc}")
    e(f"v_add_u32 v{vSc}, 128, v{vSc}")
    if cfg.ctrl:
        e(f"s_lshl_b32 s{sT}, s{sHw}, 2")
        e(f"s_add_u32 s{sT}, s{sT}, {L_PROG}")
        e(f"v_mov_b32 v{vProgA}, s{sT}")
        e(f"v_mov_b32 v{vProgV}, 0")
    steady(264)
    def vsection(pat, sfx):
        nonlocal I, C, Vpat
        Vpat = pat
        steady(272)
        vend = 512 - 8 - cfg.tailN - (8 if cfg.tailN else 0)
        niterV = (vend - 272) // 8
        e(f"s_mov_b32 s{sCnt}, {niterV}")
        if cfg.ctrl:
            c0 = C
            assert I - C == 5 and pat[0] == 5
            sMode = 10
            e(f"v_mov_b32 v{vT0}, 0")
            e(f"ds_read_b32 v{vMode}, v{vT0} offset:{L_MODE}")
            def head():
                e(f"s_waitcnt lgkmcnt(0)")
                e(f"v_readfirstlane_b32 s{sMode}, v{vMode}")
                e(f"v_mov_b32 v{vT0}, 0")
                e(f"ds_read_b32 v{vMode}, v{vT0} offset:{L_MODE}")
                e(f"s_cmp_eq_u32 s{sCnt}, 1")
                e(f"s_cselect_b32 s{sMode}, 0, s{sMode}")
            def body(lab, start, mid, endlag, nxt):
                nonlocal I, C
                A.label(lab); A.hist = []
                C = c0; I = c0 + start
                for n in range(C, I): slot[n] = RING + 4*(n % 8)
                tgt_over.clear()
                for k in range(1, 8): tgt_over[c0 + k] = mid[k]
                tgt_over[c0 + 8] = endlag
                steady(c0 + 8)
                tgt_over.clear()
                e(f"s_sub_u32 s{sCnt}, s{sCnt}, 1")
                e(f"s_cmp_lg_u32 s{sCnt}, 0")
                A.fence()
                e(f"s_cbranch_scc1 {nxt}")
                if endlag == 5: e(f"s_branch L_vexit")
            A.fence()
            A.label("L_vh5"); A.hist = []
            head()
            e(f"s_cmp_eq_u32 s{sMode}, 1")
            e(f"s_cbranch_scc1 L_vB")
            e(f"s_cmp_eq_u32 s{sMode}, 2")
            e(f"s_cbranch_scc1 L_vS")
            body("L_vA", 5, pat, 5, "L_vh5")
            body("L_vS", 5, cfg.cslow, 5, "L_vh5")
            body("L_vB", 5, [6]*8, 6, "L_vh6")
            A.label("L_vh6"); A.hist = []
            head()
            e(f"s_cmp_eq_u32 s{sMode}, 1")
            e(f"s_cbranch_scc0 L_vD")
            body("L_vC", 6, [6]*8, 6, "L_vh6")
            body("L_vD", 6, pat, 5, "L_vh5")
            A.label("L_vexit"); A.hist = []
            C = c0 + 8; I = C + 5
            for n in range(C, I): slot[n] = RING + 4*(n % 8)
        else:
            A.fence()
            A.label(f"L_vloop{sfx}")
            steady(C + 8)
            e(f"s_sub_u32 s{sCnt}, s{sCnt}, 1")
            e(f"s_cmp_lg_u32 s{sCnt}, 0")
            A.fence()
            e(f"s_cbranch_scc1 L_vloop{sfx}")
        shift = vend - C
        for n in range(C, I): slot[n + shift] = slot[n]
        C += shift; I += shift
        if cfg.tailN and cfg.deeptail:
            steady(512 - cfg.tailN - 1)
            pool = [RING + 4*i for i in range(8)] + [BIG + 4*i for i in range(8)]
            while C < 512:
                e(f"s_waitcnt vmcnt({I - C - 1})")
                while I < 512 and I - (C + 1) < target(C + 1):
                    busy = {slot[n] for n in range(C, I)}
                    reg = next(r for r in pool if r not in busy)
                    issue(I, reg); I += 1
                consumeV(C); C += 1
        elif cfg.tailN:
            steady(512 - cfg.tailN + 8)
            nt_ = (504 - C) // 8
            if nt_ > 0:
                e(f"s_mov_b32 s{sCnt}, {nt_}")
                A.fence()
                A.label(f"L_tloop{sfx}")
                steady(C + 8)
                e(f"s_sub_u32 s{sCnt}, s{sCnt}, 1")
                e(f"s_cmp_lg_u32 s{sCnt}, 0")
                A.fence()
                e(f"s_cbranch_scc1 L_tloop{sfx}")
                shift = 504 - C
                for n in range(C, I): slot[n + shift] = slot[n]
                C += shift; I += shift
        steady(512)
    if cfg.rank:
        e(f"v_mov_b32 v{vT0}, 0")
        e(f"ds_read_b32 v{vT1}, v{vT0} offset:{L_CNT+16}")
        e(f"s_waitcnt lgkmcnt(0)")
        e(f"v_readfirstlane_b32 s{sT}, v{vT1}")
        for k in range(len(cfg.rank)):
            e(f"s_cmp_eq_u32 s{sT}, {k+1}")
            e(f"s_cbranch_scc1 L_vsec{k+1}")
        base_pat = list(Vpat)
        saved = (I, C, dict(slot))
        pats = [base_pat] + [p for _, p in cfg.rank]
        for k, pat in enumerate(pats):
            I, C = saved[0], saved[1]
            slot.clear(); slot.update(saved[2])
            if k > 0:
                A.label(f"L_vsec{k}"); A.hist = []
            vsection(pat, f"_{k}")
            if k < len(pats) - 1:
                A.fence()
                e(f"s_branch L_vdone")
        A.label("L_vdone"); A.hist = []
    elif cfg.xccpat:
        e(f"s_getreg_b32 s{sT}, hwreg(HW_REG_XCC_ID)")
        e(f"s_and_b32 s{sT}, s{sT}, 3")
        e(f"s_cmp_eq_u32 s{sT}, 3")
        e(f"s_cbranch_scc1 L_vsec1")
        saved = (I, C, dict(slot))
        for k, pat in enumerate((cfg.xccpat[1], cfg.xccpat[0])):
            I, C = saved[0], saved[1]
            slot.clear(); slot.update(saved[2])
            if k > 0:
                A.label(f"L_vsec{k}"); A.hist = []
            vsection(pat, f"_{k}")
            if k == 0:
                A.fence()
                e(f"s_branch L_vdone")
        A.label("L_vdone"); A.hist = []
    else:
        vsection(Vpat, "")
    if cfg.exp2 != 'early': stamp(4)
    m = "row_mask:0xf bank_mask:0xf"
    e(f"v_add_f32_dpp v{vLs}, v{vLs}, v{vLs} row_half_mirror {m}")
    e(f"v_add_f32_dpp v{vLs}, v{vLs}, v{vLs} row_mirror {m}")
    e(f"v_mov_b32 v{vT1}, v{vLs}")
    e(f"v_permlane16_swap_b32 v{vLs}, v{vT1}")
    e(f"v_add_f32 v{vLs}, v{vLs}, v{vT1}")
    e(f"v_mov_b32 v{vT1}, v{vLs}")
    e(f"v_permlane32_swap_b32 v{vLs}, v{vT1}")
    e(f"v_add_f32 v35, v{vLs}, v{vT1}")
    e(f"v_mov_b32 v34, v{vM}")
    reduce8(ACC, vT2, vT3)
    e(f"s_lshl_b32 s{sT}, s{sHw}, 9")
    e(f"v_add_u32 v{vT0}, s{sT}, v{vColAddr}")
    e(f"v_add_u32 v{vT0}, {L_OP}, v{vT0}")
    e(f"ds_write2_b32 v{vT0}, v{vT2}, v{vT3} offset0:0 offset1:4")
    e(f"s_lshl_b32 s{sT}, s{sHw}, 3")
    e(f"v_mov_b32 v{vT0}, s{sT}")
    e(f"ds_write_b64 v{vT0}, v[34:35] offset:{L_ML}")
    e(f"s_waitcnt lgkmcnt(0)")
    e(f"s_barrier")
    if cfg.exp2 not in ('kstart', 'early', 'rankdbg'): stamp(5)
    if cfg.streamfirst:
        e("s_branch L_fin")
        A.lines.append("@@STREAM_END@@")
    A.label("L_fin"); A.hist = []
    if cfg.stamps:
        e("s_mov_b64 exec, -1")
        if cfg.exp2 == 'early':
            e(f"s_cmp_ge_u32 s{sW}, 4")
            e(f"s_cbranch_scc1 L_nost6")
        stamp(6)
        if cfg.exp2 == 'early': A.label("L_nost6")
        e("s_waitcnt lgkmcnt(0)")
        if cfg.dbgstamps:
            e(f"s_cmp_eq_u32 s{sW}, 3")
            e(f"s_cbranch_scc1 L_dbg3")
            e(f"s_cmp_eq_u32 s{sW}, 4")
            e(f"s_cbranch_scc0 L_end")
            e("s_mov_b64 exec, 1")
            for k, i in enumerate((1, 2, 3, 4)):
                e(f"v_mov_b32 v64, s{80+2*i}")
                e(f"v_not_b32 v65, v64")
                e(f"v_mov_b32 v66, {32 + 8*k}")
                e(f"global_atomic_umax v66, v64, s[{pDBG}:{pDBG+1}] sc1")
                e(f"global_atomic_umax v66, v65, s[{pDBG}:{pDBG+1}] offset:4 sc1")
            e("s_waitcnt vmcnt(0)")
            e("s_branch L_end")
            A.label("L_dbg3")
            e("s_mov_b64 exec, 1")
            for k, i in enumerate((0, 2, 5, 6)):
                e(f"v_mov_b32 v64, s{80+2*i}")
                e(f"v_not_b32 v65, v64")
                e(f"v_mov_b32 v66, {8*k}")
                e(f"global_atomic_umax v66, v64, s[{pDBG}:{pDBG+1}] sc1")
                e(f"global_atomic_umax v66, v65, s[{pDBG}:{pDBG+1}] offset:4 sc1")
            e("s_waitcnt vmcnt(0)")
            e("s_branch L_end")
        e(f"s_lshl_b32 s{sT}, s2, 3")
        e(f"s_add_u32 s{sT}, s{sT}, s{sW}")
        e(f"s_lshl_b32 s{sT}, s{sT}, 6")
        e(f"s_add_u32 s{sT}, s{sT}, {1<<20}")
        for i in range(14): e(f"v_mov_b32 v{64+i}, s{80+i}")
        e(f"s_getreg_b32 s{sTmp}, hwreg(HW_REG_XCC_ID)")
        e(f"v_mov_b32 v78, s{sTmp}")
        e(f"s_getreg_b32 s{sTmp}, hwreg(HW_REG_HW_ID)")
        e(f"v_mov_b32 v79, s{sTmp}")
        e(f"v_mov_b32 v{vT0}, s{sT}")
        e("s_mov_b64 exec, 1")
        for i in range(4):
            e(f"global_store_dwordx4 v{vT0}, v[{64+4*i}:{67+4*i}], s[{pWS}:{pWS+1}] offset:{16*i}")
        e("s_waitcnt vmcnt(0)")
    A.label("L_end")
    e("s_endpgm")
    if cfg.ctrl:
        cA, cB, cP, cV, cQ, cT, cZ = 12, 13, 14, 15, 16, 17, 18
        A.hist = []
        A.label("L_probe")
        e(f"ds_read_b32 v{cP}, v{cZ} offset:{L_PROG}")
        e(f"v_lshrrev_b32 v{cT}, 16, v{cQ}")
        e(f"v_cmp_eq_u32 vcc, s11, v{cT}")
        e(f"v_and_b32 v{cQ}, 0xffff, v{cQ}")
        e(f"v_cndmask_b32 v{cQ}, 0, v{cQ}, vcc")
        e(f"s_bcnt1_i32_b64 s{sT}, vcc")
        wave_red(cQ, cT, "v_add_u32")
        e(f"v_readfirstlane_b32 s{sTmp}, v{cQ}")
        e(f"s_mul_i32 s13, s13, s{sT}")
        e(f"s_lshl_b32 s{sTmp}, s{sTmp}, 1")
        e(f"s_sub_i32 s13, s13, s{sTmp}")
        if cfg.xbias:
            e(f"s_mul_i32 s{sTmp}, s{sT}, s8")
            e(f"s_add_i32 s13, s13, s{sTmp}")
        e(f"s_mul_i32 s{sTmp}, s{sT}, {2*cfg.cd1}")
        e(f"s_mul_i32 s{sTmp2}, s{sT}, {2*cfg.cd2}")
        e(f"s_mov_b32 s15, 0")
        e(f"s_cmp_gt_i32 s13, s{sTmp2}")
        e(f"s_cselect_b32 s15, 2, s15")
        e(f"s_sub_i32 s{sTmp}, 0, s{sTmp}")
        e(f"s_cmp_lt_i32 s13, s{sTmp}")
        e(f"s_cselect_b32 s15, 1, s15")
        e(f"s_cmp_lt_u32 s{sT}, 16")
        e(f"s_cselect_b32 s15, 0, s15")
        e(f"v_mov_b32 v{cT}, s15")
        e(f"ds_write_b32 v{cZ}, v{cT} offset:{L_MODE}")
        e(f"s_waitcnt lgkmcnt(0)")
        e(f"s_mov_b32 s13, s14")
        e(f"v_readfirstlane_b32 s14, v{cP}")
        e(f"s_add_u32 s13, s13, s14")
        e(f"s_or_b32 s15, s12, s14")
        e(f"v_mov_b32 v{cV}, s15")
        e(f"s_mov_b64 exec, 1")
        e(f"global_store_dword v{cB}, v{cV}, s[{pWS}:{pWS+1}]")
        e(f"s_mov_b64 exec, -1")
        e(f"global_load_dword v{cQ}, v{cA}, s[{pWS}:{pWS+1}] sc1")
        A.fence()
        e("s_setpc_b64 s[94:95]")
    body = A.text()
    if cfg.streamfirst:
        a_ = body.index("@@HELPER_BEGIN@@\n"); b_ = body.index("@@STREAM_BEGIN@@\n"); c_ = body.index("@@STREAM_END@@\n")
        head = body[:a_]; helper = body[a_+len("@@HELPER_BEGIN@@\n"):b_]; stream = body[b_+len("@@STREAM_BEGIN@@\n"):c_]; tail_ = body[c_+len("@@STREAM_END@@\n"):]
        body = head + stream + "L_helper:\n" + helper + tail_
    hdr = HDR + f"; @launch grid=(256,1,1) block=(512,1,1) lds={LDS_BYTES}\n" + DESC
    pre = f""".amdgcn_target "amdgcn-amd-amdhsa--gfx950"
.text
.globl {KN}
.p2align 8
.type {KN},@function
{KN}:
"""
    post = f""".section .rodata,"a"
.p2align 6
.amdhsa_kernel {KN}
  .amdhsa_next_free_vgpr 256
  .amdhsa_next_free_sgpr 102
  .amdhsa_accum_offset 256
  .amdhsa_group_segment_fixed_size 0
  .amdhsa_kernarg_size 104
  .amdhsa_user_sgpr_count 2
  .amdhsa_user_sgpr_kernarg_segment_ptr 1
  .amdhsa_system_sgpr_workgroup_id_x 1
  .amdhsa_float_denorm_mode_32 3
.end_amdhsa_kernel
"""
    return hdr + pre + body + post

if __name__ == "__main__":
    class C(Cfg): pass
    for a in sys.argv[2:]:
        k, v = a.split("=")
        setattr(C, k, eval(v))
    open(sys.argv[1], "w").write(gen(C))
```
